```python
import torch

def _softmax(x, axis=-1):
    return torch.softmax(x, dim=axis)
def _gelu(x):
    return torch.nn.functional.gelu(x, approximate="tanh")
def _silu(x):
    return torch.nn.functional.silu(x)
def _sigmoid(x):
    return torch.sigmoid(x)
def _layernorm(x, axis=-1, eps=1e-5):
    m = x.mean(dim=axis, keepdim=True)
    v = x.var(dim=axis, keepdim=True, unbiased=False)
    return (x - m) / torch.sqrt(v + eps)
def _scatter_add(tgt, idx, src, axis=0):
    return tgt.clone().index_add_(axis, idx, src)
def _segment_sum(src, seg, n):
    out = torch.zeros((n,) + src.shape[1:], dtype=src.dtype)
    return out.index_add_(0, seg, src)
def _pad(x, pw):
    flat = tuple(v for pair in reversed(pw) for v in pair)
    return torch.nn.functional.pad(x, flat)

kernel_name = 'standalone__gqa_block_cached__near_ridge'

def setup_inputs():

    _w = (lambda a: (lambda t: t.to(torch.bfloat16) if t.is_floating_point() else t)(torch.as_tensor(a)))
    B, Sq, D = 16, 64, 640
    Hq, Hkv, Sk, Dh = 32, 32, 64, 128
    assert Hq % Hkv == 0, (Hq, Hkv)
    return {
        "x": _w((lambda *s: torch.randn(*s, dtype=torch.bfloat16) * 0.8)(B, Sq, D)),
        "k_cache": _w((lambda *s: torch.randn(*s, dtype=torch.bfloat16) * 0.8)(B, Hkv, Sk, Dh)),
        "v_cache": _w((lambda *s: torch.randn(*s, dtype=torch.bfloat16) * 0.05)(B, Hkv, Sk, Dh)),
        "wq": _w((lambda *s: torch.randn(*s, dtype=torch.bfloat16) * 0.8)(D, Hq * Dh) * (D ** -0.5)),
        "wo": _w((lambda *s: torch.randn(*s, dtype=torch.bfloat16) * 0.05)(Hq * Dh, D) * ((Hq * Dh) ** -0.5)),
    }

def reference(x, k_cache, v_cache, wq, wo):
    B, Sq, D = x.shape
    Hq, Dh = 32, 128
    Hkv = k_cache.shape[1]
    rep = Hq // Hkv
    q = (lambda x, *d: x.permute(*d))((x @ wq).reshape(B, Sq, Hq, Dh), 0, 2, 1, 3)
    k = (lambda x, n, axis: torch.repeat_interleave(x, n, dim=axis))(k_cache, rep, axis=1)
    v = (lambda x, n, axis: torch.repeat_interleave(x, n, dim=axis))(v_cache, rep, axis=1)
    scores = torch.einsum("bhqd,bhkd->bhqk", q, k) * (Dh ** -0.5)
    p = _softmax(scores, axis=-1)
    o = torch.einsum("bhqk,bhkd->bhqd", p, v)
    return (lambda x, *d: x.permute(*d))(o, 0, 2, 1, 3).reshape(B, Sq, Hq * Dh) @ wo
```

```python
class Emit:
    def __init__(self):
        self.L = []
    def __call__(self, s, *a):
        if a: s = s % a
        for line in s.split("\n"):
            line = line.strip()
            if line: self.L.append(line)
    def raw(self, s): self.L.append(s)
    def comment(self, s): self.L.append("; " + s)
    def label(self, s): self.L.append(s + ":")
    def text(self):
        out = []
        for l in self.L:
            if l.endswith(":") or l.startswith(".") or l.startswith(";"): out.append(l)
            else: out.append("    " + l)
        return "\n".join(out) + "\n"

def v(a, n=1): return "v%d" % a if n == 1 else "v[%d:%d]" % (a, a + n - 1)
def a(a_, n=1): return "a%d" % a_ if n == 1 else "a[%d:%d]" % (a_, a_ + n - 1)
def s(a_, n=1): return "s%d" % a_ if n == 1 else "s[%d:%d]" % (a_, a_ + n - 1)

KD = """.section .rodata,"a"
.p2align 6
.amdhsa_kernel {name}
  .amdhsa_next_free_vgpr {vgpr}
  .amdhsa_next_free_sgpr {sgpr}
  .amdhsa_accum_offset {acc}
  .amdhsa_group_segment_fixed_size 0
  .amdhsa_kernarg_size 64
  .amdhsa_user_sgpr_count 2
  .amdhsa_user_sgpr_kernarg_segment_ptr 1
  .amdhsa_system_sgpr_workgroup_id_x 1
.end_amdhsa_kernel
"""
```

```python
import sys, struct
from asm import Emit, v, a, s, KD

NAME = "standalone__gqa_block_cached__near_ridge_kernel"
X_BYTES, W_BYTES, KV_BYTES, OUT_BYTES, WS_BYTES = 1310720, 5242880, 8388608, 1310720, 268435456
WS_O    = 0
WS_PART = 16 << 20
WS_E1   = 32 << 20
WS_E2   = WS_E1 + 64 * 128
WS_F1   = WS_E1 + (1 << 16)
WS_F2   = WS_E1 + (2 << 16) + (1 << 17)
WS_STAMP = 64 << 20
SCALE_LOG2E = (128 ** -0.5) * 1.4426950408889634
def f32bits(x): return struct.unpack("<I", struct.pack("<f", x))[0]

SLOT = 32768
L_K, L_V = 0, 32768
LDS_BYTES = 163840

S_X, S_WQ, S_K, S_V, S_WO, S_OUT, S_WS = 8, 12, 16, 20, 24, 28, 32
S_W, S_HG, S_RP, S_CS, S_H = 36, 37, 38, 39, 40
S_T0, S_T1, S_T2, S_T3 = 41, 42, 43, 44
S_WQ0, S_X0, S_KV0, S_LW, S_OFF, S_LW8 = 45, 46, 47, 48, 49, 50
S_WOB = 52
S_N1, S_N2 = 56, 57
S_OB, S_PB, S_SPIN = 58, 59, 60
S_EX = 62
S_STAMP = 64

V_LANE = 1
V_T = 2
V_DWQ, V_DX, V_DK, V_DV = 16, 20, 24, 28
V_EP = 29
V_LIN = 30
V_RK, V_RV = 32, 40
V_DWO = 44
V_RWO = 49
V_TM = 52
V_ACC, V_A, V_B, V_Q, V_S, V_P = 64, 128, 160, 168, 200, 232
V_RG = 200
V2_ACC, V2_A = 64, 200
V_PK = 200

class Cnt:
    def __init__(self): self.ops = []
    def issue(self, tag): self.ops.append(tag)
    def after(self, tags):
        if isinstance(tags, str): tags = [tags]
        last = max(i for i, t in enumerate(self.ops) if t in tags)
        return len(self.ops) - 1 - last

class K(Emit):
    def __init__(self, opts):
        super().__init__()
        self.o = opts; self.vm = Cnt(); self.lg = Cnt(); self.nst = 0
    def stamp(self, kind="main"):
        if not self.o.get("stamps"): return
        if self.o.get("g1st") and kind == "main" and self.nst >= 13: return
        if kind == "g1" and not self.o.get("g1st"): return
        if self.o.get("g1st") and kind == "late": return
        self("%s %s", "s_memtime" if self.o.get("cyc") else "s_memrealtime", s(S_STAMP + 2 * self.nst, 2)); self.nst += 1
    def waitv(self, tags, extra=""):
        n = self.vm.after(tags); assert n <= 63
        self("s_waitcnt vmcnt(%d)%s", n, extra)
    def waitl(self, tags):
        self("s_waitcnt lgkmcnt(%d)", min(15, self.lg.after(tags)))
    def ds(self, text, tag):
        self(text); self.lg.issue(tag)
    def dma(self, tag, vaddr, srd, soff_reg, imm):
        self("buffer_load_dwordx4 %s, %s, %s offen offset:%d lds", v(vaddr), s(srd, 4), s(soff_reg), imm)
        self.vm.issue(tag)

def prologue(e):
    e("s_cmp_ge_u32 s2, 256")
    e("s_cbranch_scc1 L_end")
    for (srd, off) in ((S_X, 0), (S_WQ, 24), (S_WS, 56), (S_K, 8), (S_V, 16), (S_WO, 32), (S_OUT, 40)):
        e("s_load_dwordx2 %s, s[0:1], %d", s(srd, 2), off)
    e("v_and_b32 %s, 63, v0", v(V_LANE))
    e("v_lshrrev_b32 %s, 6, v0", v(V_T))
    e("s_and_b32 %s, s2, 7", s(S_HG))
    e("s_lshr_b32 %s, s2, 3", s(S_T0))
    e("v_readfirstlane_b32 %s, %s", s(S_W), v(V_T))
    e("s_lshr_b32 %s, %s, 2", s(S_RP), s(S_T0))
    e("s_and_b32 %s, %s, 3", s(S_CS), s(S_T0))
    e("s_lshl_b32 %s, %s, 2", s(S_H), s(S_HG))
    e("s_add_u32 %s, %s, %s", s(S_H), s(S_H), s(S_CS))
    if e.o.get("same_src"):
        pass
    for (srd, size) in ((S_X, X_BYTES), (S_K, KV_BYTES), (S_V, KV_BYTES), (S_WQ, W_BYTES), (S_WO, W_BYTES),
                        (S_OUT, OUT_BYTES), (S_WS, WS_BYTES)):
        e("s_mov_b32 %s, 0x%x", s(srd + 2), size)
        e("s_mov_b32 %s, 0x20000", s(srd + 3))

def addr_gemm1_dma(e):
    T = V_T; L = v(V_LANE)
    e("v_lshrrev_b32 %s, 4, %s", v(T), L)
    e("v_and_b32 %s, 15, %s", v(T + 1), L)
    e("v_lshlrev_b32 %s, 2, %s", v(T + 2), v(T))
    e("v_xor_b32 %s, %s, %s", v(T + 2), v(T + 1), v(T + 2))
    e("v_lshlrev_b32 %s, 4, %s", v(T + 2), v(T + 2))
    e("v_lshl_add_u32 %s, %s, 13, %s", v(V_DWQ), v(T), v(T + 2))
    e("v_lshl_add_u32 %s, %s, 8, %s", v(V_DV), v(T), v(T + 2))
    for i in range(1, 4): e("v_add_u32 %s, %d, %s", v(V_DWQ + i), i * 31744, v(V_DWQ))
    e("v_xor_b32 %s, %s, %s", v(T + 2), v(T + 1), v(T))
    e("v_lshlrev_b32 %s, 4, %s", v(T + 2), v(T + 2))
    e("v_lshl_add_u32 %s, %s, 8, %s", v(V_DK), v(T), v(T + 2))
    e("v_lshrrev_b32 %s, 3, %s", v(T + 3), L)
    e("v_and_b32 %s, 7, %s", v(T + 4), L)
    e("v_lshrrev_b32 %s, 1, %s", v(T + 5), v(T + 3))
    e("v_xor_b32 %s, %s, %s", v(T + 5), v(T + 4), v(T + 5))
    e("v_lshlrev_b32 %s, 4, %s", v(T + 5), v(T + 5))
    e("v_mul_u32_u24 %s, 1280, %s", v(T + 3), v(T + 3))
    e("v_add_u32 %s, %s, %s", v(V_DX), v(T + 3), v(T + 5))
    e("v_xor_b32 %s, 64, %s", v(T + 5), v(T + 5))
    e("v_add_u32 %s, %s, %s", v(T + 6), v(T + 3), v(T + 5))
    e("v_add_u32 %s, %d, %s", v(V_DX + 1), 9216, v(T + 6))
    e("v_add_u32 %s, %d, %s", v(V_DX + 2), 2 * 9216, v(V_DX))
    e("v_add_u32 %s, %d, %s", v(V_DX + 3), 3 * 9216, v(T + 6))
    for i in range(1, 4): e("v_xor_b32 %s, %d, %s", v(V_DK + i), 64 * i, v(V_DK))
    e("v_lshlrev_b32 %s, 4, %s", v(V_LIN), L)
    e("s_lshl_b32 %s, %s, 17", s(S_WQ0), s(S_W))
    e("s_lshl_b32 %s, %s, 8", s(S_T0), s(S_H))
    e("s_add_u32 %s, %s, %s", s(S_WQ0), s(S_WQ0), s(S_T0))
    e("s_lshl_b32 %s, %s, 2", s(S_T0), s(S_RP))
    e("s_add_u32 %s, %s, %s", s(S_T0), s(S_T0), s(S_W))
    e("s_mul_i32 %s, %s, %d", s(S_X0), s(S_T0), 32 * 1280)
    e("s_lshl_b32 %s, %s, 12", s(S_LW), s(S_W))
    e("s_lshl_b32 %s, %s, 13", s(S_LW8), s(S_W))
    e("s_lshl_b32 %s, %s, 3", s(S_T0), s(S_RP))
    e("s_add_u32 %s, %s, %s", s(S_T0), s(S_T0), s(S_HG))
    e("s_lshl_b32 %s, %s, 7", s(S_T0), s(S_T0))
    e("s_add_u32 %s, %s, 0x%x", s(S_T0), s(S_T0), WS_E1)
    e("s_lshl_b32 %s, %s, 2", s(S_T1), s(S_RP))
    e("s_add_u32 %s, %s, %s", s(S_T1), s(S_T1), s(S_CS))
    e("s_lshl_b32 %s, %s, 7", s(S_T1), s(S_T1))
    e("s_add_u32 %s, %s, 0x%x", s(S_T1), s(S_T1), WS_E2)
    e("v_mov_b32 %s, %s", v(T), s(S_T0))
    e("v_mov_b32 %s, %s", v(T + 1), s(S_T1))
    e("v_cmp_eq_u32 vcc, 1, %s", L)
    e("s_nop 1")
    e("v_cndmask_b32 %s, %s, %s, vcc", v(V_TM), v(T), v(T + 1))

def addr_rest(e):
    T = V_T; L = v(V_LANE)
    HF, C32, NH, R, C, U, W2 = T, T + 1, T + 2, T + 3, T + 4, T + 5, T + 6
    e("v_lshrrev_b32 %s, 5, %s", v(HF), L)
    e("v_and_b32 %s, 31, %s", v(C32), L)
    e("v_bfe_u32 %s, %s, 4, 1", v(NH), L)
    e("v_bfe_u32 %s, %s, 2, 2", v(R), L)
    e("v_and_b32 %s, 3, %s", v(C), L)
    e("v_lshl_add_u32 %s, %s, 3, %s", v(U), v(HF), v(R))
    e("v_lshlrev_b32 %s, 8, %s", v(U), v(U))
    e("v_lshl_add_u32 %s, %s, 5, %s", v(U), v(NH), v(U))
    e("v_and_b32 %s, 1, %s", v(W2), v(C))
    e("v_lshl_add_u32 %s, %s, 4, %s", v(U), v(W2), v(U))
    e("v_lshrrev_b32 %s, 1, %s", v(W2), v(C))
    e("v_lshl_add_u32 %s, %s, 3, %s", v(U), v(W2), v(U))
    e("v_lshl_add_u32 %s, %s, 6, %s", v(V_RG), v(R), v(U))
    for t in range(1, 4): e("v_xor_b32 %s, %d, %s", v(V_RG + t), 64 * t, v(V_RG))
    e("v_bfe_u32 %s, %s, 1, 3", v(U), v(C32))
    e("v_xor_b32 %s, %s, %s", v(U), v(U), v(HF))
    e("v_lshlrev_b32 %s, 4, %s", v(U), v(U))
    e("v_lshl_add_u32 %s, %s, 7, %s", v(U), v(C32), v(U))
    e("s_add_u32 %s, %s, 16384", s(S_T1), s(S_LW))
    e("v_add_u32 %s, %s, %s", v(V_RG + 4), s(S_T1), v(U))
    for u in range(1, 4): e("v_xor_b32 %s, %d, %s", v(V_RG + 4 + u), 32 * u, v(V_RG + 4))
    for b in range(1, 3):
        for i in range(8): e("v_add_u32 %s, 0x%x, %s", v(V_RG + 8 * b + i), 65536 * b, v(V_RG + i))
    e("s_lshr_b32 %s, %s, 1", s(S_T0), s(S_W))
    e("s_lshl_b32 %s, %s, 14", s(S_T0), s(S_T0))
    e("v_lshl_add_u32 %s, %s, 2, %s", v(U), v(HF), v(R))
    e("v_lshlrev_b32 %s, 8, %s", v(W2), v(U))
    e("v_lshl_add_u32 %s, %s, 5, %s", v(W2), v(NH), v(W2))
    e("v_lshl_add_u32 %s, %s, 3, %s", v(W2), v(C), v(W2))
    e("v_lshl_add_u32 %s, %s, 6, %s", v(W2), v(R), v(W2))
    e("s_add_u32 %s, %s, %d", s(S_T1), s(S_T0), L_V)
    e("v_add_u32 %s, %s, %s", v(V_RV), s(S_T1), v(W2))
    for t in range(1, 4): e("v_xor_b32 %s, %d, %s", v(V_RV + t), 64 * t, v(V_RV))
    e("v_mul_u32_u24 %s, 320, %s", v(U), v(U))
    e("v_lshl_add_u32 %s, %s, 5, %s", v(U), v(NH), v(U))
    e("v_lshl_add_u32 %s, %s, 3, %s", v(V_RWO), v(C), v(U))
    e("v_add_u32 %s, %d, %s", v(V_RWO + 1), 13 * 5120, v(V_RWO))
    e("v_add_u32 %s, %d, %s", v(V_RWO + 2), 25 * 5120, v(V_RWO))
    e("v_and_b32 %s, 15, %s", v(U), v(C32))
    e("v_xor_b32 %s, %s, %s", v(U), v(U), v(HF))
    e("v_lshlrev_b32 %s, 4, %s", v(U), v(U))
    e("v_lshl_add_u32 %s, %s, 8, %s", v(U), v(C32), v(U))
    e("v_add_u32 %s, %s, %s", v(V_RK), s(S_T0), v(U))
    for st in range(1, 8): e("v_xor_b32 %s, %d, %s", v(V_RK + st), 32 * st, v(V_RK))
    for i in range(5):
        e("v_add_u32 %s, %d, %s", v(T), 64 * i, L)
        e("v_mul_u32_u24 %s, %d, %s", v(T + 1), 3277, v(T))
        e("v_lshrrev_b32 %s, 16, %s", v(T + 1), v(T + 1))
        e("v_mul_u32_u24 %s, 20, %s", v(T + 2), v(T + 1))
        e("v_sub_u32 %s, %s, %s", v(T + 2), v(T), v(T + 2))
        e("v_mul_u32_u24 %s, 1280, %s", v(T + 1), v(T + 1))
        e("v_lshl_add_u32 %s, %s, 4, %s", v(V_DWO + i), v(T + 2), v(T + 1))
        if i & 3: e("v_subrev_u32 %s, %d, %s", v(V_DWO + i), (i & 3) * 1024, v(V_DWO + i))
    e("s_lshr_b32 %s, %s, 1", s(S_T0), s(S_W))
    e("s_lshl_b32 %s, %s, 1", s(S_T1), s(S_RP))
    e("s_add_u32 %s, %s, %s", s(S_T0), s(S_T0), s(S_T1))
    e("s_lshl_b32 %s, %s, 5", s(S_T0), s(S_T0))
    e("s_add_u32 %s, %s, %s", s(S_T0), s(S_T0), s(S_H))
    e("s_lshl_b32 %s, %s, 14", s(S_KV0), s(S_T0))
    e("s_and_b32 %s, %s, 1", s(S_T0), s(S_W))
    e("s_lshl_b32 %s, %s, 13", s(S_T0), s(S_T0))
    e("s_add_u32 %s, %s, %s", s(S_KV0), s(S_KV0), s(S_T0))
    e("s_mul_i32 %s, %s, 320", s(S_T2), s(S_CS))
    e("s_mul_i32 %s, %s, %d", s(S_T3), s(S_W), 16 * 1280)
    e("s_add_u32 %s, %s, %s", s(S_T2), s(S_T2), s(S_T3))
    e("s_mul_i32 %s, %s, %d", s(S_T3), s(S_HG), 512 * 1280)
    e("s_add_u32 %s, %s, %s", s(S_T2), s(S_T2), s(S_T3))
    for j in range(4):
        e("s_add_u32 %s, %s, %d", s(S_T0), s(S_CS), j)
        e("s_and_b32 %s, %s, 3", s(S_T0), s(S_T0))
        e("s_mul_i32 %s, %s, %d", s(S_T0), s(S_T0), 128 * 1280)
        e("s_add_u32 %s, %s, %s", s(S_WOB + j), s(S_T0), s(S_T2))
    e("s_lshl_b32 %s, %s, 3", s(S_T0), s(S_RP))
    e("s_add_u32 %s, %s, %s", s(S_T0), s(S_T0), s(S_HG))
    e("s_lshl_b32 %s, %s, 2", s(S_T0), s(S_T0))
    e("s_add_u32 %s, %s, %s", s(S_T0), s(S_T0), s(S_W))
    e("s_lshl_b32 %s, %s, 15", s(S_OB), s(S_T0))

def grp_stage(e, st):
    slot = st % 5
    def wq(i):
        def f():
            if i == 0:
                e("s_add_u32 m0, %s, %d", s(S_LW), slot * SLOT)
                e("s_add_u32 %s, %s, %d", s(S_OFF), s(S_WQ0), st * 64 * 8192)
            e.dma("st%d" % st, V_DWQ + i, S_WQ, S_OFF, i * 1024)
        return f
    def xx(i):
        def f():
            if i == 0:
                e("s_add_u32 m0, %s, %d", s(S_LW), slot * SLOT + 16384)
                e("s_add_u32 %s, %s, %d", s(S_OFF), s(S_X0), st * 128)
            e.dma("st%d" % st, V_DX + i, S_X, S_OFF, i * 1024)
        return f
    return [wq(i) for i in range(4)] + [xx(i) for i in range(4)]

def grp_kv(e, which):
    srd, base, tag = (S_K, L_K, "K") if which == "K" else (S_V, L_V, "V")
    def f(i):
        def g():
            if i % 4 == 0:
                e("s_add_u32 m0, %s, %d", s(S_LW8), base + (i // 4) * 4096)
                e("s_add_u32 %s, %s, %d", s(S_OFF), s(S_KV0), (i // 4) * 4096)
            e.dma(tag, (V_DK + (i & 3)) if which == "K" else V_DV, srd, S_OFF, (i & 3) * 1024)
        return g
    return [f(i) for i in range(8)]

def grp_wo(e, st):
    def f(i):
        def g():
            if i == 0:
                e("s_add_u32 %s, %s, %d", s(S_T0), s(S_W), 13 + 4 * st)
                e("s_and_b32 %s, %s, 31", s(S_T0), s(S_T0))
                e("s_mul_i32 %s, %s, 5120", s(S_T0), s(S_T0))
                e("s_mov_b32 m0, %s", s(S_T0))
                e("s_add_u32 %s, %s, %d", s(S_OFF), s(S_WOB + (st >> 1)), (st & 1) * 4 * 16 * 1280)
            if i == 4:
                e("s_add_u32 m0, %s, 4096", s(S_T0))
                e("s_nop 0")
            e.dma("wo%d" % st, V_DWO + i, S_WO, S_OFF, (i & 3) * 1024)
        return g
    return [f(i) for i in range(5)]

def g1_reads(ks):
    st, s4, b = ks >> 2, ks & 3, ks & 1
    slot = st % 5
    base, rel = V_RG + 8 * (slot // 2), (slot % 2) * SLOT
    r = ["ds_read_b128 %s, %s offset:%d" % (v(V_B + 4 * b, 4), v(base + 4 + s4), rel)]
    for t in range(4):
        for j in range(2):
            r.append("ds_read_b64_tr_b16 %s, %s offset:%d" % (v(V_A + 16 * b + 4 * t + 2 * j, 2), v(base + t), rel + s4 * 4096 + j * 1024))
    return r

def gemm1(e):
    o = e.o
    e("s_waitcnt lgkmcnt(0)")
    e.stamp()
    e("buffer_load_dword %s, %s, %s, 0 offen sc1", v(V_EP), v(V_TM), s(S_WS, 4)); e.vm.issue("ep")
    for st in range(2):
        for f in grp_stage(e, st): f()
    addr_rest(e)
    for f in grp_stage(e, 2): f()
    e.waitv("st0")
    e("s_barrier")
    e.stamp()
    for r in g1_reads(0): e(r)
    pending = grp_stage(e, 3) + grp_stage(e, 4)
    NK = 40
    for ks in range(NK):
        st, s4, b = ks >> 2, ks & 3, ks & 1
        last = ks == NK - 1
        boundary = (s4 == 3)
        nxt = g1_reads(ks + 1) if not last else []
        if boundary:
            if not last:
                e.waitv("st%d" % (st + 1), " lgkmcnt(0)")
            else:
                e.waitv("K", " lgkmcnt(0)")
            e("s_barrier")
            e.stamp("g1")
            if st + 5 < 10: pending += grp_stage(e, st + 5)
            elif st == 5: pending += grp_kv(e, "K")
            elif st == 6: pending += grp_kv(e, "V")
            elif st == 7: pending += grp_wo(e, 0)
            elif st == 8: pending += grp_wo(e, 1) + grp_wo(e, 2)
            elif st == 9: pending += grp_wo(e, 3)
        if last:
            nxt = [kread_text(kt, st_, 2 * st_ + kt) for st_ in range(2) for kt in range(2)]
        per_gap = 2 if ks < 8 else 1
        for t in range(4):
            if not boundary: e("s_waitcnt lgkmcnt(%d)", [6, 7, 8, 9][t])
            c = "0" if ks == 0 else v(V_ACC + 16 * t, 16)
            e("v_mfma_f32_32x32x16_bf16 %s, %s, %s, %s", v(V_ACC + 16 * t, 16), v(V_A + 16 * b + 4 * t, 4), v(V_B + 4 * b, 4), c)
            if t < 3:
                for r in nxt[3 * t:3 * t + 3]: e(r)
            if t in (1, 3):
                for _ in range(per_gap):
                    if pending: pending.pop(0)()
    e.pending = pending
    e.stamp()

def kread_text(kt, st_, buf):
    return "ds_read_b128 %s, %s offset:%d" % (v(V_A + 4 * buf, 4), v(V_RK + st_), L_K + kt * 8192)

def attention(e):
    lg = e.lg; pending = e.pending
    for st_ in range(2):
        for kt in range(2): lg.issue("k%d_%d" % (st_, kt))
    def kread(kt, st_, buf): e.ds(kread_text(kt, st_, buf), "k%d_%d" % (st_, kt))
    def qcvt(t):
        for u in range(2):
            for d in range(4):
                r0 = V_ACC + 16 * t + 8 * u + 2 * d
                e("v_cvt_pk_bf16_f32 %s, %s, %s", v(V_Q + 8 * t + 4 * u + d), v(r0), v(r0 + 1))
    for st_ in range(2, 4):
        for kt in range(2): kread(kt, st_, 2 * st_ + kt)
    while pending: pending.pop(0)()
    e("s_nop 4")
    qcvt(0); qcvt(1); qcvt(2)
    e("s_nop 1")
    for st_ in range(8):
        if st_ == 2: qcvt(3); e("s_nop 0")
        for kt in range(2):
            buf = (2 * st_ + kt) % 8
            e.waitl("k%d_%d" % (st_, kt))
            c = "0" if st_ == 0 else v(V_S + 16 * kt, 16)
            e("v_mfma_f32_32x32x16_bf16 %s, %s, %s, %s", v(V_S + 16 * kt, 16), v(V_A + 4 * buf, 4), v(V_Q + 4 * st_, 4), c)
            if st_ < 4: kread(kt, st_ + 4, buf)
    e.waitv("V")
    e("s_barrier")
    e.stamp()
    def vreads(t, st_, buf):
        for j in range(2):
            e.ds("ds_read_b64_tr_b16 %s, %s offset:%d" % (v(V_A + 4 * buf + 2 * j, 2), v(V_RV + t), st_ * 4096 + j * 2048), "v%d_%d" % (st_, t))
    for st_ in range(2):
        for t in range(4): vreads(t, st_, 4 * st_ + t)
    wo45 = grp_wo(e, 4) + grp_wo(e, 5)
    S = V_S; M, M2, SUM, SUM2 = V_TM, V_TM + 1, V_TM + 2, V_TM + 4
    e("v_max3_f32 %s, %s, %s, %s", v(M), v(S), v(S + 1), v(S + 2))
    e("v_max3_f32 %s, %s, %s, %s", v(M2), v(S + 3), v(S + 4), v(S + 5))
    for i in range(6, 16, 4):
        e("v_max3_f32 %s, %s, %s, %s", v(M), v(M), v(S + i), v(S + i + 1))
        if i + 2 < 16: e("v_max3_f32 %s, %s, %s, %s", v(M2), v(M2), v(S + i + 2), v(S + i + 3))
    for f in wo45[:2]: f()
    for i in range(16, 32, 4):
        e("v_max3_f32 %s, %s, %s, %s", v(M), v(M), v(S + i), v(S + i + 1))
        e("v_max3_f32 %s, %s, %s, %s", v(M2), v(M2), v(S + i + 2), v(S + i + 3))
    e("v_max_f32 %s, %s, %s", v(M), v(M), v(M2))
    e("v_mov_b32 %s, %s", v(M2), v(M))
    e("s_mov_b32 %s, 0x%08x", s(S_T1), f32bits(SCALE_LOG2E))
    e("s_nop 0")
    e("v_permlane32_swap_b32 %s, %s", v(M), v(M2))
    e("s_nop 0")
    e("v_max_f32 %s, %s, %s", v(M), v(M), v(M2))
    e("v_mul_f32 %s, %s, %s", v(M), s(S_T1), v(M))
    rest = wo45[2:]
    for i in range(32):
        e("v_fma_f32 %s, %s, %s, -%s", v(S + i), v(S + i), s(S_T1), v(M))
    for i in range(32):
        e("v_exp_f32 %s, %s", v(S + i), v(S + i))
        if i % 4 == 3 and rest: rest.pop(0)()
    e("s_nop 0")
    e("v_add_f32 %s, %s, %s", v(SUM), v(S), v(S + 1))
    e("v_add_f32 %s, %s, %s", v(SUM + 1), v(S + 2), v(S + 3))
    e("v_add_f32 %s, %s, %s", v(SUM2), v(S + 4), v(S + 5))
    e("v_add_f32 %s, %s, %s", v(SUM2 + 1), v(S + 6), v(S + 7))
    for i in range(8, 32, 4):
        e("v_add_f32 %s, %s, %s", v(SUM), v(SUM), v(S + i))
        e("v_add_f32 %s, %s, %s", v(SUM + 1), v(SUM + 1), v(S + i + 1))
        e("v_add_f32 %s, %s, %s", v(SUM2), v(SUM2), v(S + i + 2))
        e("v_add_f32 %s, %s, %s", v(SUM2 + 1), v(SUM2 + 1), v(S + i + 3))
    e("v_add_f32 %s, %s, %s", v(SUM), v(SUM), v(SUM + 1))
    e("v_add_f32 %s, %s, %s", v(SUM2), v(SUM2), v(SUM2 + 1))
    e("v_add_f32 %s, %s, %s", v(SUM), v(SUM), v(SUM2))
    e("v_mov_b32 %s, %s", v(SUM2), v(SUM))
    e("s_nop 1")
    e("v_permlane32_swap_b32 %s, %s", v(SUM), v(SUM2))
    e("s_nop 0")
    e("v_add_f32 %s, %s, %s", v(SUM), v(SUM), v(SUM2))
    e("v_rcp_f32 %s, %s", v(SUM), v(SUM))
    e("s_nop 0")
    for i in range(32):
        e("v_mul_f32 %s, %s, %s", v(S + i), v(S + i), v(SUM))
    for f in range(4):
        for d in range(4):
            r0 = S + 8 * f + 2 * d
            e("v_cvt_pk_bf16_f32 %s, %s, %s", v(V_P + 4 * f + d), v(r0), v(r0 + 1))
    while rest: rest.pop(0)()
    e.stamp()
    e("s_nop 1")
    for st_ in range(4):
        for t in range(4):
            buf = (4 * st_ + t) % 8
            e.waitl("v%d_%d" % (st_, t))
            c = "0" if st_ == 0 else v(V_ACC + 16 * t, 16)
            e("v_mfma_f32_32x32x16_bf16 %s, %s, %s, %s", v(V_ACC + 16 * t, 16), v(V_A + 4 * buf, 4), v(V_P + 4 * st_, 4), c)
            if st_ < 2: vreads(t, st_ + 2, buf)
    e("v_readlane_b32 %s, %s, 0", s(S_N1), v(V_EP))
    e("v_readlane_b32 %s, %s, 1", s(S_N2), v(V_EP))
    e("s_lshl_b32 %s, %s, 13", s(S_T0), s(S_CS))
    e("s_add_u32 %s, %s, %s", s(S_T0), s(S_T0), s(S_OB))
    e("s_add_u32 %s, %s, 1", s(S_N1), s(S_N1))
    e("s_add_u32 %s, %s, 1", s(S_N2), s(S_N2))
    e("s_add_u32 %s, %s, 4096", s(S_T1), s(S_T0))
    e("s_nop 3")
    for t in range(4):
        if t == 3: e("s_nop 1")
        for u in range(2):
            for d in range(4):
                r0 = V_ACC + 16 * t + 8 * u + 2 * d
                e("v_cvt_pk_bf16_f32 %s, %s, %s", v(V_Q + 8 * t + 4 * u + d), v(r0), v(r0 + 1))
            f = 2 * t + u
            e("buffer_store_dwordx4 %s, %s, %s, %s offen offset:%d sc1", v(V_Q + 4 * f, 4), v(V_LIN), s(S_WS, 4), s(S_T0 if f < 4 else S_T1), (f % 4) * 1024)
            e.vm.issue("ost")
    e.stamp()

def p2_reads(lg_):
    b = lg_ & 1
    pg = (13 + lg_) % 32
    base, rel = (0, pg) if pg < 13 else ((1, pg - 13) if pg < 25 else (2, pg - 25))
    return ["ds_read_b64_tr_b16 %s, %s offset:%d" % (v(V2_A + 20 * b + 4 * nt + 2 * j, 2), v(V_RWO + base), rel * 5120 + 8 * j * 320 + 64 * nt)
            for nt in range(5) for j in range(2)]

def poll(e, label, vaddr, nonce, nlanes):
    e("s_mov_b64 exec, 0x%x", (1 << nlanes) - 1)
    e("s_mov_b32 %s, 0", s(S_SPIN))
    e.label(label)
    e("buffer_load_dword %s, %s, %s, 0 offen sc1", v(V_T + 8), v(vaddr), s(S_WS, 4))
    e("s_waitcnt vmcnt(0)")
    e("v_cmp_ne_u32 vcc, %s, %s", s(nonce), v(V_T + 8))
    e("s_add_u32 %s, %s, 1", s(S_SPIN), s(S_SPIN))
    e("s_cmp_ge_u32 %s, 0x%x", s(S_SPIN), 1 << 20)
    e("s_cbranch_scc1 %s_done", label)
    e("s_cbranch_vccnz %s", label)
    e.label(label + "_done")
    e("s_mov_b64 exec, -1")
    e.vm.issue("poll"); e.vm.ops = ["poll"]

def phase2(e):
    T = V_T; L = v(V_LANE)
    e.waitv("wo1")
    e("s_barrier")
    pending = grp_wo(e, 6) + grp_wo(e, 7)
    for r in p2_reads(0): e(r)
    e("s_lshr_b32 %s, %s, 15", s(S_T0), s(S_OB))
    e("s_lshl_b32 %s, %s, 9", s(S_T0), s(S_T0))
    e("s_add_u32 %s, %s, 0x%x", s(S_T0), s(S_T0), WS_F1)
    e("v_and_b32 %s, 3, %s", v(T), L)
    e("v_lshlrev_b32 %s, 7, %s", v(T), v(T))
    e("v_add_u32 %s, %s, %s", v(V_TM + 6), s(S_T0), v(T))
    e("s_lshl_b32 %s, %s, 7", s(S_T1), s(S_CS))
    e("s_add_u32 %s, %s, %s", s(S_T0), s(S_T0), s(S_T1))
    e("v_mov_b32 %s, %s", v(V_TM + 7), s(S_T0))
    e("v_mov_b32 %s, %s", v(V_TM + 8), s(S_N1))
    def kstep(ks, bsrc, nxt, first):
        b = ks & 1
        for nt in range(5):
            issued_new = min(len(nxt), [0, 3, 6, 8, 10][nt])
            e("s_waitcnt lgkmcnt(%d)", min(15, 2 * (4 - nt) + issued_new))
            c = "0" if first else v(V2_ACC + 16 * nt, 16)
            e("v_mfma_f32_32x32x16_bf16 %s, %s, %s, %s", v(V2_ACC + 16 * nt, 16), v(V2_A + 20 * b + 4 * nt, 4), bsrc, c)
            lo, hi = [(0, 3), (3, 6), (6, 8), (8, 10), (10, 10)][nt]
            for r in nxt[lo:hi]: e(r)
            if nt >= 3 and pending: pending.pop(0)()
    for ks in range(8):
        kstep(ks, v(V_Q + 4 * ks, 4), p2_reads(ks + 1) if ks < 7 else [], ks == 0)
    while pending: pending.pop(0)()
    e.stamp()
    e.waitv("ost")
    e("s_mov_b64 exec, 1")
    e("buffer_store_dword %s, %s, %s, 0 offen sc1", v(V_TM + 8), v(V_TM + 7), s(S_WS, 4)); e.vm.issue("f1")
    poll(e, "L_poll1", V_TM + 6, S_N1, 4)
    e.stamp()
    e("s_or_b32 %s, %s, %s", s(S_T0), s(S_CS), s(S_W))
    e("s_cmp_lg_u32 %s, 0", s(S_T0))
    e("s_cbranch_scc1 L_noe1")
    e("s_lshr_b32 %s, %s, 17", s(S_T0), s(S_OB))
    e("s_lshl_b32 %s, %s, 7", s(S_T0), s(S_T0))
    e("s_add_u32 %s, %s, 0x%x", s(S_T0), s(S_T0), WS_E1)
    e("v_mov_b32 %s, %s", v(T), s(S_T0))
    e("s_mov_b64 exec, 1")
    e("buffer_store_dword %s, %s, %s, 0 offen sc1", v(V_TM + 8), v(T), s(S_WS, 4))
    e("s_mov_b64 exec, -1")
    e.label("L_noe1")
    for j in range(1, 4):
        e("s_add_u32 %s, %s, %d", s(S_T0), s(S_CS), j)
        e("s_and_b32 %s, %s, 3", s(S_T0), s(S_T0))
        e("s_lshl_b32 %s, %s, 13", s(S_T0), s(S_T0))
        e("s_add_u32 %s, %s, %s", s(S_T0), s(S_T0), s(S_OB))
        e("s_add_u32 %s, %s, 4096", s(S_T1), s(S_T0))
        for f in range(8):
            n = 8 * (j - 1) + f
            e("buffer_load_dwordx4 %s, %s, %s, %s offen offset:%d sc1", a(4 * n, 4), v(V_LIN), s(S_WS, 4), s(S_T0 if f < 4 else S_T1), (f % 4) * 1024)
            e.vm.issue("o%d" % n)
    e("s_barrier")
    for r in p2_reads(8): e(r)
    for ks in range(8, 32):
        n = ks - 8
        e.waitv("o%d" % n)
        kstep(ks, a(4 * n, 4), p2_reads(ks + 1) if ks < 31 else [], False)
    e.stamp()

def partials(e):
    T = V_T; L = v(V_LANE)
    e("v_bfe_u32 %s, %s, 4, 1", v(T), L)
    e("v_mul_u32_u24 %s, %d, %s", v(T), 8 * 10 * 512, v(T))
    e("v_and_b32 %s, 15, %s", v(T + 1), L)
    e("v_lshrrev_b32 %s, 5, %s", v(T + 2), L)
    e("v_lshl_add_u32 %s, %s, 4, %s", v(T + 1), v(T + 2), v(T + 1))
    e("v_lshl_add_u32 %s, %s, 4, %s", v(T), v(T + 1), v(T))
    e("s_lshl_b32 %s, %s, 2", s(S_T0), s(S_RP))
    e("s_add_u32 %s, %s, %s", s(S_T0), s(S_T0), s(S_CS))
    e("s_lshl_b32 %s, %s, 3", s(S_PB), s(S_T0))
    e("s_lshl_b32 %s, %s, 1", s(S_T1), s(S_W))
    e("s_add_u32 %s, %s, %s", s(S_T1), s(S_PB), s(S_T1))
    e("s_lshl_b32 %s, %s, 3", s(S_T1), s(S_T1))
    e("s_add_u32 %s, %s, %s", s(S_T1), s(S_T1), s(S_HG))
    e("s_mul_i32 %s, %s, %d", s(S_T1), s(S_T1), 10 * 512)
    e("s_add_u32 %s, %s, 0x%x", s(S_T1), s(S_T1), WS_PART)
    e("s_add_u32 %s, %s, 4096", s(S_T2), s(S_T1))
    e("s_lshl_b32 %s, %s, 2", s(S_T0), s(S_T0))
    e("s_add_u32 %s, %s, %s", s(S_T3), s(S_T0), s(S_W))
    e("s_lshl_b32 %s, %s, 3", s(S_T3), s(S_T3))
    e("s_add_u32 %s, %s, %s", s(S_T3), s(S_T3), s(S_HG))
    e("s_lshl_b32 %s, %s, 7", s(S_T3), s(S_T3))
    e("s_add_u32 %s, %s, 0x%x", s(S_T3), s(S_T3), WS_F2)
    e("v_mov_b32 %s, %s", v(V_TM + 7), s(S_T3))
    e("s_lshr_b32 %s, %s, 1", s(S_T3), s(S_HG))
    e("s_add_u32 %s, %s, %s", s(S_T3), s(S_T0), s(S_T3))
    e("s_lshl_b32 %s, %s, 10", s(S_T3), s(S_T3))
    e("s_add_u32 %s, %s, 0x%x", s(S_T3), s(S_T3), WS_F2)
    e("v_and_b32 %s, 7, %s", v(T + 3), L)
    e("v_lshlrev_b32 %s, 7, %s", v(T + 3), v(T + 3))
    e("v_add_u32 %s, %s, %s", v(V_TM + 6), s(S_T3), v(T + 3))
    e("v_mov_b32 %s, %s", v(V_TM + 8), s(S_N2))
    for nt in range(5):
        for m in range(2):
            ch = 2 * nt + m
            for d in range(4):
                r0 = V2_ACC + 16 * nt + 8 * m + 2 * d
                e("v_cvt_pk_bf16_f32 %s, %s, %s", v(V_PK + 4 * ch + d), v(r0), v(r0 + 1))
            e("buffer_store_dwordx4 %s, %s, %s, %s offen offset:%d sc1", v(V_PK + 4 * ch, 4), v(T), s(S_WS, 4), s(S_T1 if ch < 8 else S_T2), (ch % 8) * 512)
            e.vm.issue("pst")
    e.waitv("pst")
    e.stamp()
    e("s_mov_b64 exec, 1")
    e("buffer_store_dword %s, %s, %s, 0 offen sc1", v(V_TM + 8), v(V_TM + 7), s(S_WS, 4)); e.vm.issue("f2")
    poll(e, "L_poll2", V_TM + 6, S_N2, 8)
    e.stamp()

def phase3(e):
    T = V_T; L = v(V_LANE)
    e("v_lshrrev_b32 %s, 5, %s", v(T), L)
    e("v_mul_u32_u24 %s, 5120, %s", v(T + 1), v(T))
    e("v_and_b32 %s, 31, %s", v(T + 2), L)
    e("v_lshl_add_u32 %s, %s, 4, %s", v(T + 1), v(T + 2), v(T + 1))
    e("s_add_u32 %s, %s, %s", s(S_T0), s(S_PB), s(S_HG))
    e("s_mul_i32 %s, %s, %d", s(S_T0), s(S_T0), 8 * 5120)
    e("s_add_u32 %s, %s, 0x%x", s(S_T0), s(S_T0), WS_PART)
    e("s_mul_i32 %s, %s, 3", s(S_T1), s(S_W))
    e("s_cmp_eq_u32 %s, 3", s(S_W))
    e("s_cselect_b32 %s, 8, %s", s(S_T1), s(S_T1))
    e("s_lshl_b32 %s, %s, 9", s(S_T2), s(S_T1))
    e("s_add_u32 %s, %s, %s", s(S_T0), s(S_T0), s(S_T2))
    R = 64
    for c in range(3):
        if c == 2:
            e("s_cmp_ge_u32 %s, 2", s(S_W))
            e("s_cbranch_scc1 L_p3_two")
        for i in range(4):
            e("s_add_u32 %s, %s, %d", s(S_OFF), s(S_T0), 2 * i * 5120 + c * 512)
            e("buffer_load_dwordx4 %s, %s, %s, %s offen sc1", v(R + 16 * c + 4 * i, 4), v(T + 1), s(S_WS, 4), s(S_OFF))
    e.label("L_p3_two")
    e("v_and_b32 %s, 15, %s", v(T + 3), L)
    e("v_mul_u32_u24 %s, 1280, %s", v(T + 3), v(T + 3))
    e("v_bfe_u32 %s, %s, 4, 1", v(T + 4), L)
    e("v_lshl_add_u32 %s, %s, 3, %s", v(T + 3), v(T + 4), v(T + 3))
    e("v_lshl_add_u32 %s, %s, 4, %s", v(T + 3), v(T), v(T + 3))
    e("s_lshl_b32 %s, %s, 3", s(S_T2), s(S_RP))
    e("s_add_u32 %s, %s, %s", s(S_T2), s(S_T2), s(S_HG))
    e("s_mul_i32 %s, %s, %d", s(S_T2), s(S_T2), 16 * 1280)
    e("s_mul_i32 %s, %s, 320", s(S_T3), s(S_CS))
    e("s_add_u32 %s, %s, %s", s(S_T2), s(S_T2), s(S_T3))
    e("s_lshl_b32 %s, %s, 5", s(S_T1), s(S_T1))
    e("s_add_u32 %s, %s, %s", s(S_T2), s(S_T2), s(S_T1))
    e("s_mov_b32 %s, 0x00003f80", s(S_T0))
    e("s_mov_b32 %s, 0x3f800000", s(S_T1))
    def reduce(c):
        r = R + 16 * c; acc = 128 + 8 * c
        for d in range(4):
            e("v_dot2_f32_bf16 %s, %s, %s, 0", v(acc + 2 * d), v(r + d), s(S_T0))
            e("v_dot2_f32_bf16 %s, %s, %s, 0", v(acc + 2 * d + 1), v(r + d), s(S_T1))
        for i in range(1, 4):
            for d in range(4):
                e("v_dot2_f32_bf16 %s, %s, %s, %s", v(acc + 2 * d), v(r + 4 * i + d), s(S_T0), v(acc + 2 * d))
                e("v_dot2_f32_bf16 %s, %s, %s, %s", v(acc + 2 * d + 1), v(r + 4 * i + d), s(S_T1), v(acc + 2 * d + 1))
        e("s_nop 3")
        for d in range(4): e("v_permlane32_swap_b32 %s, %s", v(acc + d), v(acc + 4 + d))
        e("s_nop 1")
        for d in range(4): e("v_add_f32 %s, %s, %s", v(acc + d), v(acc + d), v(acc + 4 + d))
        e("v_cvt_pk_bf16_f32 %s, %s, %s", v(acc), v(acc), v(acc + 1))
        e("v_cvt_pk_bf16_f32 %s, %s, %s", v(acc + 1), v(acc + 2), v(acc + 3))
        e("buffer_store_dwordx2 %s, %s, %s, %s offen offset:%d", v(acc, 2), v(T + 3), s(S_OUT, 4), s(S_T2), 32 * c)
    e("s_waitcnt vmcnt(0)")
    reduce(0); reduce(1)
    e("s_cmp_ge_u32 %s, 2", s(S_W))
    e("s_cbranch_scc1 L_p3_skip")
    reduce(2)
    e.label("L_p3_skip")
    e("s_or_b32 %s, %s, %s", s(S_T0), s(S_HG), s(S_W))
    e("s_cmp_lg_u32 %s, 0", s(S_T0))
    e("s_cbranch_scc1 L_noe2")
    e("s_lshl_b32 %s, %s, 4", s(S_T0), s(S_PB))
    e("s_add_u32 %s, %s, 0x%x", s(S_T0), s(S_T0), WS_E2)
    e("v_mov_b32 %s, %s", v(T), s(S_T0))
    e("s_mov_b64 exec, 1")
    e("buffer_store_dword %s, %s, %s, 0 offen sc1", v(V_TM + 8), v(T), s(S_WS, 4))
    e("s_mov_b64 exec, -1")
    e.label("L_noe2")
    e.stamp()

def dump_stamps(e):
    if not e.o.get("stamps"): return
    n = e.nst
    e("s_waitcnt lgkmcnt(0) vmcnt(0)")
    e("s_lshl_b32 %s, s2, 2", s(S_T0))
    e("s_add_u32 %s, %s, %s", s(S_T0), s(S_T0), s(S_W))
    e("s_lshl_b32 %s, %s, 7", s(S_T0), s(S_T0))
    e("s_add_u32 %s, %s, 0x%x", s(S_T0), s(S_T0), WS_STAMP)
    e("s_mov_b64 exec, 1")
    for i in range(n):
        e("v_mov_b32 v2, %s", s(S_STAMP + 2 * i))
        e("v_mov_b32 v3, %s", s(S_STAMP + 2 * i + 1))
        e("v_mov_b32 v4, %d", 8 * i)
        e("buffer_store_dwordx2 v[2:3], v4, %s, %s offen", s(S_WS, 4), s(S_T0))
        e("s_nop 1")

def build(opts):
    e = K(opts)
    e.raw("; @launch grid=(256,1,1) block=(256,1,1) lds=%d" % LDS_BYTES)
    e.raw('.amdgcn_target "amdgcn-amd-amdhsa--gfx950"')
    e.raw(".text")
    e.raw(".globl %s" % NAME)
    e.raw(".p2align 8")
    e.raw(".type %s,@function" % NAME)
    e.label(NAME)
    prologue(e)
    addr_gemm1_dma(e)
    gemm1(e)
    attention(e)
    phase2(e)
    partials(e)
    phase3(e)
    dump_stamps(e)
    e.label("L_end")
    e("s_endpgm")
    return e.text() + KD.format(name=NAME, vgpr=352, sgpr=100, acc=256), e.nst

if __name__ == "__main__":
    out = sys.argv[1]
    opts = {k: True for k in sys.argv[2:]}
    t, n = build(opts)
    open(out, "w").write(t)
    print("wrote", out, "stamps:", n, "lines:", t.count("\n"))
```

```python
import sys, struct
from asm import Emit, v, a, s, KD

NAME = "standalone__gqa_block_cached__near_ridge_kernel"
X_BYTES, W_BYTES, KV_BYTES, OUT_BYTES, WS_BYTES = 1310720, 5242880, 8388608, 1310720, 268435456
WS_O    = 0
WS_PART = 16 << 20
WS_E1   = 32 << 20
WS_E2   = WS_E1 + 64 * 128
WS_F1   = WS_E1 + (1 << 16)
WS_F2   = WS_E1 + (2 << 16) + (1 << 17)
WS_STAMP = 64 << 20
SCALE_LOG2E = (128 ** -0.5) * 1.4426950408889634
def f32bits(x): return struct.unpack("<I", struct.pack("<f", x))[0]

SLOT = 32768
L_K, L_V = 0, 32768
LDS_BYTES = 163840

S_X, S_WQ, S_K, S_V, S_WO, S_OUT, S_WS = 8, 12, 16, 20, 24, 28, 32
S_W, S_HG, S_RP, S_CS, S_H = 36, 37, 38, 39, 40
S_T0, S_T1, S_T2, S_T3 = 41, 42, 43, 44
S_WQ0, S_X0, S_KV0, S_LW, S_OFF, S_LW8 = 45, 46, 47, 48, 49, 50
S_WOB = 52
S_N1, S_N2 = 56, 57
S_OB, S_PB, S_SPIN = 58, 59, 60
S_SIG, S_TAU = 51, 61
S_EX = 62
S_STAMP = 64

V_LANE = 1
V_T = 2
V_DWQ, V_DX, V_DK, V_DV = 16, 20, 24, 28
V_EP = 29
V_LIN = 30
V_RK, V_RV = 32, 40
V_DWO = 44
V_RWO = 49
V_TM = 52
V_TCH, V_TCW = 62, 63
S_WOT = 96
S_OBR = 90
V_ACC, V_A, V_B, V_Q, V_S, V_P = 64, 128, 160, 168, 200, 232
V_RG = 200
V2_ACC, V2_A = 64, 200
V_PK = 200
V_RO = [168 + 4 * i for i in range(8)] + [144 + 4 * i for i in range(6)] + [240 + 4 * i for i in range(4)] + [16, 20, 24] + [32, 36, 40]

class Cnt:
    def __init__(self): self.ops = []
    def issue(self, tag): self.ops.append(tag)
    def after(self, tags):
        if isinstance(tags, str): tags = [tags]
        last = max(i for i, t in enumerate(self.ops) if t in tags)
        return len(self.ops) - 1 - last

class K(Emit):
    def __init__(self, opts):
        super().__init__()
        self.o = opts; self.vm = Cnt(); self.lg = Cnt(); self.nst = 0; self.nbar = 0
    def stamp(self, kind="main"):
        if not self.o.get("stamps"): return
        if self.o.get("g1st") and kind == "main" and self.nst >= 13: return
        if kind == "g1" and not self.o.get("g1st"): return
        if self.o.get("g1st") and kind == "late": return
        self("%s %s", "s_memtime" if self.o.get("cyc") else "s_memrealtime", s(S_STAMP + 2 * self.nst, 2)); self.nst += 1
    def waitv(self, tags, extra=""):
        n = self.vm.after(tags); assert n <= 63
        self("s_waitcnt vmcnt(%d)%s", n, extra)
    def waitl(self, tags):
        self("s_waitcnt lgkmcnt(%d)", min(15, self.lg.after(tags)))
    def ds(self, text, tag):
        self(text); self.lg.issue(tag)
    def dma(self, tag, vaddr, srd, soff_reg, imm):
        if (self.o.get("skipV") and srd == S_V) or (self.o.get("skipWO") and srd == S_WO) or (self.o.get("skipK") and srd == S_K):
            self.vm.issue(tag + "_skipped"); self.vm.ops[-1] = tag; self("buffer_load_dword %s, %s, %s, 0 offen", v(V_T + 12), v(V_LIN), s(S_X, 4)); return
        aux = "nt " if (self.o.get("nt") and srd in (S_K, S_V)) or (self.o.get("ntw") and srd in (S_WQ, S_WO)) else ""
        self("buffer_load_dwordx4 %s, %s, %s offen offset:%d %slds", v(vaddr), s(srd, 4), s(soff_reg), imm, aux)
        self.vm.issue(tag)
    def bar(self):
        self("s_barrier"); self.nbar += 1

def prologue(e):
    e("s_cmp_ge_u32 s2, 256")
    e("s_cbranch_scc1 L_end")
    for (srd, off) in ((S_X, 0), (S_WQ, 24), (S_WS, 56), (S_K, 8), (S_V, 16), (S_WO, 32), (S_OUT, 40)):
        e("s_load_dwordx2 %s, s[0:1], %d", s(srd, 2), off)
    e("v_and_b32 %s, 63, v0", v(V_LANE))
    e("v_lshrrev_b32 %s, 6, v0", v(V_T))
    e("s_and_b32 %s, s2, 7", s(S_HG))
    e("s_lshr_b32 %s, s2, 3", s(S_T0))
    e("v_readfirstlane_b32 %s, %s", s(S_W), v(V_T))
    e("s_lshr_b32 %s, %s, 2", s(S_RP), s(S_T0))
    e("s_and_b32 %s, %s, 3", s(S_CS), s(S_T0))
    e("s_lshl_b32 %s, %s, 2", s(S_H), s(S_HG))
    e("s_add_u32 %s, %s, %s", s(S_H), s(S_H), s(S_CS))
    for (srd, size) in ((S_X, X_BYTES), (S_K, KV_BYTES), (S_V, KV_BYTES), (S_WQ, W_BYTES), (S_WO, W_BYTES),
                        (S_OUT, OUT_BYTES), (S_WS, WS_BYTES)):
        e("s_mov_b32 %s, 0x%x", s(srd + 2), size)
        e("s_mov_b32 %s, 0x20000", s(srd + 3))

def addr_gemm1_dma(e):
    T = V_T; L = v(V_LANE)
    e("v_lshrrev_b32 %s, 4, %s", v(T), L)
    e("v_and_b32 %s, 15, %s", v(T + 1), L)
    e("v_lshlrev_b32 %s, 2, %s", v(T + 2), v(T))
    e("v_xor_b32 %s, %s, %s", v(T + 2), v(T + 1), v(T + 2))
    e("v_lshlrev_b32 %s, 4, %s", v(T + 2), v(T + 2))
    e("v_lshl_add_u32 %s, %s, 13, %s", v(V_DWQ), v(T), v(T + 2))
    e("v_lshl_add_u32 %s, %s, 8, %s", v(V_DV), v(T), v(T + 2))
    for i in range(1, 4): e("v_add_u32 %s, %d, %s", v(V_DWQ + i), i * 31744, v(V_DWQ))
    e("v_xor_b32 %s, %s, %s", v(T + 2), v(T + 1), v(T))
    e("v_lshlrev_b32 %s, 4, %s", v(T + 2), v(T + 2))
    e("v_lshl_add_u32 %s, %s, 8, %s", v(V_DK), v(T), v(T + 2))
    e("v_lshrrev_b32 %s, 3, %s", v(T + 3), L)
    e("v_and_b32 %s, 7, %s", v(T + 4), L)
    e("v_lshrrev_b32 %s, 1, %s", v(T + 5), v(T + 3))
    e("v_xor_b32 %s, %s, %s", v(T + 5), v(T + 4), v(T + 5))
    e("v_lshlrev_b32 %s, 4, %s", v(T + 5), v(T + 5))
    e("v_mul_u32_u24 %s, 1280, %s", v(T + 3), v(T + 3))
    e("v_add_u32 %s, %s, %s", v(V_DX), v(T + 3), v(T + 5))
    e("v_xor_b32 %s, 64, %s", v(T + 5), v(T + 5))
    e("v_add_u32 %s, %s, %s", v(T + 6), v(T + 3), v(T + 5))
    e("v_add_u32 %s, %d, %s", v(V_DX + 1), 9216, v(T + 6))
    e("v_add_u32 %s, %d, %s", v(V_DX + 2), 2 * 9216, v(V_DX))
    e("v_add_u32 %s, %d, %s", v(V_DX + 3), 3 * 9216, v(T + 6))
    for i in range(1, 4): e("v_xor_b32 %s, %d, %s", v(V_DK + i), 64 * i, v(V_DK))
    e("v_lshlrev_b32 %s, 4, %s", v(V_LIN), L)
    e("s_lshl_b32 %s, %s, 17", s(S_WQ0), s(S_W))
    e("s_lshl_b32 %s, %s, 8", s(S_T0), s(S_H))
    e("s_add_u32 %s, %s, %s", s(S_WQ0), s(S_WQ0), s(S_T0))
    e("s_lshl_b32 %s, %s, 2", s(S_T0), s(S_RP))
    e("s_add_u32 %s, %s, %s", s(S_T0), s(S_T0), s(S_W))
    e("s_mul_i32 %s, %s, %d", s(S_X0), s(S_T0), 32 * 1280)
    e("s_lshl_b32 %s, %s, 12", s(S_LW), s(S_W))
    e("s_lshl_b32 %s, %s, 13", s(S_LW8), s(S_W))
    if e.o.get("rot"):
        a_, b_ = [int(x) for x in str(e.o.get("rotab", "1,3")).split(",")]
        e("s_mul_i32 %s, %s, %d", s(S_SIG), s(S_CS), b_)
        e("s_mul_i32 %s, %s, %d", s(S_T0), s(S_RP), a_)
        e("s_add_u32 %s, %s, %s", s(S_SIG), s(S_SIG), s(S_T0))
        for _ in range(3):
            e("s_cmp_ge_u32 %s, 10", s(S_SIG))
            e("s_cselect_b32 %s, 10, 0", s(S_T0))
            e("s_sub_u32 %s, %s, %s", s(S_SIG), s(S_SIG), s(S_T0))
    e("s_lshl_b32 %s, %s, 3", s(S_T0), s(S_RP))
    e("s_add_u32 %s, %s, %s", s(S_T0), s(S_T0), s(S_HG))
    e("s_lshl_b32 %s, %s, 7", s(S_T0), s(S_T0))
    e("s_add_u32 %s, %s, 0x%x", s(S_T0), s(S_T0), WS_E1)
    e("s_lshl_b32 %s, %s, 2", s(S_T1), s(S_RP))
    e("s_add_u32 %s, %s, %s", s(S_T1), s(S_T1), s(S_CS))
    e("s_lshl_b32 %s, %s, 7", s(S_T1), s(S_T1))
    e("s_add_u32 %s, %s, 0x%x", s(S_T1), s(S_T1), WS_E2)
    e("v_mov_b32 %s, %s", v(T), s(S_T0))
    e("v_mov_b32 %s, %s", v(T + 1), s(S_T1))
    e("v_cmp_eq_u32 vcc, 1, %s", L)
    e("s_nop 1")
    e("v_cndmask_b32 %s, %s, %s, vcc", v(V_TM), v(T), v(T + 1))

def addr_rest(e):
    T = V_T; L = v(V_LANE)
    HF, C32, NH, R, C, U, W2 = T, T + 1, T + 2, T + 3, T + 4, T + 5, T + 6
    e("v_lshrrev_b32 %s, 5, %s", v(HF), L)
    e("v_and_b32 %s, 31, %s", v(C32), L)
    e("v_bfe_u32 %s, %s, 4, 1", v(NH), L)
    e("v_bfe_u32 %s, %s, 2, 2", v(R), L)
    e("v_and_b32 %s, 3, %s", v(C), L)
    e("v_lshl_add_u32 %s, %s, 3, %s", v(U), v(HF), v(R))
    e("v_lshlrev_b32 %s, 8, %s", v(U), v(U))
    e("v_lshl_add_u32 %s, %s, 5, %s", v(U), v(NH), v(U))
    e("v_and_b32 %s, 1, %s", v(W2), v(C))
    e("v_lshl_add_u32 %s, %s, 4, %s", v(U), v(W2), v(U))
    e("v_lshrrev_b32 %s, 1, %s", v(W2), v(C))
    e("v_lshl_add_u32 %s, %s, 3, %s", v(U), v(W2), v(U))
    e("v_lshl_add_u32 %s, %s, 6, %s", v(V_RG), v(R), v(U))
    for t in range(1, 4): e("v_xor_b32 %s, %d, %s", v(V_RG + t), 64 * t, v(V_RG))
    e("v_bfe_u32 %s, %s, 1, 3", v(U), v(C32))
    e("v_xor_b32 %s, %s, %s", v(U), v(U), v(HF))
    e("v_lshlrev_b32 %s, 4, %s", v(U), v(U))
    e("v_lshl_add_u32 %s, %s, 7, %s", v(U), v(C32), v(U))
    e("s_add_u32 %s, %s, 16384", s(S_T1), s(S_LW))
    e("v_add_u32 %s, %s, %s", v(V_RG + 4), s(S_T1), v(U))
    for u in range(1, 4): e("v_xor_b32 %s, %d, %s", v(V_RG + 4 + u), 32 * u, v(V_RG + 4))
    for b in range(1, 3):
        for i in range(8): e("v_add_u32 %s, 0x%x, %s", v(V_RG + 8 * b + i), 65536 * b, v(V_RG + i))
    e("s_lshr_b32 %s, %s, 1", s(S_T0), s(S_W))
    e("s_lshl_b32 %s, %s, 14", s(S_T0), s(S_T0))
    e("v_lshl_add_u32 %s, %s, 2, %s", v(U), v(HF), v(R))
    e("v_lshlrev_b32 %s, 8, %s", v(W2), v(U))
    e("v_lshl_add_u32 %s, %s, 5, %s", v(W2), v(NH), v(W2))
    e("v_lshl_add_u32 %s, %s, 3, %s", v(W2), v(C), v(W2))
    e("v_lshl_add_u32 %s, %s, 6, %s", v(W2), v(R), v(W2))
    e("s_add_u32 %s, %s, %d", s(S_T1), s(S_T0), L_V)
    e("v_add_u32 %s, %s, %s", v(V_RV), s(S_T1), v(W2))
    for t in range(1, 4): e("v_xor_b32 %s, %d, %s", v(V_RV + t), 64 * t, v(V_RV))
    e("v_mul_u32_u24 %s, 320, %s", v(U), v(U))
    e("v_lshl_add_u32 %s, %s, 5, %s", v(U), v(NH), v(U))
    e("v_lshl_add_u32 %s, %s, 3, %s", v(V_RWO), v(C), v(U))
    e("v_add_u32 %s, %d, %s", v(V_RWO + 1), 13 * 5120, v(V_RWO))
    e("v_add_u32 %s, %d, %s", v(V_RWO + 2), 25 * 5120, v(V_RWO))
    e("v_and_b32 %s, 15, %s", v(U), v(C32))
    e("v_xor_b32 %s, %s, %s", v(U), v(U), v(HF))
    e("v_lshlrev_b32 %s, 4, %s", v(U), v(U))
    e("v_lshl_add_u32 %s, %s, 8, %s", v(U), v(C32), v(U))
    e("v_add_u32 %s, %s, %s", v(V_RK), s(S_T0), v(U))
    for st in range(1, 8): e("v_xor_b32 %s, %d, %s", v(V_RK + st), 32 * st, v(V_RK))
    for i in range(5):
        e("v_add_u32 %s, %d, %s", v(T), 64 * i, L)
        e("v_mul_u32_u24 %s, %d, %s", v(T + 1), 3277, v(T))
        e("v_lshrrev_b32 %s, 16, %s", v(T + 1), v(T + 1))
        e("v_mul_u32_u24 %s, 20, %s", v(T + 2), v(T + 1))
        e("v_sub_u32 %s, %s, %s", v(T + 2), v(T), v(T + 2))
        e("v_mul_u32_u24 %s, 1280, %s", v(T + 1), v(T + 1))
        e("v_lshl_add_u32 %s, %s, 4, %s", v(V_DWO + i), v(T + 2), v(T + 1))
        if i & 3: e("v_subrev_u32 %s, %d, %s", v(V_DWO + i), (i & 3) * 1024, v(V_DWO + i))
    e("s_lshr_b32 %s, %s, 1", s(S_T0), s(S_W))
    e("s_lshl_b32 %s, %s, 1", s(S_T1), s(S_RP))
    e("s_add_u32 %s, %s, %s", s(S_T0), s(S_T0), s(S_T1))
    e("s_lshl_b32 %s, %s, 5", s(S_T0), s(S_T0))
    e("s_add_u32 %s, %s, %s", s(S_T0), s(S_T0), s(S_H))
    e("s_lshl_b32 %s, %s, 14", s(S_KV0), s(S_T0))
    e("s_and_b32 %s, %s, 1", s(S_T0), s(S_W))
    e("s_lshl_b32 %s, %s, 13", s(S_T0), s(S_T0))
    e("s_add_u32 %s, %s, %s", s(S_KV0), s(S_KV0), s(S_T0))
    e("s_mul_i32 %s, %s, 320", s(S_T2), s(S_CS))
    e("s_mul_i32 %s, %s, %d", s(S_T3), s(S_W), 16 * 1280)
    e("s_add_u32 %s, %s, %s", s(S_T2), s(S_T2), s(S_T3))
    e("s_mul_i32 %s, %s, %d", s(S_T3), s(S_HG), 512 * 1280)
    e("s_add_u32 %s, %s, %s", s(S_T2), s(S_T2), s(S_T3))
    for j in range(4):
        e("s_add_u32 %s, %s, %d", s(S_T0), s(S_CS), j)
        e("s_and_b32 %s, %s, 3", s(S_T0), s(S_T0))
        e("s_mul_i32 %s, %s, %d", s(S_T0), s(S_T0), 128 * 1280)
        e("s_add_u32 %s, %s, %s", s(S_WOB + j), s(S_T0), s(S_T2))
    e("v_lshlrev_b32 %s, 7, %s", v(V_TCH), L)
    e("v_min_u32 %s, 39, %s", v(V_TCW), L)
    e("v_lshlrev_b32 %s, 7, %s", v(V_TCW), v(V_TCW))
    e("s_lshr_b32 %s, s2, 3", s(S_T0))
    e("s_lshl_b32 %s, %s, 2", s(S_T0), s(S_T0))
    e("s_add_u32 %s, %s, %s", s(S_T0), s(S_T0), s(S_W))
    e("s_lshl_b32 %s, %s, 2", s(S_T0), s(S_T0))
    e("s_lshl_b32 %s, %s, 9", s(S_T1), s(S_HG))
    e("s_add_u32 %s, %s, %s", s(S_T0), s(S_T0), s(S_T1))
    e("s_mul_i32 %s, %s, 1280", s(S_WOT), s(S_T0))
    e("s_lshl_b32 %s, %s, 3", s(S_T0), s(S_RP))
    e("s_add_u32 %s, %s, %s", s(S_T0), s(S_T0), s(S_HG))
    e("s_lshl_b32 %s, %s, 2", s(S_T0), s(S_T0))
    e("s_add_u32 %s, %s, %s", s(S_T0), s(S_T0), s(S_W))
    e("s_lshl_b32 %s, %s, 15", s(S_OB), s(S_T0))

def grp_stage(e, st):
    slot = st % 5
    rot = e.o.get("rot")
    def wq(i):
        def f():
            if i == 0:
                e("s_add_u32 m0, %s, %d", s(S_LW), slot * SLOT)
                if rot:
                    e("s_lshl_b32 %s, %s, 19", s(S_OFF), s(S_SIG))
                    e("s_add_u32 %s, %s, %s", s(S_OFF), s(S_OFF), s(S_WQ0))
                else:
                    e("s_add_u32 %s, %s, %d", s(S_OFF), s(S_WQ0), st * 64 * 8192)
            e.dma("st%d" % st, V_DWQ + i, S_WQ, S_OFF, i * 1024)
        return f
    def xx(i):
        def f():
            if i == 0:
                e("s_add_u32 m0, %s, %d", s(S_LW), slot * SLOT + 16384)
                if rot:
                    e("s_lshl_b32 %s, %s, 7", s(S_OFF), s(S_SIG))
                    e("s_add_u32 %s, %s, %s", s(S_OFF), s(S_OFF), s(S_X0))
                else:
                    e("s_add_u32 %s, %s, %d", s(S_OFF), s(S_X0), st * 128)
            e.dma("st%d" % st, V_DX + i, S_X, S_OFF, i * 1024)
            if i == 3 and rot:
                e("s_add_u32 %s, %s, 1", s(S_SIG), s(S_SIG))
                e("s_cmp_eq_u32 %s, 10", s(S_SIG))
                e("s_cselect_b32 %s, 0, %s", s(S_SIG), s(S_SIG))
        return f
    return [wq(i) for i in range(4)] + [xx(i) for i in range(4)]

def grp_kv(e, which):
    srd, base, tag = (S_K, L_K, "K") if which == "K" else (S_V, L_V, "V")
    def f(i):
        def g():
            if i % 4 == 0:
                e("s_add_u32 m0, %s, %d", s(S_LW8), base + (i // 4) * 4096)
                e("s_add_u32 %s, %s, %d", s(S_OFF), s(S_KV0), (i // 4) * 4096)
            e.dma(tag, (V_DK + (i & 3)) if which == "K" else V_DV, srd, S_OFF, (i & 3) * 1024)
        return g
    return [f(i) for i in range(8)]

def grp_wo(e, st):
    def f(i):
        def g():
            if i == 0:
                e("s_add_u32 %s, %s, %d", s(S_T0), s(S_W), 13 + 4 * st)
                e("s_and_b32 %s, %s, 31", s(S_T0), s(S_T0))
                e("s_mul_i32 %s, %s, 5120", s(S_T0), s(S_T0))
                e("s_mov_b32 m0, %s", s(S_T0))
                e("s_add_u32 %s, %s, %d", s(S_OFF), s(S_WOB + (st >> 1)), (st & 1) * 4 * 16 * 1280)
            if i == 4:
                e("s_add_u32 m0, %s, 4096", s(S_T0))
                e("s_nop 0")
            e.dma("wo%d" % st, V_DWO + i, S_WO, S_OFF, (i & 3) * 1024)
        return g
    return [f(i) for i in range(5)]

def g1_reads(ks):
    st, s4, b = ks >> 2, ks & 3, ks & 1
    slot = st % 5
    base, rel = V_RG + 8 * (slot // 2), (slot % 2) * SLOT
    r = ["ds_read_b128 %s, %s offset:%d" % (v(V_B + 4 * b, 4), v(base + 4 + s4), rel)]
    for t in range(4):
        for j in range(2):
            r.append("ds_read_b64_tr_b16 %s, %s offset:%d" % (v(V_A + 16 * b + 4 * t + 2 * j, 2), v(base + t), rel + s4 * 4096 + j * 1024))
    return r

def grp_touch(e, which):
    nt = "nt" if e.o.get("nt") else ""
    def f():
        if which == "V": e("buffer_load_dword %s, %s, %s, %s offen %s", v(V_T + 12), v(V_TCH), s(S_V, 4), s(S_KV0), nt)
        else: e("buffer_load_dword %s, %s, %s, %s offen %s", v(V_T + 12), v(V_TCW), s(S_WO, 4), s(S_WOT), nt)
        e.vm.issue(which + "t")
    return [f]

def pop(q, n):
    for _ in range(n):
        if q: q.pop(0)()

def gemm1(e):
    o = e.o
    e("s_waitcnt lgkmcnt(0)")
    e.stamp()
    e("buffer_load_dword %s, %s, %s, 0 offen sc1", v(V_EP), v(V_TM), s(S_WS, 4)); e.vm.issue("ep")
    for st in range(2):
        for f in grp_stage(e, st): f()
    addr_rest(e)
    e.waitv("st0")
    e.bar()
    e.stamp()
    for r in g1_reads(0): e(r)
    plan = {b: grp_stage(e, b + 3) for b in range(-1, 7)}
    plan[7] = grp_kv(e, "K") + (grp_touch(e, "V") if o.get("vt") else [])
    plan[8] = grp_kv(e, "V") + (grp_touch(e, "wo") if o.get("wot") else [])
    plan[9] = grp_wo(e, 0) + grp_wo(e, 1) + (grp_touch(e, "wo") if o.get("wot2") else [])
    pending = list(plan[-1])
    NK = 40
    for ks in range(NK):
        st, s4, b = ks >> 2, ks & 3, ks & 1
        last = ks == NK - 1
        boundary = (s4 == 3)
        nxt = g1_reads(ks + 1) if not last else []
        if boundary:
            e.waitv("st%d" % (st + 1) if not last else "K", " lgkmcnt(0)")
            e.bar()
            e.stamp("g1")
            pending += plan[st]
        if last:
            nxt = [kread_text(kt, st_, 2 * st_ + kt) for st_ in range(2) for kt in range(2)]
        left = 3 - ((ks + 1) & 3) + 1 if ks >= 3 else 3 - ks
        want = 0 if last else -(-len(pending) // max(1, left))
        slots = {1: (1,), 2: (1, 3), 3: (1, 2, 3)}.get(min(want, 3), ())
        for t in range(4):
            if not boundary: e("s_waitcnt lgkmcnt(%d)", [6, 7, 8, 9][t])
            c = "0" if ks == 0 else v(V_ACC + 16 * t, 16)
            e("v_mfma_f32_32x32x16_bf16 %s, %s, %s, %s", v(V_ACC + 16 * t, 16), v(V_A + 16 * b + 4 * t, 4), v(V_B + 4 * b, 4), c)
            if t < 3:
                for r in nxt[3 * t:3 * t + 3]: e(r)
            if t in slots: pop(pending, 1)
    e.pending = pending
    e.stamp()

def kread_text(kt, st_, buf):
    return "ds_read_b128 %s, %s offset:%d" % (v(V_A + 4 * buf, 4), v(V_RK + st_), L_K + kt * 8192)

def attention(e):
    lg = e.lg; pending = e.pending
    for st_ in range(2):
        for kt in range(2): lg.issue("k%d_%d" % (st_, kt))
    def kread(kt, st_, buf): e.ds(kread_text(kt, st_, buf), "k%d_%d" % (st_, kt))
    def qcvt(t):
        for u in range(2):
            for d in range(4):
                r0 = V_ACC + 16 * t + 8 * u + 2 * d
                e("v_cvt_pk_bf16_f32 %s, %s, %s", v(V_Q + 8 * t + 4 * u + d), v(r0), v(r0 + 1))
    for st_ in range(2, 4):
        for kt in range(2): kread(kt, st_, 2 * st_ + kt)
    e("s_nop 4")
    qcvt(0); qcvt(1); qcvt(2)
    e("s_nop 1")
    for st_ in range(8):
        if st_ == 2: qcvt(3); e("s_nop 0")
        for kt in range(2):
            buf = (2 * st_ + kt) % 8
            e.waitl("k%d_%d" % (st_, kt))
            c = "0" if st_ == 0 else v(V_S + 16 * kt, 16)
            e("v_mfma_f32_32x32x16_bf16 %s, %s, %s, %s", v(V_S + 16 * kt, 16), v(V_A + 4 * buf, 4), v(V_Q + 4 * st_, 4), c)
            if st_ < 4: kread(kt, st_ + 4, buf)
            if pending: pending.pop(0)()
    e.waitv("V")
    e.bar()
    e.stamp()
    def vreads(t, st_, buf):
        for j in range(2):
            e.ds("ds_read_b64_tr_b16 %s, %s offset:%d" % (v(V_A + 4 * buf + 2 * j, 2), v(V_RV + t), st_ * 4096 + j * 2048), "v%d_%d" % (st_, t))
    for st_ in range(2):
        for t in range(4): vreads(t, st_, 4 * st_ + t)
    assert not pending
    S = V_S; M, M2, SUM, SUM2 = V_TM, V_TM + 1, V_TM + 2, V_TM + 4
    e("v_max3_f32 %s, %s, %s, %s", v(M), v(S), v(S + 1), v(S + 2))
    e("v_max3_f32 %s, %s, %s, %s", v(M2), v(S + 3), v(S + 4), v(S + 5))
    for i in range(6, 16, 4):
        e("v_max3_f32 %s, %s, %s, %s", v(M), v(M), v(S + i), v(S + i + 1))
        if i + 2 < 16: e("v_max3_f32 %s, %s, %s, %s", v(M2), v(M2), v(S + i + 2), v(S + i + 3))
    for i in range(16, 32, 4):
        e("v_max3_f32 %s, %s, %s, %s", v(M), v(M), v(S + i), v(S + i + 1))
        e("v_max3_f32 %s, %s, %s, %s", v(M2), v(M2), v(S + i + 2), v(S + i + 3))
    e("v_max_f32 %s, %s, %s", v(M), v(M), v(M2))
    e("v_mov_b32 %s, %s", v(M2), v(M))
    e("s_mov_b32 %s, 0x%08x", s(S_T1), f32bits(SCALE_LOG2E))
    e("s_nop 0")
    e("v_permlane32_swap_b32 %s, %s", v(M), v(M2))
    e("s_nop 0")
    e("v_max_f32 %s, %s, %s", v(M), v(M), v(M2))
    e("v_mul_f32 %s, %s, %s", v(M), s(S_T1), v(M))
    for i in range(32):
        e("v_fma_f32 %s, %s, %s, -%s", v(S + i), v(S + i), s(S_T1), v(M))
    for i in range(32):
        e("v_exp_f32 %s, %s", v(S + i), v(S + i))
    e("s_nop 0")
    e("v_add_f32 %s, %s, %s", v(SUM), v(S), v(S + 1))
    e("v_add_f32 %s, %s, %s", v(SUM + 1), v(S + 2), v(S + 3))
    e("v_add_f32 %s, %s, %s", v(SUM2), v(S + 4), v(S + 5))
    e("v_add_f32 %s, %s, %s", v(SUM2 + 1), v(S + 6), v(S + 7))
    for i in range(8, 32, 4):
        e("v_add_f32 %s, %s, %s", v(SUM), v(SUM), v(S + i))
        e("v_add_f32 %s, %s, %s", v(SUM + 1), v(SUM + 1), v(S + i + 1))
        e("v_add_f32 %s, %s, %s", v(SUM2), v(SUM2), v(S + i + 2))
        e("v_add_f32 %s, %s, %s", v(SUM2 + 1), v(SUM2 + 1), v(S + i + 3))
    e("v_add_f32 %s, %s, %s", v(SUM), v(SUM), v(SUM + 1))
    e("v_add_f32 %s, %s, %s", v(SUM2), v(SUM2), v(SUM2 + 1))
    e("v_add_f32 %s, %s, %s", v(SUM), v(SUM), v(SUM2))
    e("v_mov_b32 %s, %s", v(SUM2), v(SUM))
    e("s_nop 1")
    e("v_permlane32_swap_b32 %s, %s", v(SUM), v(SUM2))
    e("s_nop 0")
    e("v_add_f32 %s, %s, %s", v(SUM), v(SUM), v(SUM2))
    e("v_rcp_f32 %s, %s", v(SUM), v(SUM))
    e("s_nop 0")
    for i in range(32):
        e("v_mul_f32 %s, %s, %s", v(S + i), v(S + i), v(SUM))
    for f in range(4):
        for d in range(4):
            r0 = S + 8 * f + 2 * d
            e("v_cvt_pk_bf16_f32 %s, %s, %s", v(V_P + 4 * f + d), v(r0), v(r0 + 1))
    e.stamp()
    e("s_nop 1")
    for st_ in range(4):
        for t in range(4):
            buf = (4 * st_ + t) % 8
            e.waitl("v%d_%d" % (st_, t))
            c = "0" if st_ == 0 else v(V_ACC + 16 * t, 16)
            e("v_mfma_f32_32x32x16_bf16 %s, %s, %s, %s", v(V_ACC + 16 * t, 16), v(V_A + 4 * buf, 4), v(V_P + 4 * st_, 4), c)
            if st_ < 2: vreads(t, st_ + 2, buf)
    e("v_readlane_b32 %s, %s, 0", s(S_N1), v(V_EP))
    e("v_readlane_b32 %s, %s, 1", s(S_N2), v(V_EP))
    e("s_lshl_b32 %s, %s, 13", s(S_T0), s(S_CS))
    e("s_add_u32 %s, %s, %s", s(S_T0), s(S_T0), s(S_OB))
    e("s_add_u32 %s, %s, 1", s(S_N1), s(S_N1))
    e("s_add_u32 %s, %s, 1", s(S_N2), s(S_N2))
    e("s_add_u32 %s, %s, 4096", s(S_T1), s(S_T0))
    e("s_nop 3")
    for t in range(4):
        if t == 3: e("s_nop 1")
        for u in range(2):
            for d in range(4):
                r0 = V_ACC + 16 * t + 8 * u + 2 * d
                e("v_cvt_pk_bf16_f32 %s, %s, %s", v(V_Q + 8 * t + 4 * u + d), v(r0), v(r0 + 1))
            f = 2 * t + u
            e("buffer_store_dwordx4 %s, %s, %s, %s offen offset:%d sc1", v(V_Q + 4 * f, 4), v(V_LIN), s(S_WS, 4), s(S_T0 if f < 4 else S_T1), (f % 4) * 1024)
            e.vm.issue("ost")
    e.stamp()

def p2_reads(lg_):
    b = lg_ & 1
    pg = (13 + lg_) % 32
    base, rel = (0, pg) if pg < 13 else ((1, pg - 13) if pg < 25 else (2, pg - 25))
    return ["ds_read_b64_tr_b16 %s, %s offset:%d" % (v(V2_A + 20 * b + 4 * nt + 2 * j, 2), v(V_RWO + base), rel * 5120 + 8 * j * 320 + 64 * nt)
            for nt in range(5) for j in range(2)]

def poll(e, label, vaddr, nonce, nlanes):
    e("s_mov_b64 exec, 0x%x", (1 << nlanes) - 1)
    e("s_mov_b32 %s, 0", s(S_SPIN))
    e.label(label)
    e("buffer_load_dword %s, %s, %s, 0 offen sc1", v(V_T + 8), v(vaddr), s(S_WS, 4))
    e("s_waitcnt vmcnt(0)")
    e("v_cmp_ne_u32 vcc, %s, %s", s(nonce), v(V_T + 8))
    e("s_add_u32 %s, %s, 1", s(S_SPIN), s(S_SPIN))
    e("s_cmp_ge_u32 %s, 0x%x", s(S_SPIN), 1 << 20)
    e("s_cbranch_scc1 %s_done", label)
    e("s_cbranch_vccnz %s", label)
    e.label(label + "_done")
    e("s_mov_b64 exec, -1")
    e.vm.issue("poll"); e.vm.ops = ["poll"]

def phase2(e):
    T = V_T; L = v(V_LANE)
    e.waitv("wo1")
    e.bar()
    for r in p2_reads(0): e(r)
    e("s_lshr_b32 %s, %s, 15", s(S_T2), s(S_OB))
    e("s_lshl_b32 %s, %s, 9", s(S_T2), s(S_T2))
    e("s_add_u32 %s, %s, 0x%x", s(S_T2), s(S_T2), WS_F1)
    e("v_and_b32 %s, 3, %s", v(T), L)
    e("v_lshlrev_b32 %s, 7, %s", v(T), v(T))
    e("v_add_u32 %s, %s, %s", v(V_TM + 6), s(S_T2), v(T))
    e("s_lshl_b32 %s, %s, 7", s(S_T1), s(S_CS))
    e("s_add_u32 %s, %s, %s", s(S_T2), s(S_T2), s(S_T1))
    e("v_mov_b32 %s, %s", v(V_TM + 7), s(S_T2))
    e("v_mov_b32 %s, %s", v(V_TM + 8), s(S_N1))
    early = e.o.get("woearly")
    pending = grp_wo(e, 2) + grp_wo(e, 3) + ([] if early else grp_wo(e, 4))
    def kstep(ks, bsrc, nxt, first):
        b = ks & 1
        for nt in range(5):
            issued_new = min(len(nxt), [0, 3, 6, 8, 10][nt])
            e("s_waitcnt lgkmcnt(%d)", min(15, 2 * (4 - nt) + issued_new))
            c = "0" if first else v(V2_ACC + 16 * nt, 16)
            e("v_mfma_f32_32x32x16_bf16 %s, %s, %s, %s", v(V2_ACC + 16 * nt, 16), v(V2_A + 20 * b + 4 * nt, 4), bsrc, c)
            lo, hi = [(0, 3), (3, 6), (6, 8), (8, 10), (10, 10)][nt]
            for r in nxt[lo:hi]: e(r)
            if nt >= 3: pop(pending, 1)
    for ks in range(8):
        kstep(ks, v(V_Q + 4 * ks, 4), p2_reads(ks + 1) if ks < 7 else [], ks == 0)
    assert not pending
    e.stamp()
    e.waitv("ost")
    e("s_mov_b64 exec, 1")
    e("buffer_store_dword %s, %s, %s, 0 offen sc1", v(V_TM + 8), v(V_TM + 7), s(S_WS, 4)); e.vm.issue("f1")
    if early:
        e("s_mov_b64 exec, -1")
        for st_ in range(4, 8): pop(grp_wo(e, st_), 5)
    poll(e, "L_poll1", V_TM + 6, S_N1, 4)
    e.stamp()
    e("s_or_b32 %s, %s, %s", s(S_T0), s(S_CS), s(S_W))
    e("s_cmp_lg_u32 %s, 0", s(S_T0))
    e("s_cbranch_scc1 L_noe1")
    e("s_lshr_b32 %s, %s, 17", s(S_T0), s(S_OB))
    e("s_lshl_b32 %s, %s, 7", s(S_T0), s(S_T0))
    e("s_add_u32 %s, %s, 0x%x", s(S_T0), s(S_T0), WS_E1)
    e("v_mov_b32 %s, %s", v(T), s(S_T0))
    e("s_mov_b64 exec, 1")
    e("buffer_store_dword %s, %s, %s, 0 offen sc1", v(V_TM + 8), v(T), s(S_WS, 4))
    e("s_mov_b64 exec, -1")
    e.label("L_noe1")
    for j in range(1, 4):
        e("s_add_u32 %s, %s, %d", s(S_T0), s(S_CS), j)
        e("s_and_b32 %s, %s, 3", s(S_T0), s(S_T0))
        e("s_lshl_b32 %s, %s, 13", s(S_T0), s(S_T0))
        e("s_add_u32 %s, %s, %s", s(S_OBR + 2 * (j - 1)), s(S_T0), s(S_OB))
        e("s_add_u32 %s, %s, 4096", s(S_OBR + 2 * (j - 1) + 1), s(S_OBR + 2 * (j - 1)))
    def oload(j):
        def g(f):
            def h():
                n = 8 * (j - 1) + f
                e("buffer_load_dwordx4 %s, %s, %s, %s offen offset:%d sc1", v(V_RO[n], 4), v(V_LIN), s(S_WS, 4), s(S_OBR + 2 * (j - 1) + (f >> 2)), (f % 4) * 1024)
                e.vm.issue("o%d" % n)
            return h
        return [g(f) for f in range(8)]
    pop(oload(1), 8)
    e.bar()
    pending += (oload(2) + oload(3)) if early else (grp_wo(e, 5) + oload(2) + grp_wo(e, 6) + oload(3) + grp_wo(e, 7))
    for r in p2_reads(8): e(r)
    for ks in range(8, 32):
        n = ks - 8
        if ks in (19, 23, 27) and not early:
            e.waitv(["wo%d" % (5 + (ks - 19) // 4), "o%d" % n])
            e.bar()
        else:
            e.waitv("o%d" % n)
        kstep(ks, v(V_RO[n], 4), p2_reads(ks + 1) if ks < 31 else [], False)
    assert not pending
    e.stamp()

def partials(e):
    T = V_T; L = v(V_LANE)
    e("v_bfe_u32 %s, %s, 4, 1", v(T), L)
    e("v_mul_u32_u24 %s, %d, %s", v(T), 8 * 10 * 512, v(T))
    e("v_and_b32 %s, 15, %s", v(T + 1), L)
    e("v_lshrrev_b32 %s, 5, %s", v(T + 2), L)
    e("v_lshl_add_u32 %s, %s, 4, %s", v(T + 1), v(T + 2), v(T + 1))
    e("v_lshl_add_u32 %s, %s, 4, %s", v(T), v(T + 1), v(T))
    e("s_lshl_b32 %s, %s, 2", s(S_T0), s(S_RP))
    e("s_add_u32 %s, %s, %s", s(S_T0), s(S_T0), s(S_CS))
    e("s_lshl_b32 %s, %s, 3", s(S_PB), s(S_T0))
    e("s_lshl_b32 %s, %s, 1", s(S_T1), s(S_W))
    e("s_add_u32 %s, %s, %s", s(S_T1), s(S_PB), s(S_T1))
    e("s_lshl_b32 %s, %s, 3", s(S_T1), s(S_T1))
    e("s_add_u32 %s, %s, %s", s(S_T1), s(S_T1), s(S_HG))
    e("s_mul_i32 %s, %s, %d", s(S_T1), s(S_T1), 10 * 512)
    e("s_add_u32 %s, %s, 0x%x", s(S_T1), s(S_T1), WS_PART)
    e("s_add_u32 %s, %s, 4096", s(S_T2), s(S_T1))
    e("s_lshl_b32 %s, %s, 2", s(S_T0), s(S_T0))
    e("s_add_u32 %s, %s, %s", s(S_T3), s(S_T0), s(S_W))
    e("s_lshl_b32 %s, %s, 3", s(S_T3), s(S_T3))
    e("s_add_u32 %s, %s, %s", s(S_T3), s(S_T3), s(S_HG))
    e("s_lshl_b32 %s, %s, 7", s(S_T3), s(S_T3))
    e("s_add_u32 %s, %s, 0x%x", s(S_T3), s(S_T3), WS_F2)
    e("v_mov_b32 %s, %s", v(V_TM + 7), s(S_T3))
    e("s_lshr_b32 %s, %s, 1", s(S_T3), s(S_HG))
    e("s_add_u32 %s, %s, %s", s(S_T3), s(S_T0), s(S_T3))
    e("s_lshl_b32 %s, %s, 10", s(S_T3), s(S_T3))
    e("s_add_u32 %s, %s, 0x%x", s(S_T3), s(S_T3), WS_F2)
    e("v_and_b32 %s, 7, %s", v(T + 3), L)
    e("v_lshlrev_b32 %s, 7, %s", v(T + 3), v(T + 3))
    e("v_add_u32 %s, %s, %s", v(V_TM + 6), s(S_T3), v(T + 3))
    e("v_mov_b32 %s, %s", v(V_TM + 8), s(S_N2))
    for nt in range(5):
        for m in range(2):
            ch = 2 * nt + m
            for d in range(4):
                r0 = V2_ACC + 16 * nt + 8 * m + 2 * d
                e("v_cvt_pk_bf16_f32 %s, %s, %s", v(V_PK + 4 * ch + d), v(r0), v(r0 + 1))
            e("buffer_store_dwordx4 %s, %s, %s, %s offen offset:%d sc1", v(V_PK + 4 * ch, 4), v(T), s(S_WS, 4), s(S_T1 if ch < 8 else S_T2), (ch % 8) * 512)
            e.vm.issue("pst")
    e.waitv("pst")
    e.stamp()
    e("s_mov_b64 exec, 1")
    e("buffer_store_dword %s, %s, %s, 0 offen sc1", v(V_TM + 8), v(V_TM + 7), s(S_WS, 4)); e.vm.issue("f2")
    poll(e, "L_poll2", V_TM + 6, S_N2, 8)
    e.stamp()

def phase3(e):
    T = V_T; L = v(V_LANE)
    e("v_lshrrev_b32 %s, 5, %s", v(T), L)
    e("v_mul_u32_u24 %s, 5120, %s", v(T + 1), v(T))
    e("v_and_b32 %s, 31, %s", v(T + 2), L)
    e("v_lshl_add_u32 %s, %s, 4, %s", v(T + 1), v(T + 2), v(T + 1))
    e("s_add_u32 %s, %s, %s", s(S_T0), s(S_PB), s(S_HG))
    e("s_mul_i32 %s, %s, %d", s(S_T0), s(S_T0), 8 * 5120)
    e("s_add_u32 %s, %s, 0x%x", s(S_T0), s(S_T0), WS_PART)
    e("s_mul_i32 %s, %s, 3", s(S_T1), s(S_W))
    e("s_cmp_eq_u32 %s, 3", s(S_W))
    e("s_cselect_b32 %s, 8, %s", s(S_T1), s(S_T1))
    e("s_lshl_b32 %s, %s, 9", s(S_T2), s(S_T1))
    e("s_add_u32 %s, %s, %s", s(S_T0), s(S_T0), s(S_T2))
    R = 64
    for c in range(3):
        if c == 2:
            e("s_cmp_ge_u32 %s, 2", s(S_W))
            e("s_cbranch_scc1 L_p3_two")
        for i in range(4):
            e("s_add_u32 %s, %s, %d", s(S_OFF), s(S_T0), 2 * i * 5120 + c * 512)
            e("buffer_load_dwordx4 %s, %s, %s, %s offen sc1", v(R + 16 * c + 4 * i, 4), v(T + 1), s(S_WS, 4), s(S_OFF))
    e.label("L_p3_two")
    e("v_and_b32 %s, 15, %s", v(T + 3), L)
    e("v_mul_u32_u24 %s, 1280, %s", v(T + 3), v(T + 3))
    e("v_bfe_u32 %s, %s, 4, 1", v(T + 4), L)
    e("v_lshl_add_u32 %s, %s, 3, %s", v(T + 3), v(T + 4), v(T + 3))
    e("v_lshl_add_u32 %s, %s, 4, %s", v(T + 3), v(T), v(T + 3))
    e("s_lshl_b32 %s, %s, 3", s(S_T2), s(S_RP))
    e("s_add_u32 %s, %s, %s", s(S_T2), s(S_T2), s(S_HG))
    e("s_mul_i32 %s, %s, %d", s(S_T2), s(S_T2), 16 * 1280)
    e("s_mul_i32 %s, %s, 320", s(S_T3), s(S_CS))
    e("s_add_u32 %s, %s, %s", s(S_T2), s(S_T2), s(S_T3))
    e("s_lshl_b32 %s, %s, 5", s(S_T1), s(S_T1))
    e("s_add_u32 %s, %s, %s", s(S_T2), s(S_T2), s(S_T1))
    e("s_mov_b32 %s, 0x00003f80", s(S_T0))
    e("s_mov_b32 %s, 0x3f800000", s(S_T1))
    def reduce(c):
        r = R + 16 * c; acc = 128 + 8 * c
        for d in range(4):
            e("v_dot2_f32_bf16 %s, %s, %s, 0", v(acc + 2 * d), v(r + d), s(S_T0))
            e("v_dot2_f32_bf16 %s, %s, %s, 0", v(acc + 2 * d + 1), v(r + d), s(S_T1))
        for i in range(1, 4):
            for d in range(4):
                e("v_dot2_f32_bf16 %s, %s, %s, %s", v(acc + 2 * d), v(r + 4 * i + d), s(S_T0), v(acc + 2 * d))
                e("v_dot2_f32_bf16 %s, %s, %s, %s", v(acc + 2 * d + 1), v(r + 4 * i + d), s(S_T1), v(acc + 2 * d + 1))
        e("s_nop 3")
        for d in range(4): e("v_permlane32_swap_b32 %s, %s", v(acc + d), v(acc + 4 + d))
        e("s_nop 1")
        for d in range(4): e("v_add_f32 %s, %s, %s", v(acc + d), v(acc + d), v(acc + 4 + d))
        e("v_cvt_pk_bf16_f32 %s, %s, %s", v(acc), v(acc), v(acc + 1))
        e("v_cvt_pk_bf16_f32 %s, %s, %s", v(acc + 1), v(acc + 2), v(acc + 3))
        e("buffer_store_dwordx2 %s, %s, %s, %s offen offset:%d", v(acc, 2), v(T + 3), s(S_OUT, 4), s(S_T2), 32 * c)
    e("s_waitcnt vmcnt(0)")
    reduce(0); reduce(1)
    e("s_cmp_ge_u32 %s, 2", s(S_W))
    e("s_cbranch_scc1 L_p3_skip")
    reduce(2)
    e.label("L_p3_skip")
    e("s_or_b32 %s, %s, %s", s(S_T0), s(S_HG), s(S_W))
    e("s_cmp_lg_u32 %s, 0", s(S_T0))
    e("s_cbranch_scc1 L_noe2")
    e("s_lshl_b32 %s, %s, 4", s(S_T0), s(S_PB))
    e("s_add_u32 %s, %s, 0x%x", s(S_T0), s(S_T0), WS_E2)
    e("v_mov_b32 %s, %s", v(T), s(S_T0))
    e("s_mov_b64 exec, 1")
    e("buffer_store_dword %s, %s, %s, 0 offen sc1", v(V_TM + 8), v(T), s(S_WS, 4))
    e("s_mov_b64 exec, -1")
    e.label("L_noe2")
    e.stamp()

def dump_stamps(e):
    if not e.o.get("stamps"): return
    n = e.nst
    e("s_waitcnt lgkmcnt(0) vmcnt(0)")
    e("s_lshl_b32 %s, s2, 2", s(S_T0))
    e("s_add_u32 %s, %s, %s", s(S_T0), s(S_T0), s(S_W))
    e("s_lshl_b32 %s, %s, 7", s(S_T0), s(S_T0))
    e("s_add_u32 %s, %s, 0x%x", s(S_T0), s(S_T0), WS_STAMP)
    e("s_mov_b64 exec, 1")
    for i in range(n):
        e("v_mov_b32 v2, %s", s(S_STAMP + 2 * i))
        e("v_mov_b32 v3, %s", s(S_STAMP + 2 * i + 1))
        e("v_mov_b32 v4, %d", 8 * i)
        e("buffer_store_dwordx2 v[2:3], v4, %s, %s offen", s(S_WS, 4), s(S_T0))
        e("s_nop 1")

def build(opts):
    e = K(opts)
    e.raw("; @launch grid=(256,1,1) block=(256,1,1) lds=%d" % LDS_BYTES)
    e.raw('.amdgcn_target "amdgcn-amd-amdhsa--gfx950"')
    e.raw(".text")
    e.raw(".globl %s" % NAME)
    e.raw(".p2align 8")
    e.raw(".type %s,@function" % NAME)
    e.label(NAME)
    prologue(e)
    addr_gemm1_dma(e)
    gemm1(e)
    attention(e)
    phase2(e)
    partials(e)
    phase3(e)
    dump_stamps(e)
    e.label("L_end")
    e("s_endpgm")
    return e.text() + KD.format(name=NAME, vgpr=256, sgpr=100, acc=256), e.nst

if __name__ == "__main__":
    out = sys.argv[1]
    opts = {}
    for k in sys.argv[2:]:
        if "=" in k: kk, vv = k.split("="); opts[kk] = vv
        else: opts[k] = True
    t, n = build(opts)
    open(out, "w").write(t)
    print("wrote", out, "stamps:", n, "lines:", t.count("\n"))
```

```python
import sys, struct
from asm import Emit, v, a, s, KD

NAME = "standalone__gqa_block_cached__near_ridge_kernel"
X_BYTES, W_BYTES, KV_BYTES, OUT_BYTES, WS_BYTES = 1310720, 5242880, 8388608, 1310720, 268435456
WS_O    = 0
WS_PART = 16 << 20
WS_E1   = 32 << 20
WS_E2   = WS_E1 + 64 * 128
WS_F1   = WS_E1 + (1 << 16)
WS_F2   = WS_E1 + (2 << 16) + (1 << 17)
WS_F2B  = WS_F2 + (1 << 17)
WS_STAMP = 64 << 20
SCALE_LOG2E = (128 ** -0.5) * 1.4426950408889634
def f32bits(x): return struct.unpack("<I", struct.pack("<f", x))[0]

SLOT = 32768
L_K, L_V = 0, 32768
LDS_BYTES = 163840

S_X, S_WQ, S_K, S_V, S_WO, S_OUT, S_WS = 8, 12, 16, 20, 24, 28, 32
S_W, S_HG, S_RP, S_CS, S_H = 36, 37, 38, 39, 40
S_T0, S_T1, S_T2, S_T3 = 41, 42, 43, 44
S_WQ0, S_X0, S_KV0, S_LW, S_OFF, S_LW8 = 45, 46, 47, 48, 49, 50
S_WOB = 52
S_N1, S_N2 = 56, 57
S_OB, S_PB, S_SPIN = 58, 59, 60
S_SIG, S_TAU = 51, 61
S_PS0, S_PS1, S_P3B, S_OUTB = 4, 5, 6, 7
S_STAMP = 64

V_LANE = 1
V_T = 2
V_DWQ, V_DX, V_DK, V_DV = 16, 20, 24, 28
V_EP = 29
V_LIN = 30
V_RK, V_RV = 32, 40
V_DWO = 44
V_RWO = 49
V_TM = 52
V_TCH, V_TCW = 62, 63
S_ROLE = 97
S_WOT = 96
S_OBR = 90
V_ACC, V_A, V_B, V_Q, V_S, V_P = 64, 128, 160, 168, 200, 232
V_RG = 200
V2_ACC, V2_A = 64, 200
V_PK = 200
V_PA, V_P3L, V_OUT, V_F2P, V_F2O, V_N2V = 2, 3, 4, 5, 6, 7
V_RO = [168 + 4 * i for i in range(8)] + [144 + 4 * i for i in range(6)] + [240 + 4 * i for i in range(4)] + [16, 20, 24] + [32, 36, 40]

class Cnt:
    def __init__(self): self.ops = []
    def issue(self, tag): self.ops.append(tag)
    def after(self, tags):
        if isinstance(tags, str): tags = [tags]
        last = max(i for i, t in enumerate(self.ops) if t in tags)
        return len(self.ops) - 1 - last

class K(Emit):
    def __init__(self, opts):
        super().__init__()
        self.o = opts; self.vm = Cnt(); self.lg = Cnt(); self.nst = 0; self.nbar = 0; self.skip_dma = False
    def stamp(self, kind="main"):
        if not self.o.get("stamps"): return
        if self.o.get("g1st") and kind == "main" and self.nst >= 13: return
        if kind == "g1" and not self.o.get("g1st"): return
        if kind == "fine" and not self.o.get("fine"): return
        if self.o.get("g1st") and kind == "late": return
        self("%s %s", "s_memtime" if self.o.get("cyc") else "s_memrealtime", s(S_STAMP + 2 * self.nst, 2)); self.nst += 1
    def waitv(self, tags, extra=""):
        if self.skip_dma:
            tl = [tags] if isinstance(tags, str) else tags
            tl = [t for t in tl if not (t[:2] in ("st", "wo") or t in ("K", "V"))]
            if not tl:
                if extra: self("s_waitcnt" + extra)
                return
            tags = tl
        n = self.vm.after(tags); assert n <= 63
        self("s_waitcnt vmcnt(%d)%s", n, extra)
    def waitl(self, tags):
        self("s_waitcnt lgkmcnt(%d)", min(15, self.lg.after(tags)))
    def ds(self, text, tag):
        self(text); self.lg.issue(tag)
    def dma(self, tag, vaddr, srd, soff_reg, imm):
        if (self.o.get("skipV") and srd == S_V) or (self.o.get("skipWO") and srd == S_WO) or (self.o.get("skipK") and srd == S_K):
            self.vm.issue(tag + "_skipped"); self.vm.ops[-1] = tag; self("buffer_load_dword %s, %s, %s, 0 offen", v(V_T + 12), v(V_LIN), s(S_X, 4)); return
        aux = "nt " if (self.o.get("nt") and srd in (S_K, S_V)) or (self.o.get("ntw") and srd in (S_WQ, S_WO)) else ""
        self("buffer_load_dwordx4 %s, %s, %s offen offset:%d %slds", v(vaddr), s(srd, 4), s(soff_reg), imm, aux)
        self.vm.issue(tag)
    def bar(self):
        self("s_barrier"); self.nbar += 1

def prologue(e):
    e("s_cmp_ge_u32 s2, 256")
    e("s_cbranch_scc1 L_end")
    for (srd, off) in ((S_X, 0), (S_WQ, 24), (S_WS, 56), (S_K, 8), (S_V, 16), (S_WO, 32), (S_OUT, 40)):
        e("s_load_dwordx2 %s, s[0:1], %d", s(srd, 2), off)
    e("v_and_b32 %s, 63, v0", v(V_LANE))
    e("v_lshrrev_b32 %s, 6, v0", v(V_T))
    e("s_and_b32 %s, s2, 7", s(S_HG))
    e("s_lshr_b32 %s, s2, 3", s(S_T0))
    e("v_readfirstlane_b32 %s, %s", s(S_W), v(V_T))
    e("s_lshr_b32 %s, %s, 2", s(S_RP), s(S_T0))
    e("s_and_b32 %s, %s, 3", s(S_CS), s(S_T0))
    e("s_lshl_b32 %s, %s, 2", s(S_H), s(S_HG))
    e("s_add_u32 %s, %s, %s", s(S_H), s(S_H), s(S_CS))
    for (srd, size) in ((S_X, X_BYTES), (S_K, KV_BYTES), (S_V, KV_BYTES), (S_WQ, W_BYTES), (S_WO, W_BYTES),
                        (S_OUT, OUT_BYTES), (S_WS, WS_BYTES)):
        e("s_mov_b32 %s, 0x%x", s(srd + 2), size)
        e("s_mov_b32 %s, 0x20000", s(srd + 3))
    if e.o.get("ldr"):
        e("s_lshr_b32 %s, %s, 2", s(S_ROLE), s(S_W))
        e("s_and_b32 %s, %s, 3", s(S_W), s(S_W))

def addr_gemm1_dma(e):
    T = V_T; L = v(V_LANE)
    e("v_lshrrev_b32 %s, 4, %s", v(T), L)
    e("v_and_b32 %s, 15, %s", v(T + 1), L)
    e("v_lshlrev_b32 %s, 2, %s", v(T + 2), v(T))
    e("v_xor_b32 %s, %s, %s", v(T + 2), v(T + 1), v(T + 2))
    e("v_lshlrev_b32 %s, 4, %s", v(T + 2), v(T + 2))
    e("v_lshl_add_u32 %s, %s, 13, %s", v(V_DWQ), v(T), v(T + 2))
    e("v_lshl_add_u32 %s, %s, 8, %s", v(V_DV), v(T), v(T + 2))
    for i in range(1, 4): e("v_add_u32 %s, %d, %s", v(V_DWQ + i), i * 31744, v(V_DWQ))
    e("v_xor_b32 %s, %s, %s", v(T + 2), v(T + 1), v(T))
    e("v_lshlrev_b32 %s, 4, %s", v(T + 2), v(T + 2))
    e("v_lshl_add_u32 %s, %s, 8, %s", v(V_DK), v(T), v(T + 2))
    e("v_lshrrev_b32 %s, 3, %s", v(T + 3), L)
    e("v_and_b32 %s, 7, %s", v(T + 4), L)
    e("v_lshrrev_b32 %s, 1, %s", v(T + 5), v(T + 3))
    e("v_xor_b32 %s, %s, %s", v(T + 5), v(T + 4), v(T + 5))
    e("v_lshlrev_b32 %s, 4, %s", v(T + 5), v(T + 5))
    e("v_mul_u32_u24 %s, 1280, %s", v(T + 3), v(T + 3))
    e("v_add_u32 %s, %s, %s", v(V_DX), v(T + 3), v(T + 5))
    e("v_xor_b32 %s, 64, %s", v(T + 5), v(T + 5))
    e("v_add_u32 %s, %s, %s", v(T + 6), v(T + 3), v(T + 5))
    e("v_add_u32 %s, %d, %s", v(V_DX + 1), 9216, v(T + 6))
    e("v_add_u32 %s, %d, %s", v(V_DX + 2), 2 * 9216, v(V_DX))
    e("v_add_u32 %s, %d, %s", v(V_DX + 3), 3 * 9216, v(T + 6))
    for i in range(1, 4): e("v_xor_b32 %s, %d, %s", v(V_DK + i), 64 * i, v(V_DK))
    e("v_lshlrev_b32 %s, 4, %s", v(V_LIN), L)
    e("s_lshl_b32 %s, %s, 17", s(S_WQ0), s(S_W))
    e("s_lshl_b32 %s, %s, 8", s(S_T0), s(S_H))
    e("s_add_u32 %s, %s, %s", s(S_WQ0), s(S_WQ0), s(S_T0))
    e("s_lshl_b32 %s, %s, 2", s(S_T0), s(S_RP))
    e("s_add_u32 %s, %s, %s", s(S_T0), s(S_T0), s(S_W))
    e("s_mul_i32 %s, %s, %d", s(S_X0), s(S_T0), 32 * 1280)
    e("s_lshl_b32 %s, %s, 12", s(S_LW), s(S_W))
    e("s_lshl_b32 %s, %s, 13", s(S_LW8), s(S_W))
    if e.o.get("rot"):
        a_, b_, sa, sb = [int(x) for x in str(e.o.get("rotab", "1,3,0,0")).split(",")]
        e("s_lshr_b32 %s, %s, %d", s(S_SIG), s(S_CS), sb)
        e("s_mul_i32 %s, %s, %d", s(S_SIG), s(S_SIG), b_)
        e("s_lshr_b32 %s, %s, %d", s(S_T0), s(S_RP), sa)
        e("s_mul_i32 %s, %s, %d", s(S_T0), s(S_T0), a_)
        e("s_add_u32 %s, %s, %s", s(S_SIG), s(S_SIG), s(S_T0))
        for _ in range(3):
            e("s_cmp_ge_u32 %s, 10", s(S_SIG))
            e("s_cselect_b32 %s, 10, 0", s(S_T0))
            e("s_sub_u32 %s, %s, %s", s(S_SIG), s(S_SIG), s(S_T0))
    e("s_lshl_b32 %s, %s, 3", s(S_T0), s(S_RP))
    e("s_add_u32 %s, %s, %s", s(S_T0), s(S_T0), s(S_HG))
    e("s_lshl_b32 %s, %s, 7", s(S_T0), s(S_T0))
    e("s_add_u32 %s, %s, 0x%x", s(S_T0), s(S_T0), WS_E1)
    e("s_lshl_b32 %s, %s, 2", s(S_T1), s(S_RP))
    e("s_add_u32 %s, %s, %s", s(S_T1), s(S_T1), s(S_CS))
    e("s_lshl_b32 %s, %s, 7", s(S_T1), s(S_T1))
    e("s_add_u32 %s, %s, 0x%x", s(S_T1), s(S_T1), WS_E2)
    e("v_mov_b32 %s, %s", v(T), s(S_T0))
    e("v_mov_b32 %s, %s", v(T + 1), s(S_T1))
    e("v_cmp_eq_u32 vcc, 1, %s", L)
    e("s_nop 1")
    e("v_cndmask_b32 %s, %s, %s, vcc", v(V_TM), v(T), v(T + 1))

def addr_rest(e):
    T = V_T; L = v(V_LANE)
    HF, C32, NH, R, C, U, W2 = T, T + 1, T + 2, T + 3, T + 4, T + 5, T + 6
    e("v_lshrrev_b32 %s, 5, %s", v(HF), L)
    e("v_and_b32 %s, 31, %s", v(C32), L)
    e("v_bfe_u32 %s, %s, 4, 1", v(NH), L)
    e("v_bfe_u32 %s, %s, 2, 2", v(R), L)
    e("v_and_b32 %s, 3, %s", v(C), L)
    e("v_lshl_add_u32 %s, %s, 3, %s", v(U), v(HF), v(R))
    e("v_lshlrev_b32 %s, 8, %s", v(U), v(U))
    e("v_lshl_add_u32 %s, %s, 5, %s", v(U), v(NH), v(U))
    e("v_and_b32 %s, 1, %s", v(W2), v(C))
    e("v_lshl_add_u32 %s, %s, 4, %s", v(U), v(W2), v(U))
    e("v_lshrrev_b32 %s, 1, %s", v(W2), v(C))
    e("v_lshl_add_u32 %s, %s, 3, %s", v(U), v(W2), v(U))
    e("v_lshl_add_u32 %s, %s, 6, %s", v(V_RG), v(R), v(U))
    for t in range(1, 4): e("v_xor_b32 %s, %d, %s", v(V_RG + t), 64 * t, v(V_RG))
    e("v_bfe_u32 %s, %s, 1, 3", v(U), v(C32))
    e("v_xor_b32 %s, %s, %s", v(U), v(U), v(HF))
    e("v_lshlrev_b32 %s, 4, %s", v(U), v(U))
    e("v_lshl_add_u32 %s, %s, 7, %s", v(U), v(C32), v(U))
    e("s_add_u32 %s, %s, 16384", s(S_T1), s(S_LW))
    e("v_add_u32 %s, %s, %s", v(V_RG + 4), s(S_T1), v(U))
    for u in range(1, 4): e("v_xor_b32 %s, %d, %s", v(V_RG + 4 + u), 32 * u, v(V_RG + 4))
    for b in range(1, 3):
        for i in range(8): e("v_add_u32 %s, 0x%x, %s", v(V_RG + 8 * b + i), 65536 * b, v(V_RG + i))
    e("s_lshr_b32 %s, %s, 1", s(S_T0), s(S_W))
    e("s_lshl_b32 %s, %s, 14", s(S_T0), s(S_T0))
    e("v_lshl_add_u32 %s, %s, 2, %s", v(U), v(HF), v(R))
    e("v_lshlrev_b32 %s, 8, %s", v(W2), v(U))
    e("v_lshl_add_u32 %s, %s, 5, %s", v(W2), v(NH), v(W2))
    e("v_lshl_add_u32 %s, %s, 3, %s", v(W2), v(C), v(W2))
    e("v_lshl_add_u32 %s, %s, 6, %s", v(W2), v(R), v(W2))
    e("s_add_u32 %s, %s, %d", s(S_T1), s(S_T0), L_V)
    e("v_add_u32 %s, %s, %s", v(V_RV), s(S_T1), v(W2))
    for t in range(1, 4): e("v_xor_b32 %s, %d, %s", v(V_RV + t), 64 * t, v(V_RV))
    e("v_mul_u32_u24 %s, 320, %s", v(U), v(U))
    e("v_lshl_add_u32 %s, %s, 5, %s", v(U), v(NH), v(U))
    e("v_lshl_add_u32 %s, %s, 3, %s", v(V_RWO), v(C), v(U))
    e("v_add_u32 %s, %d, %s", v(V_RWO + 1), 13 * 5120, v(V_RWO))
    e("v_add_u32 %s, %d, %s", v(V_RWO + 2), 25 * 5120, v(V_RWO))
    e("v_and_b32 %s, 15, %s", v(U), v(C32))
    e("v_xor_b32 %s, %s, %s", v(U), v(U), v(HF))
    e("v_lshlrev_b32 %s, 4, %s", v(U), v(U))
    e("v_lshl_add_u32 %s, %s, 8, %s", v(U), v(C32), v(U))
    e("v_add_u32 %s, %s, %s", v(V_RK), s(S_T0), v(U))
    for st in range(1, 8): e("v_xor_b32 %s, %d, %s", v(V_RK + st), 32 * st, v(V_RK))
    for i in range(5):
        e("v_add_u32 %s, %d, %s", v(T), 64 * i, L)
        e("v_mul_u32_u24 %s, %d, %s", v(T + 1), 3277, v(T))
        e("v_lshrrev_b32 %s, 16, %s", v(T + 1), v(T + 1))
        e("v_mul_u32_u24 %s, 20, %s", v(T + 2), v(T + 1))
        e("v_sub_u32 %s, %s, %s", v(T + 2), v(T), v(T + 2))
        e("v_mul_u32_u24 %s, 1280, %s", v(T + 1), v(T + 1))
        e("v_lshl_add_u32 %s, %s, 4, %s", v(V_DWO + i), v(T + 2), v(T + 1))
        if i & 3: e("v_subrev_u32 %s, %d, %s", v(V_DWO + i), (i & 3) * 1024, v(V_DWO + i))
    e("s_lshr_b32 %s, %s, 1", s(S_T0), s(S_W))
    e("s_lshl_b32 %s, %s, 1", s(S_T1), s(S_RP))
    e("s_add_u32 %s, %s, %s", s(S_T0), s(S_T0), s(S_T1))
    e("s_lshl_b32 %s, %s, 5", s(S_T0), s(S_T0))
    e("s_add_u32 %s, %s, %s", s(S_T0), s(S_T0), s(S_H))
    e("s_lshl_b32 %s, %s, 14", s(S_KV0), s(S_T0))
    e("s_and_b32 %s, %s, 1", s(S_T0), s(S_W))
    e("s_lshl_b32 %s, %s, 13", s(S_T0), s(S_T0))
    e("s_add_u32 %s, %s, %s", s(S_KV0), s(S_KV0), s(S_T0))
    e("s_mul_i32 %s, %s, 320", s(S_T2), s(S_CS))
    e("s_mul_i32 %s, %s, %d", s(S_T3), s(S_W), 16 * 1280)
    e("s_add_u32 %s, %s, %s", s(S_T2), s(S_T2), s(S_T3))
    e("s_mul_i32 %s, %s, %d", s(S_T3), s(S_HG), 512 * 1280)
    e("s_add_u32 %s, %s, %s", s(S_T2), s(S_T2), s(S_T3))
    for j in range(4):
        e("s_add_u32 %s, %s, %d", s(S_T0), s(S_CS), j)
        e("s_and_b32 %s, %s, 3", s(S_T0), s(S_T0))
        e("s_mul_i32 %s, %s, %d", s(S_T0), s(S_T0), 128 * 1280)
        e("s_add_u32 %s, %s, %s", s(S_WOB + j), s(S_T0), s(S_T2))
    e("v_lshlrev_b32 %s, 7, %s", v(V_TCH), L)
    e("v_min_u32 %s, 39, %s", v(V_TCW), L)
    e("v_lshlrev_b32 %s, 7, %s", v(V_TCW), v(V_TCW))
    e("s_lshr_b32 %s, s2, 3", s(S_T0))
    e("s_lshl_b32 %s, %s, 2", s(S_T0), s(S_T0))
    e("s_add_u32 %s, %s, %s", s(S_T0), s(S_T0), s(S_W))
    e("s_lshl_b32 %s, %s, 2", s(S_T0), s(S_T0))
    e("s_lshl_b32 %s, %s, 9", s(S_T1), s(S_HG))
    e("s_add_u32 %s, %s, %s", s(S_T0), s(S_T0), s(S_T1))
    e("s_mul_i32 %s, %s, 1280", s(S_WOT), s(S_T0))
    e("s_lshl_b32 %s, %s, 3", s(S_T0), s(S_RP))
    e("s_add_u32 %s, %s, %s", s(S_T0), s(S_T0), s(S_HG))
    e("s_lshl_b32 %s, %s, 2", s(S_T0), s(S_T0))
    e("s_add_u32 %s, %s, %s", s(S_T0), s(S_T0), s(S_W))
    e("s_lshl_b32 %s, %s, 15", s(S_OB), s(S_T0))

def grp_stage(e, st):
    if e.skip_dma: return []
    slot = st % 5
    rot = e.o.get("rot")
    def wq(i):
        def f():
            if i == 0:
                e("s_add_u32 m0, %s, %d", s(S_LW), slot * SLOT)
                if rot:
                    e("s_lshl_b32 %s, %s, 19", s(S_OFF), s(S_SIG))
                    e("s_add_u32 %s, %s, %s", s(S_OFF), s(S_OFF), s(S_WQ0))
                else:
                    e("s_add_u32 %s, %s, %d", s(S_OFF), s(S_WQ0), st * 64 * 8192)
            e.dma("st%d" % st, V_DWQ + i, S_WQ, S_OFF, i * 1024)
        return f
    def xx(i):
        def f():
            if i == 0:
                e("s_add_u32 m0, %s, %d", s(S_LW), slot * SLOT + 16384)
                if rot:
                    e("s_lshl_b32 %s, %s, 7", s(S_OFF), s(S_SIG))
                    e("s_add_u32 %s, %s, %s", s(S_OFF), s(S_OFF), s(S_X0))
                else:
                    e("s_add_u32 %s, %s, %d", s(S_OFF), s(S_X0), st * 128)
            e.dma("st%d" % st, V_DX + i, S_X, S_OFF, i * 1024)
            if i == 3 and rot:
                e("s_add_u32 %s, %s, 1", s(S_SIG), s(S_SIG))
                e("s_cmp_eq_u32 %s, 10", s(S_SIG))
                e("s_cselect_b32 %s, 0, %s", s(S_SIG), s(S_SIG))
        return f
    return [wq(i) for i in range(4)] + [xx(i) for i in range(4)]

def grp_kv(e, which):
    if e.skip_dma: return []
    srd, base, tag = (S_K, L_K, "K") if which == "K" else (S_V, L_V, "V")
    def f(i):
        def g():
            if i % 4 == 0:
                e("s_add_u32 m0, %s, %d", s(S_LW8), base + (i // 4) * 4096)
                e("s_add_u32 %s, %s, %d", s(S_OFF), s(S_KV0), (i // 4) * 4096)
            e.dma(tag, (V_DK + (i & 3)) if which == "K" else V_DV, srd, S_OFF, (i & 3) * 1024)
        return g
    return [f(i) for i in range(8)]

def grp_wo(e, st):
    if e.skip_dma: return []
    def f(i):
        def g():
            if i == 0:
                e("s_add_u32 %s, %s, %d", s(S_T0), s(S_W), 13 + 4 * st)
                e("s_and_b32 %s, %s, 31", s(S_T0), s(S_T0))
                e("s_mul_i32 %s, %s, 5120", s(S_T0), s(S_T0))
                e("s_mov_b32 m0, %s", s(S_T0))
                e("s_add_u32 %s, %s, %d", s(S_OFF), s(S_WOB + (st >> 1)), (st & 1) * 4 * 16 * 1280)
            if i == 4:
                e("s_add_u32 m0, %s, 4096", s(S_T0))
                e("s_nop 0")
            e.dma("wo%d" % st, V_DWO + i, S_WO, S_OFF, (i & 3) * 1024)
        return g
    return [f(i) for i in range(5)]

def g1_reads(ks):
    st, s4, b = ks >> 2, ks & 3, ks & 1
    slot = st % 5
    base, rel = V_RG + 8 * (slot // 2), (slot % 2) * SLOT
    r = ["ds_read_b128 %s, %s offset:%d" % (v(V_B + 4 * b, 4), v(base + 4 + s4), rel)]
    for t in range(4):
        for j in range(2):
            r.append("ds_read_b64_tr_b16 %s, %s offset:%d" % (v(V_A + 16 * b + 4 * t + 2 * j, 2), v(base + t), rel + s4 * 4096 + j * 1024))
    return r

def grp_touch(e, which):
    if e.skip_dma: return []
    nt = "nt" if e.o.get("nt") else ""
    def f():
        if which == "V": e("buffer_load_dword %s, %s, %s, %s offen %s", v(V_T + 12), v(V_TCH), s(S_V, 4), s(S_KV0), nt)
        else: e("buffer_load_dword %s, %s, %s, %s offen %s", v(V_T + 12), v(V_TCW), s(S_WO, 4), s(S_WOT), nt)
        e.vm.issue(which + "t")
    return [f]

def pop(q, n):
    for _ in range(n):
        if q: q.pop(0)()

def gemm1(e):
    o = e.o
    e("s_waitcnt lgkmcnt(0)")
    e.stamp()
    e("buffer_load_dword %s, %s, %s, 0 offen sc1", v(V_EP), v(V_TM), s(S_WS, 4)); e.vm.issue("ep")
    for st in range(2):
        for f in grp_stage(e, st): f()
    addr_rest(e)
    e.waitv("st0")
    e.bar()
    e.stamp()
    for r in g1_reads(0): e(r)
    plan = {b: grp_stage(e, b + 3) for b in range(-1, 7)}
    plan[7] = grp_kv(e, "K") + (grp_touch(e, "V") if o.get("vt") else [])
    if "wot_b" in o:
        b_ = int(o["wot_b"]); plan[b_] = plan[b_] + grp_touch(e, "wo")
    plan[8] = grp_kv(e, "V") + (grp_touch(e, "wo") if o.get("wot") else [])
    plan[9] = grp_wo(e, 0) + grp_wo(e, 1) + (grp_touch(e, "wo") if o.get("wot2") else [])
    if o.get("schedB"): plan[9] = []
    pending = list(plan[-1])
    NK = 40
    for ks in range(NK):
        st, s4, b = ks >> 2, ks & 3, ks & 1
        last = ks == NK - 1
        boundary = (s4 == 3)
        nxt = g1_reads(ks + 1) if not last else []
        if boundary:
            if e.skip_dma and st == 2: e.waitv("ep")
            e.waitv("st%d" % (st + 1) if not last else "K", " lgkmcnt(0)")
            e.bar()
            e.stamp("g1")
            pending += plan[st]
        if last:
            nxt = [kread_text(kt, st_, 2 * st_ + kt) for st_ in range(2) for kt in range(2)]
        left = 3 - ((ks + 1) & 3) + 1 if ks >= 3 else 3 - ks
        want = 0 if last else -(-len(pending) // max(1, left))
        slots = {1: (1,), 2: (1, 3), 3: (1, 2, 3)}.get(min(want, 3), ())
        for t in range(4):
            if not boundary: e("s_waitcnt lgkmcnt(%d)", [6, 7, 8, 9][t])
            c = "0" if ks == 0 else v(V_ACC + 16 * t, 16)
            e("v_mfma_f32_32x32x16_bf16 %s, %s, %s, %s", v(V_ACC + 16 * t, 16), v(V_A + 16 * b + 4 * t, 4), v(V_B + 4 * b, 4), c)
            if t < 3:
                for r in nxt[3 * t:3 * t + 3]: e(r)
            if t in slots: pop(pending, 1)
    e.pending = pending
    e.stamp()

def loader(e):
    o = e.o
    nbar_main = e.nbar
    e.skip_dma = False; e.vm = Cnt(); e.nbar = 0
    e.label("L_loader")
    if o.get("ldr_prio"): e("s_setprio %d" % int(o["ldr_prio"]))
    e("s_waitcnt lgkmcnt(0)")
    def run(fs):
        for f in fs: f()
    run(grp_stage(e, 0)); run(grp_stage(e, 1))
    addr_rest(e)
    e.waitv("st0"); e.bar()
    for b in range(-1, 7):
        run(grp_stage(e, b + 3))
        e.waitv("st%d" % (b + 2)); e.bar()
    run(grp_kv(e, "K")); e.waitv("st9"); e.bar()
    run(grp_kv(e, "V"))
    if o.get("wot"): run(grp_touch(e, "wo"))
    e.waitv("K"); e.bar()
    w0 = grp_wo(e, 0)
    n0 = int(o.get("pre_v", 2))
    run(w0[:n0])
    e.waitv("V"); e.bar()
    run(w0[n0:])
    npv = int(o.get("pre_pv", 3))
    for st_ in range(1, npv): run(grp_wo(e, st_))
    e.waitv("wo1"); e.bar()
    for st_ in range(npv, 8): run(grp_wo(e, st_))
    e("s_waitcnt vmcnt(0)"); e.bar()
    assert e.nbar == nbar_main, (e.nbar, nbar_main)
    e("s_endpgm")

def kread_text(kt, st_, buf):
    return "ds_read_b128 %s, %s offset:%d" % (v(V_A + 4 * buf, 4), v(V_RK + st_), L_K + kt * 8192)

def attention(e):
    lg = e.lg; pending = e.pending
    for st_ in range(2):
        for kt in range(2): lg.issue("k%d_%d" % (st_, kt))
    def kread(kt, st_, buf): e.ds(kread_text(kt, st_, buf), "k%d_%d" % (st_, kt))
    def qcvt(t):
        for u in range(2):
            for d in range(4):
                r0 = V_ACC + 16 * t + 8 * u + 2 * d
                e("v_cvt_pk_bf16_f32 %s, %s, %s", v(V_Q + 8 * t + 4 * u + d), v(r0), v(r0 + 1))
    for st_ in range(2, 4):
        for kt in range(2): kread(kt, st_, 2 * st_ + kt)
    e("s_nop 4")
    qcvt(0); qcvt(1); qcvt(2)
    e("s_nop 1")
    for st_ in range(8):
        if st_ == 2: qcvt(3); e("s_nop 0")
        for kt in range(2):
            buf = (2 * st_ + kt) % 8
            e.waitl("k%d_%d" % (st_, kt))
            c = "0" if st_ == 0 else v(V_S + 16 * kt, 16)
            e("v_mfma_f32_32x32x16_bf16 %s, %s, %s, %s", v(V_S + 16 * kt, 16), v(V_A + 4 * buf, 4), v(V_Q + 4 * st_, 4), c)
            if st_ < 4: kread(kt, st_ + 4, buf)
            if pending: pending.pop(0)()
    schedB = e.o.get("schedB")
    def vreads(t, st_, buf):
        for j in range(2):
            e.ds("ds_read_b64_tr_b16 %s, %s offset:%d" % (v(V_A + 4 * buf + 2 * j, 2), v(V_RV + t), st_ * 4096 + j * 2048), "v%d_%d" % (st_, t))
    def vbarrier():
        e.waitv("V")
        e.bar()
        for st_ in range(2):
            for t in range(4): vreads(t, st_, 4 * st_ + t)
    if not schedB: vbarrier()
    else: e("s_nop 7\ns_nop 3")
    e.stamp()
    assert not pending
    S = V_S; M, M2, SUM, SUM2 = V_TM, V_TM + 1, V_TM + 2, V_TM + 4
    e("v_max3_f32 %s, %s, %s, %s", v(M), v(S), v(S + 1), v(S + 2))
    e("v_max3_f32 %s, %s, %s, %s", v(M2), v(S + 3), v(S + 4), v(S + 5))
    for i in range(6, 16, 4):
        e("v_max3_f32 %s, %s, %s, %s", v(M), v(M), v(S + i), v(S + i + 1))
        if i + 2 < 16: e("v_max3_f32 %s, %s, %s, %s", v(M2), v(M2), v(S + i + 2), v(S + i + 3))
    for i in range(16, 32, 4):
        e("v_max3_f32 %s, %s, %s, %s", v(M), v(M), v(S + i), v(S + i + 1))
        e("v_max3_f32 %s, %s, %s, %s", v(M2), v(M2), v(S + i + 2), v(S + i + 3))
    e("v_max_f32 %s, %s, %s", v(M), v(M), v(M2))
    e("v_mov_b32 %s, %s", v(M2), v(M))
    e("s_mov_b32 %s, 0x%08x", s(S_T1), f32bits(SCALE_LOG2E))
    e("s_nop 0")
    e("v_permlane32_swap_b32 %s, %s", v(M), v(M2))
    e("s_nop 0")
    e("v_max_f32 %s, %s, %s", v(M), v(M), v(M2))
    e("v_mul_f32 %s, %s, %s", v(M), s(S_T1), v(M))
    for i in range(32):
        e("v_fma_f32 %s, %s, %s, -%s", v(S + i), v(S + i), s(S_T1), v(M))
    sm = (grp_wo(e, 2) + grp_wo(e, 3)) if e.o.get("schedA") and not schedB else []
    for i in range(32):
        e("v_exp_f32 %s, %s", v(S + i), v(S + i))
        if i % 3 == 2: pop(sm, 1)
    assert not sm
    if schedB:
        vbarrier()
        sm = grp_wo(e, 0) + grp_wo(e, 1)
    e("s_nop 0")
    e("v_add_f32 %s, %s, %s", v(SUM), v(S), v(S + 1))
    e("v_add_f32 %s, %s, %s", v(SUM + 1), v(S + 2), v(S + 3))
    e("v_add_f32 %s, %s, %s", v(SUM2), v(S + 4), v(S + 5))
    e("v_add_f32 %s, %s, %s", v(SUM2 + 1), v(S + 6), v(S + 7))
    for i in range(8, 32, 4):
        e("v_add_f32 %s, %s, %s", v(SUM), v(SUM), v(S + i))
        e("v_add_f32 %s, %s, %s", v(SUM + 1), v(SUM + 1), v(S + i + 1))
        e("v_add_f32 %s, %s, %s", v(SUM2), v(SUM2), v(S + i + 2))
        e("v_add_f32 %s, %s, %s", v(SUM2 + 1), v(SUM2 + 1), v(S + i + 3))
    e("v_add_f32 %s, %s, %s", v(SUM), v(SUM), v(SUM + 1))
    e("v_add_f32 %s, %s, %s", v(SUM2), v(SUM2), v(SUM2 + 1))
    e("v_add_f32 %s, %s, %s", v(SUM), v(SUM), v(SUM2))
    e("v_mov_b32 %s, %s", v(SUM2), v(SUM))
    e("s_nop 1")
    e("v_permlane32_swap_b32 %s, %s", v(SUM), v(SUM2))
    e("s_nop 0")
    e("v_add_f32 %s, %s, %s", v(SUM), v(SUM), v(SUM2))
    e("v_rcp_f32 %s, %s", v(SUM), v(SUM))
    e("s_nop 0")
    for i in range(32):
        e("v_mul_f32 %s, %s, %s", v(S + i), v(S + i), v(SUM))
        if i % 4 == 3: pop(sm, 1)
    for f in range(4):
        for d in range(4):
            r0 = S + 8 * f + 2 * d
            e("v_cvt_pk_bf16_f32 %s, %s, %s", v(V_P + 4 * f + d), v(r0), v(r0 + 1))
    e.stamp()
    pv = (grp_wo(e, 4) + grp_wo(e, 5)) if e.o.get("schedA") else []
    if schedB: pv = sm + grp_wo(e, 2) + grp_wo(e, 3)
    e("s_nop 1")
    for st_ in range(4):
        for t in range(4):
            buf = (4 * st_ + t) % 8
            e.waitl("v%d_%d" % (st_, t))
            c = "0" if st_ == 0 else v(V_ACC + 16 * t, 16)
            e("v_mfma_f32_32x32x16_bf16 %s, %s, %s, %s", v(V_ACC + 16 * t, 16), v(V_A + 4 * buf, 4), v(V_P + 4 * st_, 4), c)
            if st_ < 2: vreads(t, st_ + 2, buf)
            pop(pv, 1)
    assert not pv
    e("v_readlane_b32 %s, %s, 0", s(S_N1), v(V_EP))
    e("v_readlane_b32 %s, %s, 1", s(S_N2), v(V_EP))
    e("s_lshl_b32 %s, %s, 13", s(S_T0), s(S_CS))
    e("s_add_u32 %s, %s, %s", s(S_T0), s(S_T0), s(S_OB))
    e("s_add_u32 %s, %s, 1", s(S_N1), s(S_N1))
    e("s_add_u32 %s, %s, 1", s(S_N2), s(S_N2))
    e("s_add_u32 %s, %s, 4096", s(S_T1), s(S_T0))
    e("s_nop 3")
    for t in range(4):
        if t == 3: e("s_nop 1")
        for u in range(2):
            for d in range(4):
                r0 = V_ACC + 16 * t + 8 * u + 2 * d
                e("v_cvt_pk_bf16_f32 %s, %s, %s", v(V_Q + 8 * t + 4 * u + d), v(r0), v(r0 + 1))
            f = 2 * t + u
            e("buffer_store_dwordx4 %s, %s, %s, %s offen offset:%d %s", v(V_Q + 4 * f, 4), v(V_LIN), s(S_WS, 4), s(S_T0 if f < 4 else S_T1), (f % 4) * 1024, "" if e.o.get("fastO") else "sc1")
            e.vm.issue("ost")
    e.stamp()

def p2_reads(lg_):
    b = lg_ & 1
    pg = (13 + lg_) % 32
    base, rel = (0, pg) if pg < 13 else ((1, pg - 13) if pg < 25 else (2, pg - 25))
    return ["ds_read_b64_tr_b16 %s, %s offset:%d" % (v(V2_A + 20 * b + 4 * nt + 2 * j, 2), v(V_RWO + base), rel * 5120 + 8 * j * 320 + 64 * nt)
            for nt in range(5) for j in range(2)]

def poll(e, label, vaddr, nonce, nlanes):
    e("s_mov_b64 exec, 0x%x", (1 << nlanes) - 1)
    e("s_mov_b32 %s, 0", s(S_SPIN))
    e.label(label)
    e("buffer_load_dword %s, %s, %s, 0 offen sc1", v(V_T + 8), v(vaddr), s(S_WS, 4))
    e("s_waitcnt vmcnt(0)")
    e("v_cmp_ne_u32 vcc, %s, %s", s(nonce), v(V_T + 8))
    e("s_add_u32 %s, %s, 1", s(S_SPIN), s(S_SPIN))
    e("s_cmp_ge_u32 %s, 0x%x", s(S_SPIN), 1 << 17)
    e("s_cbranch_scc1 %s_done", label)
    e("s_cbranch_vccnz %s", label)
    e.label(label + "_done")
    e("s_mov_b64 exec, -1")
    e.vm.issue("poll"); e.vm.ops = ["poll"]

def phase2(e):
    T = V_T; L = v(V_LANE)
    e.waitv("wo1")
    e.bar()
    for r in p2_reads(0): e(r)
    e("s_lshr_b32 %s, %s, 15", s(S_T2), s(S_OB))
    e("s_lshl_b32 %s, %s, 9", s(S_T2), s(S_T2))
    e("s_add_u32 %s, %s, 0x%x", s(S_T2), s(S_T2), WS_F1)
    e("v_and_b32 %s, 3, %s", v(T), L)
    e("v_lshlrev_b32 %s, 7, %s", v(T), v(T))
    e("v_add_u32 %s, %s, %s", v(V_TM + 6), s(S_T2), v(T))
    e("s_lshl_b32 %s, %s, 7", s(S_T1), s(S_CS))
    e("s_add_u32 %s, %s, %s", s(S_T2), s(S_T2), s(S_T1))
    e("v_mov_b32 %s, %s", v(V_TM + 7), s(S_T2))
    e("v_mov_b32 %s, %s", v(V_TM + 8), s(S_N1))
    early = e.o.get("woearly") or e.o.get("schedA") or e.o.get("schedB")
    schedA = e.o.get("schedA") or e.o.get("schedB")
    flag_at = int(e.o.get("flag_at", 8))
    pending = [] if schedA else grp_wo(e, 2) + grp_wo(e, 3) + ([] if early else grp_wo(e, 4))
    if e.o.get("schedB"): pending = grp_wo(e, 4) + grp_wo(e, 5)
    def kstep(ks, bsrc, nxt, first):
        b = ks & 1
        for nt in range(5):
            issued_new = min(len(nxt), [0, 3, 6, 8, 10][nt])
            e("s_waitcnt lgkmcnt(%d)", min(15, 2 * (4 - nt) + issued_new))
            c = "0" if first else v(V2_ACC + 16 * nt, 16)
            e("v_mfma_f32_32x32x16_bf16 %s, %s, %s, %s", v(V2_ACC + 16 * nt, 16), v(V2_A + 20 * b + 4 * nt, 4), bsrc, c)
            lo, hi = [(0, 3), (3, 6), (6, 8), (8, 10), (10, 10)][nt]
            for r in nxt[lo:hi]: e(r)
            if nt >= 2: pop(pending, 1)
    def publish():
        e.waitv("ost")
        e("s_mov_b64 exec, 1")
        e("buffer_store_dword %s, %s, %s, 0 offen %s", v(V_TM + 8), v(V_TM + 7), s(S_WS, 4), "" if e.o.get("fastO") else "sc1"); e.vm.issue("f1")
        e("s_mov_b64 exec, -1")
    if schedA and e.o.get("wo67first"): pending += grp_wo(e, 6) + grp_wo(e, 7)
    for ks in range(8):
        if ks == flag_at:
            publish()
            if schedA and not e.o.get("wo67first"): pending += grp_wo(e, 6) + grp_wo(e, 7)
        kstep(ks, v(V_Q + 4 * ks, 4), p2_reads(ks + 1) if ks < 7 else [], ks == 0)
    e.stamp()
    if flag_at >= 8:
        publish()
        if schedA and not e.o.get("wo67first"): pending += grp_wo(e, 6) + grp_wo(e, 7)
    pop(pending, len(pending))
    tile = e.o.get("tile") or e.o.get("tile2")
    if tile: tail_addresses(e)
    if early and not schedA:
        for st_ in range(4, 8): pop(grp_wo(e, st_), 5)
    poll(e, "L_poll1", V_TM + 6, S_N1, 4)
    e.stamp()
    e("s_or_b32 %s, %s, %s", s(S_T0), s(S_CS), s(S_W))
    e("s_cmp_lg_u32 %s, 0", s(S_T0))
    e("s_cbranch_scc1 L_noe1")
    e("s_lshr_b32 %s, %s, 17", s(S_T0), s(S_OB))
    e("s_lshl_b32 %s, %s, 7", s(S_T0), s(S_T0))
    e("s_add_u32 %s, %s, 0x%x", s(S_T0), s(S_T0), WS_E1)
    e("v_mov_b32 v8, %s", s(S_T0))
    e("s_mov_b64 exec, 1")
    e("buffer_store_dword %s, v8, %s, 0 offen sc1", v(V_TM + 8), s(S_WS, 4))
    e("s_mov_b64 exec, -1")
    e.label("L_noe1")
    for j in range(1, 4):
        e("s_add_u32 %s, %s, %d", s(S_T0), s(S_CS), j)
        e("s_and_b32 %s, %s, 3", s(S_T0), s(S_T0))
        e("s_lshl_b32 %s, %s, 13", s(S_T0), s(S_T0))
        e("s_add_u32 %s, %s, %s", s(S_OBR + 2 * (j - 1)), s(S_T0), s(S_OB))
        e("s_add_u32 %s, %s, 4096", s(S_OBR + 2 * (j - 1) + 1), s(S_OBR + 2 * (j - 1)))
    def oload(j):
        def g(f):
            def h():
                n = 8 * (j - 1) + f
                e("buffer_load_dwordx4 %s, %s, %s, %s offen offset:%d sc1", v(V_RO[n], 4), v(V_LIN), s(S_WS, 4), s(S_OBR + 2 * (j - 1) + (f >> 2)), (f % 4) * 1024)
                e.vm.issue("o%d" % n)
            return h
        return [g(f) for f in range(8)]
    pop(oload(1), 8)
    e.bar()
    pending += (oload(2) + oload(3)) if early else (grp_wo(e, 5) + oload(2) + grp_wo(e, 6) + oload(3) + grp_wo(e, 7))
    for r in p2_reads(8): e(r)
    if tile:
        assert early
        for ks in range(8, 16):
            e.waitv("o%d" % (ks - 8))
            nxt = p2_reads(ks + 1) if ks < 15 else [r for q in range(5) for r in a_read(0, 16 + q, V2_A + 4 * q)]
            kstep(ks, v(V_RO[ks - 8], 4), nxt, False)
        assert not pending
        remote_tiles(e, kstep)
        return
    for ks in range(8, 32):
        n = ks - 8
        if ks in (19, 23, 27) and not early:
            e.waitv(["wo%d" % (5 + (ks - 19) // 4), "o%d" % n])
            e.bar()
        else:
            e.waitv("o%d" % n)
        kstep(ks, v(V_RO[n], 4), p2_reads(ks + 1) if ks < 31 else [], False)
    assert not pending
    e.stamp()

def tail_addresses(e):
    L = v(V_LANE); A, B, C = 8, 9, 11
    e("v_bfe_u32 %s, %s, 4, 1", v(A), L)
    e("v_mul_u32_u24 %s, %d, %s", v(A), 8 * 10 * 512, v(A))
    e("v_and_b32 %s, 15, %s", v(B), L)
    e("v_lshrrev_b32 %s, 5, %s", v(C), L)
    e("v_lshl_add_u32 %s, %s, 4, %s", v(V_PA), v(C), v(B))
    e("v_lshl_add_u32 %s, %s, 4, %s", v(V_PA), v(V_PA), v(A))
    e("s_lshl_b32 %s, %s, 2", s(S_T0), s(S_RP))
    e("s_add_u32 %s, %s, %s", s(S_T0), s(S_T0), s(S_CS))
    e("s_lshl_b32 %s, %s, 3", s(S_PB), s(S_T0))
    e("s_lshl_b32 %s, %s, 1", s(S_T1), s(S_W))
    e("s_add_u32 %s, %s, %s", s(S_T1), s(S_PB), s(S_T1))
    e("s_lshl_b32 %s, %s, 3", s(S_T1), s(S_T1))
    e("s_add_u32 %s, %s, %s", s(S_T1), s(S_T1), s(S_HG))
    e("s_mul_i32 %s, %s, %d", s(S_T1), s(S_T1), 10 * 512)
    e("s_add_u32 %s, %s, 0x%x", s(S_PS0), s(S_T1), WS_PART)
    e("s_add_u32 %s, %s, 4096", s(S_PS1), s(S_PS0))
    e("s_lshl_b32 %s, %s, 2", s(S_T0), s(S_T0))
    e("s_add_u32 %s, %s, %s", s(S_T3), s(S_T0), s(S_W))
    e("s_lshl_b32 %s, %s, 3", s(S_T3), s(S_T3))
    e("s_add_u32 %s, %s, %s", s(S_T3), s(S_T3), s(S_HG))
    e("s_lshl_b32 %s, %s, 7", s(S_T3), s(S_T3))
    e("s_add_u32 %s, %s, 0x%x", s(S_T3), s(S_T3), WS_F2)
    e("v_mov_b32 %s, %s", v(V_F2O), s(S_T3))
    e("s_lshr_b32 %s, %s, 1", s(S_T3), s(S_HG))
    e("s_add_u32 %s, %s, %s", s(S_T3), s(S_T0), s(S_T3))
    e("s_lshl_b32 %s, %s, 10", s(S_T3), s(S_T3))
    e("s_add_u32 %s, %s, 0x%x", s(S_T3), s(S_T3), WS_F2)
    if e.o.get("tile2"):
        e("s_lshr_b32 %s, %s, 1", s(S_T2), s(S_W))
        e("s_lshl_b32 %s, %s, 17", s(S_T2), s(S_T2))
        e("s_add_u32 %s, %s, %s", s(S_T3), s(S_T3), s(S_T2))
    e("v_and_b32 %s, 7, %s", v(A), L)
    e("v_lshlrev_b32 %s, 7, %s", v(A), v(A))
    e("v_add_u32 %s, %s, %s", v(V_F2P), s(S_T3), v(A))
    e("v_mov_b32 %s, %s", v(V_N2V), s(S_N2))
    e("v_mul_u32_u24 %s, 5120, %s", v(A), v(C))
    e("v_and_b32 %s, 31, %s", v(B), L)
    e("v_lshl_add_u32 %s, %s, 4, %s", v(V_P3L), v(B), v(A))
    e("s_add_u32 %s, %s, %s", s(S_T0), s(S_PB), s(S_HG))
    e("s_mul_i32 %s, %s, %d", s(S_T0), s(S_T0), 8 * 5120)
    e("s_add_u32 %s, %s, 0x%x", s(S_T0), s(S_T0), WS_PART)
    e("s_mul_i32 %s, %s, 3", s(S_T1), s(S_W))
    e("s_cmp_eq_u32 %s, 3", s(S_W))
    e("s_cselect_b32 %s, 8, %s", s(S_T1), s(S_T1))
    e("s_lshl_b32 %s, %s, 9", s(S_T2), s(S_T1))
    e("s_add_u32 %s, %s, %s", s(S_P3B), s(S_T0), s(S_T2))
    e("v_and_b32 %s, 15, %s", v(A), L)
    e("v_mul_u32_u24 %s, 1280, %s", v(A), v(A))
    e("v_bfe_u32 %s, %s, 4, 1", v(B), L)
    e("v_lshl_add_u32 %s, %s, 3, %s", v(A), v(B), v(A))
    e("v_lshl_add_u32 %s, %s, 4, %s", v(V_OUT), v(C), v(A))
    e("s_lshl_b32 %s, %s, 3", s(S_T2), s(S_RP))
    e("s_add_u32 %s, %s, %s", s(S_T2), s(S_T2), s(S_HG))
    e("s_mul_i32 %s, %s, %d", s(S_T2), s(S_T2), 16 * 1280)
    e("s_mul_i32 %s, %s, 320", s(S_T3), s(S_CS))
    e("s_add_u32 %s, %s, %s", s(S_T2), s(S_T2), s(S_T3))
    e("s_lshl_b32 %s, %s, 5", s(S_T1), s(S_T1))
    e("s_add_u32 %s, %s, %s", s(S_OUTB), s(S_T2), s(S_T1))

def pack_store(e, nt, m, tag):
    ch = 2 * nt + m
    pk = 168 + 8 * (nt % 4) + 4 * m
    for d in range(4):
        r0 = V2_ACC + 16 * nt + 8 * m + 2 * d
        e("v_cvt_pk_bf16_f32 %s, %s, %s", v(pk + d), v(r0), v(r0 + 1))
    e("buffer_store_dwordx4 %s, %s, %s, %s offen offset:%d sc1", v(pk, 4), v(V_PA), s(S_WS, 4), s(S_PS0 if ch < 8 else S_PS1), (ch % 8) * 512)
    e.vm.issue(tag)

def a_read(nt, lg_, reg):
    pg = (13 + lg_) % 32
    base, rel = (0, pg) if pg < 13 else ((1, pg - 13) if pg < 25 else (2, pg - 25))
    return ["ds_read_b64_tr_b16 %s, %s offset:%d" % (v(reg + 2 * j, 2), v(V_RWO + base), rel * 5120 + 8 * j * 320 + 64 * nt) for j in range(2)]

def p3_loads(e, nch):
    for c in range(nch):
        for i in range(4):
            e("s_add_u32 %s, %s, %d", s(S_OFF), s(S_P3B), 2 * i * 5120 + c * 512)
            e("buffer_load_dwordx4 %s, %s, %s, %s offen sc1", v(64 + 16 * c + 4 * i, 4), v(V_P3L), s(S_WS, 4), s(S_OFF))

def p3_reduce(e, c):
    r = 64 + 16 * c; acc = 128 + 8 * c
    for d in range(4):
        e("v_dot2_f32_bf16 %s, %s, %s, 0", v(acc + 2 * d), v(r + d), s(S_T0))
        e("v_dot2_f32_bf16 %s, %s, %s, 0", v(acc + 2 * d + 1), v(r + d), s(S_T1))
    for i in range(1, 4):
        for d in range(4):
            e("v_dot2_f32_bf16 %s, %s, %s, %s", v(acc + 2 * d), v(r + 4 * i + d), s(S_T0), v(acc + 2 * d))
            e("v_dot2_f32_bf16 %s, %s, %s, %s", v(acc + 2 * d + 1), v(r + 4 * i + d), s(S_T1), v(acc + 2 * d + 1))
    e("s_nop 3")
    for d in range(4): e("v_permlane32_swap_b32 %s, %s", v(acc + d), v(acc + 4 + d))
    e("s_nop 1")
    for d in range(4): e("v_add_f32 %s, %s, %s", v(acc + d), v(acc + d), v(acc + 4 + d))
    e("v_cvt_pk_bf16_f32 %s, %s, %s", v(acc), v(acc), v(acc + 1))
    e("v_cvt_pk_bf16_f32 %s, %s, %s", v(acc + 1), v(acc + 2), v(acc + 3))
    e("buffer_store_dwordx2 %s, %s, %s, %s offen offset:%d", v(acc, 2), v(V_OUT), s(S_OUT, 4), s(S_OUTB), 32 * c)

def flag_store(e, vaddr, off):
    e("s_mov_b64 exec, 1")
    e("buffer_store_dword %s, %s, %s, 0 offen offset:0 sc1" if not off else "buffer_store_dword %s, %s, %s, %s offen sc1",
      *((v(V_N2V), v(vaddr), s(S_WS, 4)) if not off else (v(V_N2V), v(vaddr), s(S_WS, 4), s(off))))
    e("s_mov_b64 exec, -1")

def remote_tiles(e, kstep):
    D = 5
    lg = Cnt()
    seq = [(nt, 16 + j) for nt in range(5) for j in range(16)]
    def reg(q): return V2_A + 4 * (q % 10)
    for q in range(D):
        lg.issue("a%d" % q); lg.issue("a%d" % q)
    for q, (nt, ks) in enumerate(seq):
        j = ks - 16
        if nt == 0: e.waitv("o%d" % (ks - 8))
        e("s_waitcnt lgkmcnt(%d)", min(15, lg.after("a%d" % q)))
        e("v_mfma_f32_32x32x16_bf16 %s, %s, %s, %s", v(V2_ACC + 16 * nt, 16), v(reg(q), 4), v(V_RO[ks - 8], 4), v(V2_ACC + 16 * nt, 16))
        if q + D < len(seq):
            n2, k2 = seq[q + D]
            for r in a_read(n2, k2, reg(q + D)): e(r); lg.issue("a%d" % (q + D))
        if nt >= 1 and j == 4: pack_store(e, nt - 1, 0, "pst%d" % (nt - 1))
        if nt >= 1 and j == 8: pack_store(e, nt - 1, 1, "pst%d" % (nt - 1))
    e.stamp()

def consts_p3(e):
    e("s_mov_b32 %s, 0x00003f80", s(S_T0))
    e("s_mov_b32 %s, 0x3f800000", s(S_T1))

def epoch2(e):
    e("s_or_b32 %s, %s, %s", s(S_T2), s(S_HG), s(S_W))
    e("s_cmp_lg_u32 %s, 0", s(S_T2))
    e("s_cbranch_scc1 L_noe2")
    e("s_lshl_b32 %s, %s, 4", s(S_T2), s(S_PB))
    e("s_add_u32 %s, %s, 0x%x", s(S_T2), s(S_T2), WS_E2)
    e("v_mov_b32 v8, %s", s(S_T2))
    e("s_mov_b64 exec, 1")
    e("buffer_store_dword %s, v8, %s, 0 offen sc1", v(V_N2V), s(S_WS, 4))
    e("s_mov_b64 exec, -1")
    e.label("L_noe2")

def tail1(e):
    e("s_nop 7\ns_nop 3")
    pack_store(e, 4, 0, "pst4"); pack_store(e, 4, 1, "pst4")
    e.waitv("pst4")
    e.stamp()
    flag_store(e, V_F2O, 0)
    poll(e, "L_poll2", V_F2P, S_N2, 8)
    e.stamp()
    e("s_cmp_ge_u32 %s, 2", s(S_W))
    e("s_cbranch_scc1 L_p3_two")
    p3_loads(e, 3); consts_p3(e)
    e("s_waitcnt vmcnt(0)")
    e.stamp("fine");
    for c in range(3): p3_reduce(e, c)
    e("s_branch L_p3_done")
    e.label("L_p3_two")
    p3_loads(e, 2); consts_p3(e)
    e("s_waitcnt vmcnt(0)")
    if e.o.get("fine") and e.o.get("stamps"): e.nst -= 1
    e.stamp("fine")
    for c in range(2): p3_reduce(e, c)
    e.label("L_p3_done")
    epoch2(e)
    e.stamp()
    if e.o.get("fine"):
        e("s_waitcnt vmcnt(0)")
        e.stamp()

def tail2(e):
    e.waitv("pst2")
    flag_store(e, V_F2O, 0)
    e("s_mov_b32 %s, 0x%x", s(S_T3), 1 << 17)
    e("s_nop 7")
    pack_store(e, 4, 0, "pst4"); pack_store(e, 4, 1, "pst4")
    e.waitv("pst4")
    flag_store(e, V_F2O, S_T3)
    e.stamp()
    poll(e, "L_poll2", V_F2P, S_N2, 8)
    e.stamp()
    e("s_cmp_ge_u32 %s, 2", s(S_W))
    e("s_cbranch_scc1 L_p3_two")
    p3_loads(e, 3); consts_p3(e)
    e("s_waitcnt vmcnt(0)")
    for c in range(3): p3_reduce(e, c)
    e("s_branch L_p3_done")
    e.label("L_p3_two")
    p3_loads(e, 2); consts_p3(e)
    e("s_waitcnt vmcnt(0)")
    for c in range(2): p3_reduce(e, c)
    e.label("L_p3_done")
    epoch2(e)
    e.stamp()

def partials(e):
    T = V_T; L = v(V_LANE)
    e("v_bfe_u32 %s, %s, 4, 1", v(T), L)
    e("v_mul_u32_u24 %s, %d, %s", v(T), 8 * 10 * 512, v(T))
    e("v_and_b32 %s, 15, %s", v(T + 1), L)
    e("v_lshrrev_b32 %s, 5, %s", v(T + 2), L)
    e("v_lshl_add_u32 %s, %s, 4, %s", v(T + 1), v(T + 2), v(T + 1))
    e("v_lshl_add_u32 %s, %s, 4, %s", v(T), v(T + 1), v(T))
    e("s_lshl_b32 %s, %s, 2", s(S_T0), s(S_RP))
    e("s_add_u32 %s, %s, %s", s(S_T0), s(S_T0), s(S_CS))
    e("s_lshl_b32 %s, %s, 3", s(S_PB), s(S_T0))
    e("s_lshl_b32 %s, %s, 1", s(S_T1), s(S_W))
    e("s_add_u32 %s, %s, %s", s(S_T1), s(S_PB), s(S_T1))
    e("s_lshl_b32 %s, %s, 3", s(S_T1), s(S_T1))
    e("s_add_u32 %s, %s, %s", s(S_T1), s(S_T1), s(S_HG))
    e("s_mul_i32 %s, %s, %d", s(S_T1), s(S_T1), 10 * 512)
    e("s_add_u32 %s, %s, 0x%x", s(S_T1), s(S_T1), WS_PART)
    e("s_add_u32 %s, %s, 4096", s(S_T2), s(S_T1))
    e("s_lshl_b32 %s, %s, 2", s(S_T0), s(S_T0))
    e("s_add_u32 %s, %s, %s", s(S_T3), s(S_T0), s(S_W))
    e("s_lshl_b32 %s, %s, 3", s(S_T3), s(S_T3))
    e("s_add_u32 %s, %s, %s", s(S_T3), s(S_T3), s(S_HG))
    e("s_lshl_b32 %s, %s, 7", s(S_T3), s(S_T3))
    e("s_add_u32 %s, %s, 0x%x", s(S_T3), s(S_T3), WS_F2)
    e("v_mov_b32 %s, %s", v(V_TM + 7), s(S_T3))
    e("s_lshr_b32 %s, %s, 1", s(S_T3), s(S_HG))
    e("s_add_u32 %s, %s, %s", s(S_T3), s(S_T0), s(S_T3))
    e("s_lshl_b32 %s, %s, 10", s(S_T3), s(S_T3))
    e("s_add_u32 %s, %s, 0x%x", s(S_T3), s(S_T3), WS_F2)
    e("v_and_b32 %s, 7, %s", v(T + 3), L)
    e("v_lshlrev_b32 %s, 7, %s", v(T + 3), v(T + 3))
    e("v_add_u32 %s, %s, %s", v(V_TM + 6), s(S_T3), v(T + 3))
    e("v_mov_b32 %s, %s", v(V_TM + 8), s(S_N2))
    for nt in range(5):
        for m in range(2):
            ch = 2 * nt + m
            for d in range(4):
                r0 = V2_ACC + 16 * nt + 8 * m + 2 * d
                e("v_cvt_pk_bf16_f32 %s, %s, %s", v(V_PK + 4 * ch + d), v(r0), v(r0 + 1))
            e("buffer_store_dwordx4 %s, %s, %s, %s offen offset:%d sc1", v(V_PK + 4 * ch, 4), v(T), s(S_WS, 4), s(S_T1 if ch < 8 else S_T2), (ch % 8) * 512)
            e.vm.issue("pst")
    e.waitv("pst")
    e.stamp()
    e("s_mov_b64 exec, 1")
    e("buffer_store_dword %s, %s, %s, 0 offen sc1", v(V_TM + 8), v(V_TM + 7), s(S_WS, 4)); e.vm.issue("f2")
    poll(e, "L_poll2", V_TM + 6, S_N2, 8)
    e.stamp()

def phase3(e):
    T = V_T; L = v(V_LANE)
    e("v_lshrrev_b32 %s, 5, %s", v(T), L)
    e("v_mul_u32_u24 %s, 5120, %s", v(T + 1), v(T))
    e("v_and_b32 %s, 31, %s", v(T + 2), L)
    e("v_lshl_add_u32 %s, %s, 4, %s", v(T + 1), v(T + 2), v(T + 1))
    e("s_add_u32 %s, %s, %s", s(S_T0), s(S_PB), s(S_HG))
    e("s_mul_i32 %s, %s, %d", s(S_T0), s(S_T0), 8 * 5120)
    e("s_add_u32 %s, %s, 0x%x", s(S_T0), s(S_T0), WS_PART)
    e("s_mul_i32 %s, %s, 3", s(S_T1), s(S_W))
    e("s_cmp_eq_u32 %s, 3", s(S_W))
    e("s_cselect_b32 %s, 8, %s", s(S_T1), s(S_T1))
    e("s_lshl_b32 %s, %s, 9", s(S_T2), s(S_T1))
    e("s_add_u32 %s, %s, %s", s(S_T0), s(S_T0), s(S_T2))
    R = 64
    for c in range(3):
        if c == 2:
            e("s_cmp_ge_u32 %s, 2", s(S_W))
            e("s_cbranch_scc1 L_p3_two")
        for i in range(4):
            e("s_add_u32 %s, %s, %d", s(S_OFF), s(S_T0), 2 * i * 5120 + c * 512)
            e("buffer_load_dwordx4 %s, %s, %s, %s offen sc1", v(R + 16 * c + 4 * i, 4), v(T + 1), s(S_WS, 4), s(S_OFF))
    e.label("L_p3_two")
    e("v_and_b32 %s, 15, %s", v(T + 3), L)
    e("v_mul_u32_u24 %s, 1280, %s", v(T + 3), v(T + 3))
    e("v_bfe_u32 %s, %s, 4, 1", v(T + 4), L)
    e("v_lshl_add_u32 %s, %s, 3, %s", v(T + 3), v(T + 4), v(T + 3))
    e("v_lshl_add_u32 %s, %s, 4, %s", v(T + 3), v(T), v(T + 3))
    e("s_lshl_b32 %s, %s, 3", s(S_T2), s(S_RP))
    e("s_add_u32 %s, %s, %s", s(S_T2), s(S_T2), s(S_HG))
    e("s_mul_i32 %s, %s, %d", s(S_T2), s(S_T2), 16 * 1280)
    e("s_mul_i32 %s, %s, 320", s(S_T3), s(S_CS))
    e("s_add_u32 %s, %s, %s", s(S_T2), s(S_T2), s(S_T3))
    e("s_lshl_b32 %s, %s, 5", s(S_T1), s(S_T1))
    e("s_add_u32 %s, %s, %s", s(S_T2), s(S_T2), s(S_T1))
    e("s_mov_b32 %s, 0x00003f80", s(S_T0))
    e("s_mov_b32 %s, 0x3f800000", s(S_T1))
    def reduce(c):
        r = R + 16 * c; acc = 128 + 8 * c
        for d in range(4):
            e("v_dot2_f32_bf16 %s, %s, %s, 0", v(acc + 2 * d), v(r + d), s(S_T0))
            e("v_dot2_f32_bf16 %s, %s, %s, 0", v(acc + 2 * d + 1), v(r + d), s(S_T1))
        for i in range(1, 4):
            for d in range(4):
                e("v_dot2_f32_bf16 %s, %s, %s, %s", v(acc + 2 * d), v(r + 4 * i + d), s(S_T0), v(acc + 2 * d))
                e("v_dot2_f32_bf16 %s, %s, %s, %s", v(acc + 2 * d + 1), v(r + 4 * i + d), s(S_T1), v(acc + 2 * d + 1))
        e("s_nop 3")
        for d in range(4): e("v_permlane32_swap_b32 %s, %s", v(acc + d), v(acc + 4 + d))
        e("s_nop 1")
        for d in range(4): e("v_add_f32 %s, %s, %s", v(acc + d), v(acc + d), v(acc + 4 + d))
        e("v_cvt_pk_bf16_f32 %s, %s, %s", v(acc), v(acc), v(acc + 1))
        e("v_cvt_pk_bf16_f32 %s, %s, %s", v(acc + 1), v(acc + 2), v(acc + 3))
        e("buffer_store_dwordx2 %s, %s, %s, %s offen offset:%d", v(acc, 2), v(T + 3), s(S_OUT, 4), s(S_T2), 32 * c)
    e("s_waitcnt vmcnt(0)")
    reduce(0); reduce(1)
    e("s_cmp_ge_u32 %s, 2", s(S_W))
    e("s_cbranch_scc1 L_p3_skip")
    reduce(2)
    e.label("L_p3_skip")
    e("s_or_b32 %s, %s, %s", s(S_T0), s(S_HG), s(S_W))
    e("s_cmp_lg_u32 %s, 0", s(S_T0))
    e("s_cbranch_scc1 L_noe2")
    e("s_lshl_b32 %s, %s, 4", s(S_T0), s(S_PB))
    e("s_add_u32 %s, %s, 0x%x", s(S_T0), s(S_T0), WS_E2)
    e("v_mov_b32 %s, %s", v(T), s(S_T0))
    e("s_mov_b64 exec, 1")
    e("buffer_store_dword %s, %s, %s, 0 offen sc1", v(V_TM + 8), v(T), s(S_WS, 4))
    e("s_mov_b64 exec, -1")
    e.label("L_noe2")
    e.stamp()

def dump_stamps(e):
    if not e.o.get("stamps"): return
    n = e.nst
    e("s_waitcnt lgkmcnt(0) vmcnt(0)")
    e("s_lshl_b32 %s, s2, 2", s(S_T0))
    e("s_add_u32 %s, %s, %s", s(S_T0), s(S_T0), s(S_W))
    e("s_lshl_b32 %s, %s, 7", s(S_T0), s(S_T0))
    e("s_add_u32 %s, %s, 0x%x", s(S_T0), s(S_T0), WS_STAMP)
    e("s_mov_b64 exec, 1")
    for i in range(n):
        e("v_mov_b32 v2, %s", s(S_STAMP + 2 * i))
        e("v_mov_b32 v3, %s", s(S_STAMP + 2 * i + 1))
        e("v_mov_b32 v4, %d", 8 * i)
        e("buffer_store_dwordx2 v[2:3], v4, %s, %s offen", s(S_WS, 4), s(S_T0))
        e("s_nop 1")

def build(opts):
    e = K(opts)
    e.raw("; Fused GQA block (q-projection, attention, output projection), one launch, 256 workgroups.")
    e.raw("; Kernarg (64 bytes, pointers): x, k_cache, v_cache, wq, wo, out, debug, ws")
    e.raw("; @launch grid=(256,1,1) block=(%d,1,1) lds=%d" % (512 if opts.get("ldr") else 256, LDS_BYTES))
    e.raw('.amdgcn_target "amdgcn-amd-amdhsa--gfx950"')
    e.raw(".text")
    e.raw(".globl %s" % NAME)
    e.raw(".p2align 8")
    e.raw(".type %s,@function" % NAME)
    e.label(NAME)
    prologue(e)
    addr_gemm1_dma(e)
    if opts.get("ldr"):
        e("s_cmp_eq_u32 %s, %d", s(S_ROLE), 0 if opts.get("ldr_first") else 1)
        e("s_cbranch_scc1 L_loader")
        e.skip_dma = True
    gemm1(e)
    attention(e)
    phase2(e)
    if opts.get("tile2"): tail2(e)
    elif opts.get("tile"): tail1(e)
    else:
        partials(e)
        phase3(e)
    dump_stamps(e)
    e.label("L_end")
    e("s_endpgm")
    if opts.get("ldr"): loader(e)
    e.raw("; NSTAMPS %d" % e.nst)
    return e.text() + KD.format(name=NAME, vgpr=256, sgpr=100, acc=256), e.nst

if __name__ == "__main__":
    out = sys.argv[1]
    opts = {}
    for k in sys.argv[2:]:
        if "=" in k: kk, vv = k.split("="); opts[kk] = vv
        else: opts[k] = True
    t, n = build(opts)
    open(out, "w").write(t)
    print("wrote", out, "stamps:", n, "lines:", t.count("\n"))
```

```python
import sys, struct
from asm import Emit, v, a, s, KD

NAME = "standalone__gqa_block_cached__near_ridge_kernel"
X_BYTES, W_BYTES, KV_BYTES, OUT_BYTES, WS_BYTES = 1310720, 5242880, 8388608, 1310720, 268435456
WS_O    = 0
WS_PART = 16 << 20
WS_E1   = 32 << 20
WS_E2   = WS_E1 + 64 * 128
WS_F1   = WS_E1 + (1 << 16)
WS_F2   = WS_E1 + (2 << 16) + (1 << 17)
WS_F2B  = WS_F2 + (1 << 17)
WS_STAMP = 64 << 20
SCALE_LOG2E = (128 ** -0.5) * 1.4426950408889634
def f32bits(x): return struct.unpack("<I", struct.pack("<f", x))[0]

SLOT = 32768
L_K, L_V = 0, 32768
LDS_BYTES = 163840

S_X, S_WQ, S_K, S_V, S_WO, S_OUT, S_WS = 8, 12, 16, 20, 24, 28, 32
S_W, S_HG, S_RP, S_CS, S_H = 36, 37, 38, 39, 40
S_T0, S_T1, S_T2, S_T3 = 41, 42, 43, 44
S_WQ0, S_X0, S_KV0, S_LW, S_OFF, S_LW8 = 45, 46, 47, 48, 49, 50
S_WOB = 52
S_N1, S_N2 = 56, 57
S_OB, S_PB, S_SPIN = 58, 59, 60
S_SIG, S_TAU = 51, 61
S_PS0, S_PS1, S_P3B, S_OUTB = 4, 5, 6, 7
S_STAMP = 64

V_LANE = 1
V_T = 2
V_DWQ, V_DX, V_DK, V_DV = 16, 20, 24, 28
V_EP = 29
V_LIN = 30
V_RK, V_RV = 32, 40
V_DWO = 44
V_RWO = 49
V_TM = 52
V_TCH, V_TCW = 62, 63
S_ROLE = 97
S_OS0, S_OS1 = 98, 99
S_WOT = 96
S_OBR = 90
V_ACC, V_A, V_B, V_Q, V_S, V_P = 64, 128, 160, 168, 200, 232
V_RG = 200
V2_ACC, V2_A = 64, 200
V_PK = 200
V_PA, V_P3L, V_OUT, V_F2P, V_F2O, V_N2V = 2, 3, 4, 5, 6, 7
V_RO = [168 + 4 * i for i in range(8)] + [144 + 4 * i for i in range(6)] + [240 + 4 * i for i in range(4)] + [16, 20, 24] + [32, 36, 40]

class Cnt:
    def __init__(self): self.ops = []
    def issue(self, tag): self.ops.append(tag)
    def after(self, tags):
        if isinstance(tags, str): tags = [tags]
        last = max(i for i, t in enumerate(self.ops) if t in tags)
        return len(self.ops) - 1 - last

class K(Emit):
    def __init__(self, opts):
        super().__init__()
        self.o = opts; self.vm = Cnt(); self.lg = Cnt(); self.nst = 0; self.nbar = 0; self.skip_dma = False
    def stamp(self, kind="main"):
        if not self.o.get("stamps"): return
        if self.o.get("g1st") and kind == "main" and self.nst >= 13: return
        if kind == "g1" and not self.o.get("g1st"): return
        if kind == "fine" and not self.o.get("fine"): return
        if kind == "p2" and not self.o.get("p2st"): return
        self.ncall = getattr(self, "ncall", 0) + 1
        if self.o.get("p2st") and 1 < self.ncall <= 5: return
        if self.o.get("g1st") and kind == "late": return
        self("%s %s", "s_memtime" if self.o.get("cyc") else "s_memrealtime", s(S_STAMP + 2 * self.nst, 2)); self.nst += 1
    def waitv(self, tags, extra=""):
        if self.skip_dma:
            tl = [tags] if isinstance(tags, str) else tags
            tl = [t for t in tl if not (t[:2] in ("st", "wo") or t in ("K", "V"))]
            if not tl:
                if extra: self("s_waitcnt" + extra)
                return
            tags = tl
        n = self.vm.after(tags); assert n <= 63
        self("s_waitcnt vmcnt(%d)%s", n, extra)
    def waitl(self, tags):
        self("s_waitcnt lgkmcnt(%d)", min(15, self.lg.after(tags)))
    def ds(self, text, tag):
        self(text); self.lg.issue(tag)
    def dma(self, tag, vaddr, srd, soff_reg, imm):
        if (self.o.get("skipV") and srd == S_V) or (self.o.get("skipWO") and srd == S_WO) or (self.o.get("skipK") and srd == S_K):
            self.vm.issue(tag + "_skipped"); self.vm.ops[-1] = tag; self("buffer_load_dword %s, %s, %s, 0 offen", v(V_T + 12), v(V_LIN), s(S_X, 4)); return
        aux = "nt " if (self.o.get("nt") and srd in (S_K, S_V)) or (self.o.get("ntw") and srd in (S_WQ, S_WO)) else ""
        self("buffer_load_dwordx4 %s, %s, %s offen offset:%d %slds", v(vaddr), s(srd, 4), s(soff_reg), imm, aux)
        self.vm.issue(tag)
    def bar(self):
        self("s_barrier"); self.nbar += 1

def prologue(e):
    e("s_cmp_ge_u32 s2, 256")
    e("s_cbranch_scc1 L_end")
    for (srd, off) in ((S_X, 0), (S_WQ, 24), (S_WS, 56), (S_K, 8), (S_V, 16), (S_WO, 32), (S_OUT, 40)):
        e("s_load_dwordx2 %s, s[0:1], %d", s(srd, 2), off)
    e("v_and_b32 %s, 63, v0", v(V_LANE))
    e("v_lshrrev_b32 %s, 6, v0", v(V_T))
    e("s_and_b32 %s, s2, 7", s(S_HG))
    e("s_lshr_b32 %s, s2, 3", s(S_T0))
    e("v_readfirstlane_b32 %s, %s", s(S_W), v(V_T))
    e("s_lshr_b32 %s, %s, 2", s(S_RP), s(S_T0))
    e("s_and_b32 %s, %s, 3", s(S_CS), s(S_T0))
    e("s_lshl_b32 %s, %s, 2", s(S_H), s(S_HG))
    e("s_add_u32 %s, %s, %s", s(S_H), s(S_H), s(S_CS))
    for (srd, size) in ((S_X, X_BYTES), (S_K, KV_BYTES), (S_V, KV_BYTES), (S_WQ, W_BYTES), (S_WO, W_BYTES),
                        (S_OUT, OUT_BYTES), (S_WS, WS_BYTES)):
        e("s_mov_b32 %s, 0x%x", s(srd + 2), size)
        e("s_mov_b32 %s, 0x20000", s(srd + 3))
    if e.o.get("ldr"):
        e("s_lshr_b32 %s, %s, 2", s(S_ROLE), s(S_W))
        e("s_and_b32 %s, %s, 3", s(S_W), s(S_W))

def addr_gemm1_dma(e):
    T = V_T; L = v(V_LANE)
    e("v_lshrrev_b32 %s, 4, %s", v(T), L)
    e("v_and_b32 %s, 15, %s", v(T + 1), L)
    e("v_lshlrev_b32 %s, 2, %s", v(T + 2), v(T))
    e("v_xor_b32 %s, %s, %s", v(T + 2), v(T + 1), v(T + 2))
    e("v_lshlrev_b32 %s, 4, %s", v(T + 2), v(T + 2))
    e("v_lshl_add_u32 %s, %s, 13, %s", v(V_DWQ), v(T), v(T + 2))
    e("v_lshl_add_u32 %s, %s, 8, %s", v(V_DV), v(T), v(T + 2))
    for i in range(1, 4): e("v_add_u32 %s, %d, %s", v(V_DWQ + i), i * 31744, v(V_DWQ))
    e("v_xor_b32 %s, %s, %s", v(T + 2), v(T + 1), v(T))
    e("v_lshlrev_b32 %s, 4, %s", v(T + 2), v(T + 2))
    e("v_lshl_add_u32 %s, %s, 8, %s", v(V_DK), v(T), v(T + 2))
    e("v_lshrrev_b32 %s, 3, %s", v(T + 3), L)
    e("v_and_b32 %s, 7, %s", v(T + 4), L)
    e("v_lshrrev_b32 %s, 1, %s", v(T + 5), v(T + 3))
    e("v_xor_b32 %s, %s, %s", v(T + 5), v(T + 4), v(T + 5))
    e("v_lshlrev_b32 %s, 4, %s", v(T + 5), v(T + 5))
    e("v_mul_u32_u24 %s, 1280, %s", v(T + 3), v(T + 3))
    e("v_add_u32 %s, %s, %s", v(V_DX), v(T + 3), v(T + 5))
    e("v_xor_b32 %s, 64, %s", v(T + 5), v(T + 5))
    e("v_add_u32 %s, %s, %s", v(T + 6), v(T + 3), v(T + 5))
    e("v_add_u32 %s, %d, %s", v(V_DX + 1), 9216, v(T + 6))
    e("v_add_u32 %s, %d, %s", v(V_DX + 2), 2 * 9216, v(V_DX))
    e("v_add_u32 %s, %d, %s", v(V_DX + 3), 3 * 9216, v(T + 6))
    for i in range(1, 4): e("v_xor_b32 %s, %d, %s", v(V_DK + i), 64 * i, v(V_DK))
    e("v_lshlrev_b32 %s, 4, %s", v(V_LIN), L)
    e("s_lshl_b32 %s, %s, 17", s(S_WQ0), s(S_W))
    e("s_lshl_b32 %s, %s, 8", s(S_T0), s(S_H))
    e("s_add_u32 %s, %s, %s", s(S_WQ0), s(S_WQ0), s(S_T0))
    e("s_lshl_b32 %s, %s, 2", s(S_T0), s(S_RP))
    e("s_add_u32 %s, %s, %s", s(S_T0), s(S_T0), s(S_W))
    e("s_mul_i32 %s, %s, %d", s(S_X0), s(S_T0), 32 * 1280)
    e("s_lshl_b32 %s, %s, 12", s(S_LW), s(S_W))
    e("s_lshl_b32 %s, %s, 13", s(S_LW8), s(S_W))
    if e.o.get("rot"):
        a_, b_, sa, sb = [int(x) for x in str(e.o.get("rotab", "1,3,0,0")).split(",")]
        e("s_lshr_b32 %s, %s, %d", s(S_SIG), s(S_CS), sb)
        e("s_mul_i32 %s, %s, %d", s(S_SIG), s(S_SIG), b_)
        e("s_lshr_b32 %s, %s, %d", s(S_T0), s(S_RP), sa)
        e("s_mul_i32 %s, %s, %d", s(S_T0), s(S_T0), a_)
        e("s_add_u32 %s, %s, %s", s(S_SIG), s(S_SIG), s(S_T0))
        for _ in range(3):
            e("s_cmp_ge_u32 %s, 10", s(S_SIG))
            e("s_cselect_b32 %s, 10, 0", s(S_T0))
            e("s_sub_u32 %s, %s, %s", s(S_SIG), s(S_SIG), s(S_T0))
    e("s_lshl_b32 %s, %s, 3", s(S_T0), s(S_RP))
    e("s_add_u32 %s, %s, %s", s(S_T0), s(S_T0), s(S_HG))
    e("s_lshl_b32 %s, %s, 7", s(S_T0), s(S_T0))
    e("s_add_u32 %s, %s, 0x%x", s(S_T0), s(S_T0), WS_E1)
    e("s_lshl_b32 %s, %s, 2", s(S_T1), s(S_RP))
    e("s_add_u32 %s, %s, %s", s(S_T1), s(S_T1), s(S_CS))
    e("s_lshl_b32 %s, %s, 7", s(S_T1), s(S_T1))
    e("s_add_u32 %s, %s, 0x%x", s(S_T1), s(S_T1), WS_E2)
    e("v_mov_b32 %s, %s", v(T), s(S_T0))
    e("v_mov_b32 %s, %s", v(T + 1), s(S_T1))
    e("v_cmp_eq_u32 vcc, 1, %s", L)
    e("s_nop 1")
    e("v_cndmask_b32 %s, %s, %s, vcc", v(V_TM), v(T), v(T + 1))

def addr_rest(e):
    T = V_T; L = v(V_LANE)
    HF, C32, NH, R, C, U, W2 = T, T + 1, T + 2, T + 3, T + 4, T + 5, T + 6
    e("v_lshrrev_b32 %s, 5, %s", v(HF), L)
    e("v_and_b32 %s, 31, %s", v(C32), L)
    e("v_bfe_u32 %s, %s, 4, 1", v(NH), L)
    e("v_bfe_u32 %s, %s, 2, 2", v(R), L)
    e("v_and_b32 %s, 3, %s", v(C), L)
    e("v_lshl_add_u32 %s, %s, 3, %s", v(U), v(HF), v(R))
    e("v_lshlrev_b32 %s, 8, %s", v(U), v(U))
    e("v_lshl_add_u32 %s, %s, 5, %s", v(U), v(NH), v(U))
    e("v_and_b32 %s, 1, %s", v(W2), v(C))
    e("v_lshl_add_u32 %s, %s, 4, %s", v(U), v(W2), v(U))
    e("v_lshrrev_b32 %s, 1, %s", v(W2), v(C))
    e("v_lshl_add_u32 %s, %s, 3, %s", v(U), v(W2), v(U))
    e("v_lshl_add_u32 %s, %s, 6, %s", v(V_RG), v(R), v(U))
    for t in range(1, 4): e("v_xor_b32 %s, %d, %s", v(V_RG + t), 64 * t, v(V_RG))
    e("v_bfe_u32 %s, %s, 1, 3", v(U), v(C32))
    e("v_xor_b32 %s, %s, %s", v(U), v(U), v(HF))
    e("v_lshlrev_b32 %s, 4, %s", v(U), v(U))
    e("v_lshl_add_u32 %s, %s, 7, %s", v(U), v(C32), v(U))
    e("s_add_u32 %s, %s, 16384", s(S_T1), s(S_LW))
    e("v_add_u32 %s, %s, %s", v(V_RG + 4), s(S_T1), v(U))
    for u in range(1, 4): e("v_xor_b32 %s, %d, %s", v(V_RG + 4 + u), 32 * u, v(V_RG + 4))
    for b in range(1, 3):
        for i in range(8): e("v_add_u32 %s, 0x%x, %s", v(V_RG + 8 * b + i), 65536 * b, v(V_RG + i))
    e("s_lshr_b32 %s, %s, 1", s(S_T0), s(S_W))
    e("s_lshl_b32 %s, %s, 14", s(S_T0), s(S_T0))
    e("v_lshl_add_u32 %s, %s, 2, %s", v(U), v(HF), v(R))
    e("v_lshlrev_b32 %s, 8, %s", v(W2), v(U))
    e("v_lshl_add_u32 %s, %s, 5, %s", v(W2), v(NH), v(W2))
    e("v_lshl_add_u32 %s, %s, 3, %s", v(W2), v(C), v(W2))
    e("v_lshl_add_u32 %s, %s, 6, %s", v(W2), v(R), v(W2))
    e("s_add_u32 %s, %s, %d", s(S_T1), s(S_T0), L_V)
    e("v_add_u32 %s, %s, %s", v(V_RV), s(S_T1), v(W2))
    for t in range(1, 4): e("v_xor_b32 %s, %d, %s", v(V_RV + t), 64 * t, v(V_RV))
    e("v_mul_u32_u24 %s, 320, %s", v(U), v(U))
    e("v_lshl_add_u32 %s, %s, 5, %s", v(U), v(NH), v(U))
    e("v_lshl_add_u32 %s, %s, 3, %s", v(V_RWO), v(C), v(U))
    e("v_add_u32 %s, %d, %s", v(V_RWO + 1), 13 * 5120, v(V_RWO))
    e("v_add_u32 %s, %d, %s", v(V_RWO + 2), 25 * 5120, v(V_RWO))
    e("v_and_b32 %s, 15, %s", v(U), v(C32))
    e("v_xor_b32 %s, %s, %s", v(U), v(U), v(HF))
    e("v_lshlrev_b32 %s, 4, %s", v(U), v(U))
    e("v_lshl_add_u32 %s, %s, 8, %s", v(U), v(C32), v(U))
    e("v_add_u32 %s, %s, %s", v(V_RK), s(S_T0), v(U))
    for st in range(1, 8): e("v_xor_b32 %s, %d, %s", v(V_RK + st), 32 * st, v(V_RK))
    for i in range(5):
        e("v_add_u32 %s, %d, %s", v(T), 64 * i, L)
        e("v_mul_u32_u24 %s, %d, %s", v(T + 1), 3277, v(T))
        e("v_lshrrev_b32 %s, 16, %s", v(T + 1), v(T + 1))
        e("v_mul_u32_u24 %s, 20, %s", v(T + 2), v(T + 1))
        e("v_sub_u32 %s, %s, %s", v(T + 2), v(T), v(T + 2))
        e("v_mul_u32_u24 %s, 1280, %s", v(T + 1), v(T + 1))
        e("v_lshl_add_u32 %s, %s, 4, %s", v(V_DWO + i), v(T + 2), v(T + 1))
        if i & 3: e("v_subrev_u32 %s, %d, %s", v(V_DWO + i), (i & 3) * 1024, v(V_DWO + i))
    e("s_lshr_b32 %s, %s, 1", s(S_T0), s(S_W))
    e("s_lshl_b32 %s, %s, 1", s(S_T1), s(S_RP))
    e("s_add_u32 %s, %s, %s", s(S_T0), s(S_T0), s(S_T1))
    e("s_lshl_b32 %s, %s, 5", s(S_T0), s(S_T0))
    e("s_add_u32 %s, %s, %s", s(S_T0), s(S_T0), s(S_H))
    e("s_lshl_b32 %s, %s, 14", s(S_KV0), s(S_T0))
    e("s_and_b32 %s, %s, 1", s(S_T0), s(S_W))
    e("s_lshl_b32 %s, %s, 13", s(S_T0), s(S_T0))
    e("s_add_u32 %s, %s, %s", s(S_KV0), s(S_KV0), s(S_T0))
    e("s_mul_i32 %s, %s, 320", s(S_T2), s(S_CS))
    e("s_mul_i32 %s, %s, %d", s(S_T3), s(S_W), 16 * 1280)
    e("s_add_u32 %s, %s, %s", s(S_T2), s(S_T2), s(S_T3))
    e("s_mul_i32 %s, %s, %d", s(S_T3), s(S_HG), 512 * 1280)
    e("s_add_u32 %s, %s, %s", s(S_T2), s(S_T2), s(S_T3))
    for j in range(4):
        e("s_add_u32 %s, %s, %d", s(S_T0), s(S_CS), j)
        e("s_and_b32 %s, %s, 3", s(S_T0), s(S_T0))
        e("s_mul_i32 %s, %s, %d", s(S_T0), s(S_T0), 128 * 1280)
        e("s_add_u32 %s, %s, %s", s(S_WOB + j), s(S_T0), s(S_T2))
    e("v_lshlrev_b32 %s, 7, %s", v(V_TCH), L)
    e("v_min_u32 %s, 39, %s", v(V_TCW), L)
    e("v_lshlrev_b32 %s, 7, %s", v(V_TCW), v(V_TCW))
    e("s_lshr_b32 %s, s2, 3", s(S_T0))
    e("s_lshl_b32 %s, %s, 2", s(S_T0), s(S_T0))
    e("s_add_u32 %s, %s, %s", s(S_T0), s(S_T0), s(S_W))
    e("s_lshl_b32 %s, %s, 2", s(S_T0), s(S_T0))
    e("s_lshl_b32 %s, %s, 9", s(S_T1), s(S_HG))
    e("s_add_u32 %s, %s, %s", s(S_T0), s(S_T0), s(S_T1))
    e("s_mul_i32 %s, %s, 1280", s(S_WOT), s(S_T0))
    e("s_lshl_b32 %s, %s, 3", s(S_T0), s(S_RP))
    e("s_add_u32 %s, %s, %s", s(S_T0), s(S_T0), s(S_HG))
    e("s_lshl_b32 %s, %s, 2", s(S_T0), s(S_T0))
    e("s_add_u32 %s, %s, %s", s(S_T0), s(S_T0), s(S_W))
    e("s_lshl_b32 %s, %s, 15", s(S_OB), s(S_T0))

def grp_stage(e, st):
    if e.skip_dma: return []
    slot = st % 5
    rot = e.o.get("rot")
    def wq(i):
        def f():
            if i == 0:
                e("s_add_u32 m0, %s, %d", s(S_LW), slot * SLOT)
                if rot:
                    e("s_lshl_b32 %s, %s, 19", s(S_OFF), s(S_SIG))
                    e("s_add_u32 %s, %s, %s", s(S_OFF), s(S_OFF), s(S_WQ0))
                else:
                    e("s_add_u32 %s, %s, %d", s(S_OFF), s(S_WQ0), st * 64 * 8192)
            e.dma("st%d" % st, V_DWQ + i, S_WQ, S_OFF, i * 1024)
        return f
    def xx(i):
        def f():
            if i == 0:
                e("s_add_u32 m0, %s, %d", s(S_LW), slot * SLOT + 16384)
                if rot:
                    e("s_lshl_b32 %s, %s, 7", s(S_OFF), s(S_SIG))
                    e("s_add_u32 %s, %s, %s", s(S_OFF), s(S_OFF), s(S_X0))
                else:
                    e("s_add_u32 %s, %s, %d", s(S_OFF), s(S_X0), st * 128)
            e.dma("st%d" % st, V_DX + i, S_X, S_OFF, i * 1024)
            if i == 3 and rot:
                e("s_add_u32 %s, %s, 1", s(S_SIG), s(S_SIG))
                e("s_cmp_eq_u32 %s, 10", s(S_SIG))
                e("s_cselect_b32 %s, 0, %s", s(S_SIG), s(S_SIG))
        return f
    return [wq(i) for i in range(4)] + [xx(i) for i in range(4)]

def grp_kv(e, which):
    if e.skip_dma: return []
    srd, base, tag = (S_K, L_K, "K") if which == "K" else (S_V, L_V, "V")
    def f(i):
        def g():
            if i % 4 == 0:
                e("s_add_u32 m0, %s, %d", s(S_LW8), base + (i // 4) * 4096)
                e("s_add_u32 %s, %s, %d", s(S_OFF), s(S_KV0), (i // 4) * 4096)
            e.dma(tag, (V_DK + (i & 3)) if which == "K" else V_DV, srd, S_OFF, (i & 3) * 1024)
        return g
    return [f(i) for i in range(8)]

def grp_wo(e, st):
    if e.skip_dma: return []
    def f(i):
        def g():
            if i == 0:
                e("s_add_u32 %s, %s, %d", s(S_T0), s(S_W), 13 + 4 * st)
                e("s_and_b32 %s, %s, 31", s(S_T0), s(S_T0))
                e("s_mul_i32 %s, %s, 5120", s(S_T0), s(S_T0))
                e("s_mov_b32 m0, %s", s(S_T0))
                e("s_add_u32 %s, %s, %d", s(S_OFF), s(S_WOB + (st >> 1)), (st & 1) * 4 * 16 * 1280)
            if i == 4:
                e("s_add_u32 m0, %s, 4096", s(S_T0))
                e("s_nop 0")
            e.dma("wo%d" % st, V_DWO + i, S_WO, S_OFF, (i & 3) * 1024)
        return g
    return [f(i) for i in range(5)]

def g1_reads(ks):
    st, s4, b = ks >> 2, ks & 3, ks & 1
    slot = st % 5
    base, rel = V_RG + 8 * (slot // 2), (slot % 2) * SLOT
    r = ["ds_read_b128 %s, %s offset:%d" % (v(V_B + 4 * b, 4), v(base + 4 + s4), rel)]
    for t in range(4):
        for j in range(2):
            r.append("ds_read_b64_tr_b16 %s, %s offset:%d" % (v(V_A + 16 * b + 4 * t + 2 * j, 2), v(base + t), rel + s4 * 4096 + j * 1024))
    return r

def grp_touch(e, which):
    if e.skip_dma: return []
    nt = "nt" if e.o.get("nt") else ""
    def f():
        if which in "KV": e("buffer_load_dword %s, %s, %s, %s offen %s", v(V_T + 12), v(V_TCH), s(S_V if which == "V" else S_K, 4), s(S_KV0), nt)
        else: e("buffer_load_dword %s, %s, %s, %s offen %s", v(V_T + 12), v(V_TCW), s(S_WO, 4), s(S_WOT), nt)
        e.vm.issue(which + "t")
    return [f]

def pop(q, n):
    for _ in range(n):
        if q: q.pop(0)()

def gemm1(e):
    o = e.o
    e("s_waitcnt lgkmcnt(0)")
    e.stamp()
    def ep(): e("buffer_load_dword %s, %s, %s, 0 offen sc1", v(V_EP), v(V_TM), s(S_WS, 4)); e.vm.issue("ep")
    if not o.get("eplate"): ep()
    for st in range(2):
        for f in grp_stage(e, st): f()
    if o.get("eplate"): ep()
    addr_rest(e)
    if o.get("tlb"):
        e("s_lshl_b32 %s, %s, 2", s(S_T0), s(S_RP))
        e("s_add_u32 %s, %s, %s", s(S_T0), s(S_T0), s(S_CS))
        e("s_mul_i32 %s, %s, %d", s(S_T0), s(S_T0), 64 * 5120)
        e("s_add_u32 %s, %s, 0x%x", s(S_T0), s(S_T0), WS_PART)
        e("s_mul_i32 %s, %s, %d", s(S_T1), s(S_RP), 128 * 1280)
        e("s_mov_b64 exec, 1")
        e("v_mov_b32 v14, 0")
        for (srd, so) in ((S_WS, S_OB), (S_WS, S_T0), (S_OUT, S_T1), (S_K, S_KV0), (S_V, S_KV0), (S_WO, S_WOB)):
            e("buffer_load_dword v15, v14, %s, %s offen", s(srd, 4), s(so)); e.vm.issue("tlb")
        e("s_mov_b64 exec, -1")
    e.waitv("st0")
    e.bar()
    e.stamp()
    for r in g1_reads(0): e(r)
    plan = {b: grp_stage(e, b + 3) for b in range(-1, 7)}
    plan[7] = grp_kv(e, "K") + (grp_touch(e, "V") if o.get("vt") else [])
    if "kt_b" in o:
        b_ = int(o["kt_b"]); plan[b_] = grp_touch(e, "K") + plan[b_]
    if "vt_b" in o:
        b_ = int(o["vt_b"]); plan[b_] = grp_touch(e, "V") + plan[b_]
    if "wot_b" in o:
        b_ = int(o["wot_b"]); plan[b_] = plan[b_] + grp_touch(e, "wo")
    plan[8] = grp_kv(e, "V") + (grp_touch(e, "wo") if o.get("wot") else [])
    plan[9] = grp_wo(e, 0) + grp_wo(e, 1) + (grp_touch(e, "wo") if o.get("wot2") else [])
    if o.get("schedB"): plan[9] = []
    pending = list(plan[-1])
    NK = 40
    for ks in range(NK):
        st, s4, b = ks >> 2, ks & 3, ks & 1
        last = ks == NK - 1
        boundary = (s4 == 3)
        nxt = g1_reads(ks + 1) if not last else []
        if boundary:
            if e.skip_dma and st == 2: e.waitv("ep")
            soft = o.get("softb") and not last
            e.waitv("st%d" % (st + 1) if not last else "K", "" if soft else " lgkmcnt(0)")
            e.bar()
            e.stamp("g1")
            pending += plan[st]
        if last:
            nxt = [kread_text(kt, st_, 2 * st_ + kt) for st_ in range(2) for kt in range(2)]
        left = 3 - ((ks + 1) & 3) + 1 if ks >= 3 else 3 - ks
        want = 0 if last else -(-len(pending) // max(1, left))
        slots = {1: (1,), 2: (1, 3), 3: (1, 2, 3)}.get(min(want, 3), ())
        for t in range(4):
            if not boundary or (o.get("softb") and not last): e("s_waitcnt lgkmcnt(%d)", [6, 7, 8, 9][t])
            c = "0" if ks == 0 else v(V_ACC + 16 * t, 16)
            e("v_mfma_f32_32x32x16_bf16 %s, %s, %s, %s", v(V_ACC + 16 * t, 16), v(V_A + 16 * b + 4 * t, 4), v(V_B + 4 * b, 4), c)
            if t < 3:
                for r in nxt[3 * t:3 * t + 3]: e(r)
            if t in slots: pop(pending, 1)
    e.pending = pending
    e.stamp()

def loader(e):
    o = e.o
    nbar_main = e.nbar
    e.skip_dma = False; e.vm = Cnt(); e.nbar = 0
    e.label("L_loader")
    if o.get("ldr_prio"): e("s_setprio %d" % int(o["ldr_prio"]))
    e("s_waitcnt lgkmcnt(0)")
    def run(fs):
        for f in fs: f()
    run(grp_stage(e, 0)); run(grp_stage(e, 1))
    addr_rest(e)
    e.waitv("st0"); e.bar()
    for b in range(-1, 7):
        run(grp_stage(e, b + 3))
        e.waitv("st%d" % (b + 2)); e.bar()
    run(grp_kv(e, "K")); e.waitv("st9"); e.bar()
    run(grp_kv(e, "V"))
    if o.get("wot"): run(grp_touch(e, "wo"))
    e.waitv("K"); e.bar()
    w0 = grp_wo(e, 0)
    n0 = int(o.get("pre_v", 2))
    run(w0[:n0])
    e.waitv("V"); e.bar()
    run(w0[n0:])
    npv = int(o.get("pre_pv", 3))
    for st_ in range(1, npv): run(grp_wo(e, st_))
    e.waitv("wo1"); e.bar()
    for st_ in range(npv, 8): run(grp_wo(e, st_))
    e("s_waitcnt vmcnt(0)"); e.bar()
    assert e.nbar == nbar_main, (e.nbar, nbar_main)
    e("s_endpgm")

def kread_text(kt, st_, buf):
    return "ds_read_b128 %s, %s offset:%d" % (v(V_A + 4 * buf, 4), v(V_RK + st_), L_K + kt * 8192)

def attention(e):
    lg = e.lg; pending = e.pending
    for st_ in range(2):
        for kt in range(2): lg.issue("k%d_%d" % (st_, kt))
    def kread(kt, st_, buf): e.ds(kread_text(kt, st_, buf), "k%d_%d" % (st_, kt))
    def qcvt(t):
        for u in range(2):
            for d in range(4):
                r0 = V_ACC + 16 * t + 8 * u + 2 * d
                e("v_cvt_pk_bf16_f32 %s, %s, %s", v(V_Q + 8 * t + 4 * u + d), v(r0), v(r0 + 1))
    for st_ in range(2, 4):
        for kt in range(2): kread(kt, st_, 2 * st_ + kt)
    e("s_nop 4")
    qcvt(0); qcvt(1); qcvt(2)
    e("s_nop 1")
    for st_ in range(8):
        if st_ == 2: qcvt(3); e("s_nop 0")
        for kt in range(2):
            buf = (2 * st_ + kt) % 8
            e.waitl("k%d_%d" % (st_, kt))
            c = "0" if st_ == 0 else v(V_S + 16 * kt, 16)
            e("v_mfma_f32_32x32x16_bf16 %s, %s, %s, %s", v(V_S + 16 * kt, 16), v(V_A + 4 * buf, 4), v(V_Q + 4 * st_, 4), c)
            if st_ < 4: kread(kt, st_ + 4, buf)
            if pending: pending.pop(0)()
    schedB = e.o.get("schedB")
    def vreads(t, st_, buf):
        for j in range(2):
            e.ds("ds_read_b64_tr_b16 %s, %s offset:%d" % (v(V_A + 4 * buf + 2 * j, 2), v(V_RV + t), st_ * 4096 + j * 2048), "v%d_%d" % (st_, t))
    def vbarrier():
        e.waitv("V")
        e.bar()
        if e.o.get("pvt"):
            for t in range(2):
                for st_ in range(4): vreads(t, st_, 4 * t + st_)
        else:
            for st_ in range(2):
                for t in range(4): vreads(t, st_, 4 * st_ + t)
    if not schedB: vbarrier()
    else: e("s_nop 7\ns_nop 3")
    e.stamp()
    assert not pending
    S = V_S; M, M2, SUM, SUM2 = V_TM, V_TM + 1, V_TM + 2, V_TM + 4
    e("v_max3_f32 %s, %s, %s, %s", v(M), v(S), v(S + 1), v(S + 2))
    e("v_max3_f32 %s, %s, %s, %s", v(M2), v(S + 3), v(S + 4), v(S + 5))
    for i in range(6, 16, 4):
        e("v_max3_f32 %s, %s, %s, %s", v(M), v(M), v(S + i), v(S + i + 1))
        if i + 2 < 16: e("v_max3_f32 %s, %s, %s, %s", v(M2), v(M2), v(S + i + 2), v(S + i + 3))
    for i in range(16, 32, 4):
        e("v_max3_f32 %s, %s, %s, %s", v(M), v(M), v(S + i), v(S + i + 1))
        e("v_max3_f32 %s, %s, %s, %s", v(M2), v(M2), v(S + i + 2), v(S + i + 3))
    e("v_max_f32 %s, %s, %s", v(M), v(M), v(M2))
    e("v_mov_b32 %s, %s", v(M2), v(M))
    e("s_mov_b32 %s, 0x%08x", s(S_T1), f32bits(SCALE_LOG2E))
    e("s_nop 0")
    e("v_permlane32_swap_b32 %s, %s", v(M), v(M2))
    e("s_nop 0")
    e("v_max_f32 %s, %s, %s", v(M), v(M), v(M2))
    e("v_mul_f32 %s, %s, %s", v(M), s(S_T1), v(M))
    pk = e.o.get("pk")
    if pk:
        e("s_mov_b32 s62, %s", s(S_T1)); e("s_mov_b32 s63, %s", s(S_T1))
        for i in range(0, 32, 2):
            e("v_pk_fma_f32 %s, %s, s[62:63], %s op_sel_hi:[1,1,0] neg_lo:[0,0,1] neg_hi:[0,0,1]", v(S + i, 2), v(S + i, 2), v(M, 2))
    else:
        for i in range(32):
            e("v_fma_f32 %s, %s, %s, -%s", v(S + i), v(S + i), s(S_T1), v(M))
    sm = (grp_wo(e, 2) + grp_wo(e, 3)) if e.o.get("schedA") and not schedB else []
    for i in range(32):
        e("v_exp_f32 %s, %s", v(S + i), v(S + i))
        if i % 3 == 2: pop(sm, 1)
    assert not sm
    if schedB and not e.o.get("vlate"):
        vbarrier()
        sm = grp_wo(e, 0) + grp_wo(e, 1)
    e("s_nop 0")
    if pk:
        e("v_pk_add_f32 %s, %s, %s", v(SUM, 2), v(S, 2), v(S + 2, 2))
        e("v_pk_add_f32 %s, %s, %s", v(SUM2, 2), v(S + 4, 2), v(S + 6, 2))
        for i in range(8, 32, 4):
            e("v_pk_add_f32 %s, %s, %s", v(SUM, 2), v(SUM, 2), v(S + i, 2))
            e("v_pk_add_f32 %s, %s, %s", v(SUM2, 2), v(SUM2, 2), v(S + i + 2, 2))
        e("v_pk_add_f32 %s, %s, %s", v(SUM, 2), v(SUM, 2), v(SUM2, 2))
        e("v_add_f32 %s, %s, %s", v(SUM), v(SUM), v(SUM + 1))
    else:
        e("v_add_f32 %s, %s, %s", v(SUM), v(S), v(S + 1))
        e("v_add_f32 %s, %s, %s", v(SUM + 1), v(S + 2), v(S + 3))
        e("v_add_f32 %s, %s, %s", v(SUM2), v(S + 4), v(S + 5))
        e("v_add_f32 %s, %s, %s", v(SUM2 + 1), v(S + 6), v(S + 7))
        for i in range(8, 32, 4):
            e("v_add_f32 %s, %s, %s", v(SUM), v(SUM), v(S + i))
            e("v_add_f32 %s, %s, %s", v(SUM + 1), v(SUM + 1), v(S + i + 1))
            e("v_add_f32 %s, %s, %s", v(SUM2), v(SUM2), v(S + i + 2))
            e("v_add_f32 %s, %s, %s", v(SUM2 + 1), v(SUM2 + 1), v(S + i + 3))
        e("v_add_f32 %s, %s, %s", v(SUM), v(SUM), v(SUM + 1))
        e("v_add_f32 %s, %s, %s", v(SUM2), v(SUM2), v(SUM2 + 1))
        e("v_add_f32 %s, %s, %s", v(SUM), v(SUM), v(SUM2))
    e("v_mov_b32 %s, %s", v(SUM2), v(SUM))
    e("s_nop 1")
    e("v_permlane32_swap_b32 %s, %s", v(SUM), v(SUM2))
    e("s_nop 0")
    e("v_add_f32 %s, %s, %s", v(SUM), v(SUM), v(SUM2))
    e("v_rcp_f32 %s, %s", v(SUM), v(SUM))
    e("s_nop 0")
    if pk:
        for i in range(0, 32, 2):
            e("v_pk_mul_f32 %s, %s, %s op_sel_hi:[1,0]", v(S + i, 2), v(S + i, 2), v(SUM, 2))
            if i % 4 == 2: pop(sm, 1)
    else:
        for i in range(32):
            e("v_mul_f32 %s, %s, %s", v(S + i), v(S + i), v(SUM))
            if i % 4 == 3: pop(sm, 1)
    for f in range(4):
        for d in range(4):
            r0 = S + 8 * f + 2 * d
            e("v_cvt_pk_bf16_f32 %s, %s, %s", v(V_P + 4 * f + d), v(r0), v(r0 + 1))
    if schedB and e.o.get("vlate"):
        vbarrier()
        sm = grp_wo(e, 0) + grp_wo(e, 1)
    e.stamp()
    pv = (grp_wo(e, 4) + grp_wo(e, 5)) if e.o.get("schedA") and not e.o.get("schedC") else []
    if schedB: pv = sm + ([] if e.o.get("schedD") else grp_wo(e, 2) + grp_wo(e, 3))
    e("v_readlane_b32 %s, %s, 0", s(S_N1), v(V_EP))
    e("v_readlane_b32 %s, %s, 1", s(S_N2), v(V_EP))
    e("s_lshl_b32 %s, %s, 13", s(S_OS0), s(S_CS))
    e("s_add_u32 %s, %s, %s", s(S_OS0), s(S_OS0), s(S_OB))
    e("s_add_u32 %s, %s, 1", s(S_N1), s(S_N1))
    e("s_add_u32 %s, %s, 1", s(S_N2), s(S_N2))
    e("s_add_u32 %s, %s, 4096", s(S_OS1), s(S_OS0))
    def ostore(t):
        for u in range(2):
            for d in range(4):
                r0 = V_ACC + 16 * t + 8 * u + 2 * d
                e("v_cvt_pk_bf16_f32 %s, %s, %s", v(V_Q + 8 * t + 4 * u + d), v(r0), v(r0 + 1))
            f = 2 * t + u
            e("buffer_store_dwordx4 %s, %s, %s, %s offen offset:%d %s", v(V_Q + 4 * f, 4), v(V_LIN), s(S_WS, 4), s(S_OS0 if f < 4 else S_OS1), (f % 4) * 1024, (str(e.o.get("fastO")).replace("True", "").replace("_", " ")) if e.o.get("fastO") else "sc1")
            e.vm.issue("ost")
    if e.o.get("pvt"):
        for t in range(4):
            for st_ in range(4):
                n = 4 * t + st_
                e.waitl("v%d_%d" % (st_, t))
                c = "0" if st_ == 0 else v(V_ACC + 16 * t, 16)
                e("v_mfma_f32_32x32x16_bf16 %s, %s, %s, %s", v(V_ACC + 16 * t, 16), v(V_A + 4 * (n % 8), 4), v(V_P + 4 * st_, 4), c)
                if t < 2: vreads(t + 2, st_, n % 8)
                pop(pv, 1)
            if t >= 1:
                if t == 3: e("s_nop 3")
                if t == 2: e("s_nop 3")
                ostore(t - 1)
        e("s_nop 3")
        ostore(3)
    else:
        for st_ in range(4):
            for t in range(4):
                buf = (4 * st_ + t) % 8
                e.waitl("v%d_%d" % (st_, t))
                c = "0" if st_ == 0 else v(V_ACC + 16 * t, 16)
                e("v_mfma_f32_32x32x16_bf16 %s, %s, %s, %s", v(V_ACC + 16 * t, 16), v(V_A + 4 * buf, 4), v(V_P + 4 * st_, 4), c)
                if st_ < 2: vreads(t, st_ + 2, buf)
                pop(pv, 1)
        e("s_nop 7\ns_nop 1")
        for t in range(4): ostore(t)
    assert not pv
    e.stamp()

def p2_reads(lg_):
    b = lg_ & 1
    pg = (13 + lg_) % 32
    base, rel = (0, pg) if pg < 13 else ((1, pg - 13) if pg < 25 else (2, pg - 25))
    return ["ds_read_b64_tr_b16 %s, %s offset:%d" % (v(V2_A + 20 * b + 4 * nt + 2 * j, 2), v(V_RWO + base), rel * 5120 + 8 * j * 320 + 64 * nt)
            for nt in range(5) for j in range(2)]

def poll(e, label, vaddr, nonce, nlanes):
    e("s_mov_b64 exec, 0x%x", (1 << nlanes) - 1)
    e("s_mov_b32 %s, 0", s(S_SPIN))
    e.label(label)
    e("buffer_load_dword %s, %s, %s, 0 offen sc1", v(V_T + 8), v(vaddr), s(S_WS, 4))
    e("s_waitcnt vmcnt(0)")
    e("v_cmp_ne_u32 vcc, %s, %s", s(nonce), v(V_T + 8))
    e("s_add_u32 %s, %s, 1", s(S_SPIN), s(S_SPIN))
    e("s_cmp_ge_u32 %s, 0x%x", s(S_SPIN), 1 << 17)
    e("s_cbranch_scc1 %s_done", label)
    e("s_cbranch_vccnz %s", label)
    e.label(label + "_done")
    e("s_mov_b64 exec, -1")
    e.vm.issue("poll"); e.vm.ops = ["poll"]

def phase2(e):
    T = V_T; L = v(V_LANE)
    e.waitv("wo1")
    e.bar()
    for r in p2_reads(0): e(r)
    e("s_lshr_b32 %s, %s, 15", s(S_T2), s(S_OB))
    e("s_lshl_b32 %s, %s, 9", s(S_T2), s(S_T2))
    e("s_add_u32 %s, %s, 0x%x", s(S_T2), s(S_T2), WS_F1)
    e("v_and_b32 %s, 3, %s", v(T), L)
    e("v_lshlrev_b32 %s, 7, %s", v(T), v(T))
    e("v_add_u32 %s, %s, %s", v(V_TM + 6), s(S_T2), v(T))
    e("s_lshl_b32 %s, %s, 7", s(S_T1), s(S_CS))
    e("s_add_u32 %s, %s, %s", s(S_T2), s(S_T2), s(S_T1))
    e("v_mov_b32 %s, %s", v(V_TM + 7), s(S_T2))
    e("v_mov_b32 %s, %s", v(V_TM + 8), s(S_N1))
    early = e.o.get("woearly") or e.o.get("schedA") or e.o.get("schedB")
    schedA = e.o.get("schedA") or e.o.get("schedB")
    flag_at = int(e.o.get("flag_at", 8))
    pending = [] if schedA else grp_wo(e, 2) + grp_wo(e, 3) + ([] if early else grp_wo(e, 4))
    if e.o.get("schedB") or e.o.get("schedC"): pending = grp_wo(e, 4) + grp_wo(e, 5)
    if e.o.get("schedD"): pending = grp_wo(e, 2) + grp_wo(e, 3) + grp_wo(e, 4) + grp_wo(e, 5)
    def kstep(ks, bsrc, nxt, first):
        b = ks & 1
        for nt in range(5):
            issued_new = min(len(nxt), [0, 3, 6, 8, 10][nt])
            e("s_waitcnt lgkmcnt(%d)", min(15, 2 * (4 - nt) + issued_new))
            c = "0" if first else v(V2_ACC + 16 * nt, 16)
            e("v_mfma_f32_32x32x16_bf16 %s, %s, %s, %s", v(V2_ACC + 16 * nt, 16), v(V2_A + 20 * b + 4 * nt, 4), bsrc, c)
            lo, hi = [(0, 3), (3, 6), (6, 8), (8, 10), (10, 10)][nt]
            for r in nxt[lo:hi]: e(r)
            if nt >= 2: pop(pending, 1)
    def publish():
        e.waitv("ost")
        e("s_mov_b64 exec, 1")
        e("buffer_store_dword %s, %s, %s, 0 offen %s", v(V_TM + 8), v(V_TM + 7), s(S_WS, 4), "" if e.o.get("fastO") else "sc1"); e.vm.issue("f1")
        e("s_mov_b64 exec, -1")
    if schedA and e.o.get("wo67first"): pending += grp_wo(e, 6) + grp_wo(e, 7)
    for ks in range(8):
        if ks == flag_at:
            publish()
            if schedA and not e.o.get("wo67first") and not e.o.get("late67"): pending += grp_wo(e, 6) + grp_wo(e, 7)
        kstep(ks, v(V_Q + 4 * ks, 4), p2_reads(ks + 1) if ks < 7 else [], ks == 0)
    e.stamp()
    if flag_at >= 8:
        publish()
        if schedA and not e.o.get("wo67first") and not e.o.get("late67"): pending += grp_wo(e, 6) + grp_wo(e, 7)
    pop(pending, len(pending))
    tile = e.o.get("tile") or e.o.get("tile2")
    if tile: tail_addresses(e)
    if early and not schedA:
        for st_ in range(4, 8): pop(grp_wo(e, st_), 5)
    if e.o.get("barpre"):
        e("s_waitcnt vmcnt(0)")
        e.bar()
    e.stamp("p2")
    poll(e, "L_poll1", V_TM + 6, S_N1, 4)
    e.stamp()
    e("s_or_b32 %s, %s, %s", s(S_T0), s(S_CS), s(S_W))
    e("s_cmp_lg_u32 %s, 0", s(S_T0))
    e("s_cbranch_scc1 L_noe1")
    e("s_lshr_b32 %s, %s, 17", s(S_T0), s(S_OB))
    e("s_lshl_b32 %s, %s, 7", s(S_T0), s(S_T0))
    e("s_add_u32 %s, %s, 0x%x", s(S_T0), s(S_T0), WS_E1)
    e("v_mov_b32 v8, %s", s(S_T0))
    e("s_mov_b64 exec, 1")
    e("buffer_store_dword %s, v8, %s, 0 offen sc1", v(V_TM + 8), s(S_WS, 4))
    e("s_mov_b64 exec, -1")
    e.label("L_noe1")
    for j in range(1, 4):
        e("s_add_u32 %s, %s, %d", s(S_T0), s(S_CS), j)
        e("s_and_b32 %s, %s, 3", s(S_T0), s(S_T0))
        e("s_lshl_b32 %s, %s, 13", s(S_T0), s(S_T0))
        e("s_add_u32 %s, %s, %s", s(S_OBR + 2 * (j - 1)), s(S_T0), s(S_OB))
        e("s_add_u32 %s, %s, 4096", s(S_OBR + 2 * (j - 1) + 1), s(S_OBR + 2 * (j - 1)))
    def oload(j):
        def g(f):
            def h():
                n = 8 * (j - 1) + f
                e("buffer_load_dwordx4 %s, %s, %s, %s offen offset:%d %s", v(V_RO[n], 4), v(V_LIN), s(S_WS, 4), s(S_OBR + 2 * (j - 1) + (f >> 2)), (f % 4) * 1024, "" if e.o.get("plainOL") else "sc1")
                e.vm.issue("o%d" % n)
            return h
        return [g(f) for f in range(8)]
    pop(oload(1), 8)
    e.stamp("p2")
    if not e.o.get("barpre"): e.bar()
    e.stamp("p2")
    if e.o.get("late67"): pending += oload(2) + grp_wo(e, 6) + oload(3) + grp_wo(e, 7)
    else: pending += (oload(2) + oload(3)) if early else (grp_wo(e, 5) + oload(2) + grp_wo(e, 6) + oload(3) + grp_wo(e, 7))
    for r in p2_reads(8): e(r)
    if tile:
        assert early
        for ks in range(8, 16):
            e.waitv("o%d" % (ks - 8))
            if ks in (8, 12): e.stamp("p2")
            nxt = p2_reads(ks + 1) if ks < 15 else [r for q in range(5) for r in a_read(0, 16 + q, V2_A + 4 * q)]
            kstep(ks, v(V_RO[ks - 8], 4), nxt, False)
        if e.o.get("late67"):
            pop(pending, len(pending))
            e.waitv("wo7"); e.bar()
        assert not pending
        e.stamp("fine")
        remote_tiles(e, kstep)
        return
    for ks in range(8, 32):
        n = ks - 8
        if ks in (19, 23, 27) and not early:
            e.waitv(["wo%d" % (5 + (ks - 19) // 4), "o%d" % n])
            e.bar()
        else:
            e.waitv("o%d" % n)
        kstep(ks, v(V_RO[n], 4), p2_reads(ks + 1) if ks < 31 else [], False)
    assert not pending
    e.stamp()

def tail_addresses(e):
    L = v(V_LANE); A, B, C = 8, 9, 11
    e("v_bfe_u32 %s, %s, 4, 1", v(A), L)
    e("v_mul_u32_u24 %s, %d, %s", v(A), 8 * 10 * 512, v(A))
    e("v_and_b32 %s, 15, %s", v(B), L)
    e("v_lshrrev_b32 %s, 5, %s", v(C), L)
    e("v_lshl_add_u32 %s, %s, 4, %s", v(V_PA), v(C), v(B))
    e("v_lshl_add_u32 %s, %s, 4, %s", v(V_PA), v(V_PA), v(A))
    e("s_lshl_b32 %s, %s, 2", s(S_T0), s(S_RP))
    e("s_add_u32 %s, %s, %s", s(S_T0), s(S_T0), s(S_CS))
    e("s_lshl_b32 %s, %s, 3", s(S_PB), s(S_T0))
    e("s_lshl_b32 %s, %s, 1", s(S_T1), s(S_W))
    e("s_add_u32 %s, %s, %s", s(S_T1), s(S_PB), s(S_T1))
    e("s_lshl_b32 %s, %s, 3", s(S_T1), s(S_T1))
    e("s_add_u32 %s, %s, %s", s(S_T1), s(S_T1), s(S_HG))
    e("s_mul_i32 %s, %s, %d", s(S_T1), s(S_T1), 10 * 512)
    e("s_add_u32 %s, %s, 0x%x", s(S_PS0), s(S_T1), WS_PART)
    e("s_add_u32 %s, %s, 4096", s(S_PS1), s(S_PS0))
    e("s_lshl_b32 %s, %s, 2", s(S_T0), s(S_T0))
    e("s_add_u32 %s, %s, %s", s(S_T3), s(S_T0), s(S_W))
    e("s_lshl_b32 %s, %s, 3", s(S_T3), s(S_T3))
    e("s_add_u32 %s, %s, %s", s(S_T3), s(S_T3), s(S_HG))
    e("s_lshl_b32 %s, %s, 7", s(S_T3), s(S_T3))
    e("s_add_u32 %s, %s, 0x%x", s(S_T3), s(S_T3), WS_F2)
    e("v_mov_b32 %s, %s", v(V_F2O), s(S_T3))
    e("s_lshr_b32 %s, %s, 1", s(S_T3), s(S_HG))
    e("s_add_u32 %s, %s, %s", s(S_T3), s(S_T0), s(S_T3))
    e("s_lshl_b32 %s, %s, 10", s(S_T3), s(S_T3))
    e("s_add_u32 %s, %s, 0x%x", s(S_T3), s(S_T3), WS_F2)
    if e.o.get("tile2"):
        e("s_lshr_b32 %s, %s, 1", s(S_T2), s(S_W))
        e("s_lshl_b32 %s, %s, 17", s(S_T2), s(S_T2))
        e("s_add_u32 %s, %s, %s", s(S_T3), s(S_T3), s(S_T2))
    e("v_and_b32 %s, 7, %s", v(A), L)
    e("v_lshlrev_b32 %s, 7, %s", v(A), v(A))
    e("v_add_u32 %s, %s, %s", v(V_F2P), s(S_T3), v(A))
    e("v_mov_b32 %s, %s", v(V_N2V), s(S_N2))
    e("v_mul_u32_u24 %s, 5120, %s", v(A), v(C))
    e("v_and_b32 %s, 31, %s", v(B), L)
    e("v_lshl_add_u32 %s, %s, 4, %s", v(V_P3L), v(B), v(A))
    e("s_add_u32 %s, %s, %s", s(S_T0), s(S_PB), s(S_HG))
    e("s_mul_i32 %s, %s, %d", s(S_T0), s(S_T0), 8 * 5120)
    e("s_add_u32 %s, %s, 0x%x", s(S_T0), s(S_T0), WS_PART)
    e("s_mul_i32 %s, %s, 3", s(S_T1), s(S_W))
    e("s_cmp_eq_u32 %s, 3", s(S_W))
    e("s_cselect_b32 %s, 8, %s", s(S_T1), s(S_T1))
    e("s_lshl_b32 %s, %s, 9", s(S_T2), s(S_T1))
    e("s_add_u32 %s, %s, %s", s(S_P3B), s(S_T0), s(S_T2))
    e("v_and_b32 %s, 15, %s", v(A), L)
    e("v_mul_u32_u24 %s, 1280, %s", v(A), v(A))
    e("v_bfe_u32 %s, %s, 4, 1", v(B), L)
    e("v_lshl_add_u32 %s, %s, 3, %s", v(A), v(B), v(A))
    e("v_lshl_add_u32 %s, %s, 4, %s", v(V_OUT), v(C), v(A))
    e("s_lshl_b32 %s, %s, 3", s(S_T2), s(S_RP))
    e("s_add_u32 %s, %s, %s", s(S_T2), s(S_T2), s(S_HG))
    e("s_mul_i32 %s, %s, %d", s(S_T2), s(S_T2), 16 * 1280)
    e("s_mul_i32 %s, %s, 320", s(S_T3), s(S_CS))
    e("s_add_u32 %s, %s, %s", s(S_T2), s(S_T2), s(S_T3))
    e("s_lshl_b32 %s, %s, 5", s(S_T1), s(S_T1))
    e("s_add_u32 %s, %s, %s", s(S_OUTB), s(S_T2), s(S_T1))

def pack_store(e, nt, m, tag):
    ch = 2 * nt + m
    pk = 168 + 8 * (nt % 4) + 4 * m
    for d in range(4):
        r0 = V2_ACC + 16 * nt + 8 * m + 2 * d
        e("v_cvt_pk_bf16_f32 %s, %s, %s", v(pk + d), v(r0), v(r0 + 1))
    e("buffer_store_dwordx4 %s, %s, %s, %s offen offset:%d sc1", v(pk, 4), v(V_PA), s(S_WS, 4), s(S_PS0 if ch < 8 else S_PS1), (ch % 8) * 512)
    e.vm.issue(tag)

def a_read(nt, lg_, reg):
    pg = (13 + lg_) % 32
    base, rel = (0, pg) if pg < 13 else ((1, pg - 13) if pg < 25 else (2, pg - 25))
    return ["ds_read_b64_tr_b16 %s, %s offset:%d" % (v(reg + 2 * j, 2), v(V_RWO + base), rel * 5120 + 8 * j * 320 + 64 * nt) for j in range(2)]

def p3_loads(e, nch):
    for c in range(nch):
        for i in range(4):
            e("s_add_u32 %s, %s, %d", s(S_OFF), s(S_P3B), 2 * i * 5120 + c * 512)
            e("buffer_load_dwordx4 %s, %s, %s, %s offen sc1", v(64 + 16 * c + 4 * i, 4), v(V_P3L), s(S_WS, 4), s(S_OFF))

def p3_reduce(e, c):
    r = 64 + 16 * c; acc = 128 + 8 * c
    for d in range(4):
        e("v_dot2_f32_bf16 %s, %s, %s, 0", v(acc + 2 * d), v(r + d), s(S_T0))
        e("v_dot2_f32_bf16 %s, %s, %s, 0", v(acc + 2 * d + 1), v(r + d), s(S_T1))
    for i in range(1, 4):
        for d in range(4):
            e("v_dot2_f32_bf16 %s, %s, %s, %s", v(acc + 2 * d), v(r + 4 * i + d), s(S_T0), v(acc + 2 * d))
            e("v_dot2_f32_bf16 %s, %s, %s, %s", v(acc + 2 * d + 1), v(r + 4 * i + d), s(S_T1), v(acc + 2 * d + 1))
    e("s_nop 3")
    for d in range(4): e("v_permlane32_swap_b32 %s, %s", v(acc + d), v(acc + 4 + d))
    e("s_nop 1")
    for d in range(4): e("v_add_f32 %s, %s, %s", v(acc + d), v(acc + d), v(acc + 4 + d))
    e("v_cvt_pk_bf16_f32 %s, %s, %s", v(acc), v(acc), v(acc + 1))
    e("v_cvt_pk_bf16_f32 %s, %s, %s", v(acc + 1), v(acc + 2), v(acc + 3))
    e("buffer_store_dwordx2 %s, %s, %s, %s offen offset:%d %s", v(acc, 2), v(V_OUT), s(S_OUT, 4), s(S_OUTB), 32 * c, {None: ""}.get(e.o.get("outaux"), str(e.o.get("outaux")).replace("_", " ")))

def flag_store(e, vaddr, off):
    e("s_mov_b64 exec, 1")
    e("buffer_store_dword %s, %s, %s, 0 offen offset:0 sc1" if not off else "buffer_store_dword %s, %s, %s, %s offen sc1",
      *((v(V_N2V), v(vaddr), s(S_WS, 4)) if not off else (v(V_N2V), v(vaddr), s(S_WS, 4), s(off))))
    e("s_mov_b64 exec, -1")

def remote_tiles(e, kstep):
    D = 5
    lg = Cnt()
    seq = [(nt, 16 + j) for nt in range(5) for j in range(16)]
    def reg(q): return V2_A + 4 * (q % 10)
    for q in range(D):
        lg.issue("a%d" % q); lg.issue("a%d" % q)
    for q, (nt, ks) in enumerate(seq):
        j = ks - 16
        if j == 0 and nt == 1: e.stamp("fine")
        if nt == 0: e.waitv("o%d" % (ks - 8))
        e("s_waitcnt lgkmcnt(%d)", min(15, lg.after("a%d" % q)))
        e("v_mfma_f32_32x32x16_bf16 %s, %s, %s, %s", v(V2_ACC + 16 * nt, 16), v(reg(q), 4), v(V_RO[ks - 8], 4), v(V2_ACC + 16 * nt, 16))
        if q + D < len(seq):
            n2, k2 = seq[q + D]
            for r in a_read(n2, k2, reg(q + D)): e(r); lg.issue("a%d" % (q + D))
        if nt >= 1 and j == 4: pack_store(e, nt - 1, 0, "pst%d" % (nt - 1))
        if nt >= 1 and j == 8: pack_store(e, nt - 1, 1, "pst%d" % (nt - 1))
    e.stamp()

def consts_p3(e):
    e("s_mov_b32 %s, 0x00003f80", s(S_T0))
    e("s_mov_b32 %s, 0x3f800000", s(S_T1))

def epoch2(e):
    e("s_or_b32 %s, %s, %s", s(S_T2), s(S_HG), s(S_W))
    e("s_cmp_lg_u32 %s, 0", s(S_T2))
    e("s_cbranch_scc1 L_noe2")
    e("s_lshl_b32 %s, %s, 4", s(S_T2), s(S_PB))
    e("s_add_u32 %s, %s, 0x%x", s(S_T2), s(S_T2), WS_E2)
    e("v_mov_b32 v8, %s", s(S_T2))
    e("s_mov_b64 exec, 1")
    e("buffer_store_dword %s, v8, %s, 0 offen sc1", v(V_N2V), s(S_WS, 4))
    e("s_mov_b64 exec, -1")
    e.label("L_noe2")

def tail1(e):
    e("s_nop 7\ns_nop 3")
    pack_store(e, 4, 0, "pst4"); pack_store(e, 4, 1, "pst4")
    e.waitv("pst4")
    e.stamp()
    flag_store(e, V_F2O, 0)
    poll(e, "L_poll2", V_F2P, S_N2, 8)
    e.stamp()
    e("s_cmp_ge_u32 %s, 2", s(S_W))
    e("s_cbranch_scc1 L_p3_two")
    p3_loads(e, 3); consts_p3(e)
    e("s_waitcnt vmcnt(0)")
    e.stamp("fine");
    for c in range(3): p3_reduce(e, c)
    e("s_branch L_p3_done")
    e.label("L_p3_two")
    p3_loads(e, 2); consts_p3(e)
    e("s_waitcnt vmcnt(0)")
    if e.o.get("fine") and e.o.get("stamps"): e.nst -= 1
    e.stamp("fine")
    for c in range(2): p3_reduce(e, c)
    e.label("L_p3_done")
    epoch2(e)
    e.stamp()
    if e.o.get("fine"):
        e("s_waitcnt vmcnt(0)")
        e.stamp()

def tail2(e):
    e.waitv("pst2")
    flag_store(e, V_F2O, 0)
    e("s_mov_b32 %s, 0x%x", s(S_T3), 1 << 17)
    e("s_nop 7")
    pack_store(e, 4, 0, "pst4"); pack_store(e, 4, 1, "pst4")
    e.waitv("pst4")
    flag_store(e, V_F2O, S_T3)
    e.stamp()
    poll(e, "L_poll2", V_F2P, S_N2, 8)
    e.stamp()
    e("s_cmp_ge_u32 %s, 2", s(S_W))
    e("s_cbranch_scc1 L_p3_two")
    p3_loads(e, 3); consts_p3(e)
    for c, n in enumerate((8, 5, 2)):
        e("s_waitcnt vmcnt(%d)", n); p3_reduce(e, c)
    e("s_branch L_p3_done")
    e.label("L_p3_two")
    p3_loads(e, 2); consts_p3(e)
    for c, n in enumerate((4, 1)):
        e("s_waitcnt vmcnt(%d)", n); p3_reduce(e, c)
    e.label("L_p3_done")
    epoch2(e)
    e.stamp()

def partials(e):
    T = V_T; L = v(V_LANE)
    e("v_bfe_u32 %s, %s, 4, 1", v(T), L)
    e("v_mul_u32_u24 %s, %d, %s", v(T), 8 * 10 * 512, v(T))
    e("v_and_b32 %s, 15, %s", v(T + 1), L)
    e("v_lshrrev_b32 %s, 5, %s", v(T + 2), L)
    e("v_lshl_add_u32 %s, %s, 4, %s", v(T + 1), v(T + 2), v(T + 1))
    e("v_lshl_add_u32 %s, %s, 4, %s", v(T), v(T + 1), v(T))
    e("s_lshl_b32 %s, %s, 2", s(S_T0), s(S_RP))
    e("s_add_u32 %s, %s, %s", s(S_T0), s(S_T0), s(S_CS))
    e("s_lshl_b32 %s, %s, 3", s(S_PB), s(S_T0))
    e("s_lshl_b32 %s, %s, 1", s(S_T1), s(S_W))
    e("s_add_u32 %s, %s, %s", s(S_T1), s(S_PB), s(S_T1))
    e("s_lshl_b32 %s, %s, 3", s(S_T1), s(S_T1))
    e("s_add_u32 %s, %s, %s", s(S_T1), s(S_T1), s(S_HG))
    e("s_mul_i32 %s, %s, %d", s(S_T1), s(S_T1), 10 * 512)
    e("s_add_u32 %s, %s, 0x%x", s(S_T1), s(S_T1), WS_PART)
    e("s_add_u32 %s, %s, 4096", s(S_T2), s(S_T1))
    e("s_lshl_b32 %s, %s, 2", s(S_T0), s(S_T0))
    e("s_add_u32 %s, %s, %s", s(S_T3), s(S_T0), s(S_W))
    e("s_lshl_b32 %s, %s, 3", s(S_T3), s(S_T3))
    e("s_add_u32 %s, %s, %s", s(S_T3), s(S_T3), s(S_HG))
    e("s_lshl_b32 %s, %s, 7", s(S_T3), s(S_T3))
    e("s_add_u32 %s, %s, 0x%x", s(S_T3), s(S_T3), WS_F2)
    e("v_mov_b32 %s, %s", v(V_TM + 7), s(S_T3))
    e("s_lshr_b32 %s, %s, 1", s(S_T3), s(S_HG))
    e("s_add_u32 %s, %s, %s", s(S_T3), s(S_T0), s(S_T3))
    e("s_lshl_b32 %s, %s, 10", s(S_T3), s(S_T3))
    e("s_add_u32 %s, %s, 0x%x", s(S_T3), s(S_T3), WS_F2)
    e("v_and_b32 %s, 7, %s", v(T + 3), L)
    e("v_lshlrev_b32 %s, 7, %s", v(T + 3), v(T + 3))
    e("v_add_u32 %s, %s, %s", v(V_TM + 6), s(S_T3), v(T + 3))
    e("v_mov_b32 %s, %s", v(V_TM + 8), s(S_N2))
    for nt in range(5):
        for m in range(2):
            ch = 2 * nt + m
            for d in range(4):
                r0 = V2_ACC + 16 * nt + 8 * m + 2 * d
                e("v_cvt_pk_bf16_f32 %s, %s, %s", v(V_PK + 4 * ch + d), v(r0), v(r0 + 1))
            e("buffer_store_dwordx4 %s, %s, %s, %s offen offset:%d sc1", v(V_PK + 4 * ch, 4), v(T), s(S_WS, 4), s(S_T1 if ch < 8 else S_T2), (ch % 8) * 512)
            e.vm.issue("pst")
    e.waitv("pst")
    e.stamp()
    e("s_mov_b64 exec, 1")
    e("buffer_store_dword %s, %s, %s, 0 offen sc1", v(V_TM + 8), v(V_TM + 7), s(S_WS, 4)); e.vm.issue("f2")
    poll(e, "L_poll2", V_TM + 6, S_N2, 8)
    e.stamp()

def phase3(e):
    T = V_T; L = v(V_LANE)
    e("v_lshrrev_b32 %s, 5, %s", v(T), L)
    e("v_mul_u32_u24 %s, 5120, %s", v(T + 1), v(T))
    e("v_and_b32 %s, 31, %s", v(T + 2), L)
    e("v_lshl_add_u32 %s, %s, 4, %s", v(T + 1), v(T + 2), v(T + 1))
    e("s_add_u32 %s, %s, %s", s(S_T0), s(S_PB), s(S_HG))
    e("s_mul_i32 %s, %s, %d", s(S_T0), s(S_T0), 8 * 5120)
    e("s_add_u32 %s, %s, 0x%x", s(S_T0), s(S_T0), WS_PART)
    e("s_mul_i32 %s, %s, 3", s(S_T1), s(S_W))
    e("s_cmp_eq_u32 %s, 3", s(S_W))
    e("s_cselect_b32 %s, 8, %s", s(S_T1), s(S_T1))
    e("s_lshl_b32 %s, %s, 9", s(S_T2), s(S_T1))
    e("s_add_u32 %s, %s, %s", s(S_T0), s(S_T0), s(S_T2))
    R = 64
    for c in range(3):
        if c == 2:
            e("s_cmp_ge_u32 %s, 2", s(S_W))
            e("s_cbranch_scc1 L_p3_two")
        for i in range(4):
            e("s_add_u32 %s, %s, %d", s(S_OFF), s(S_T0), 2 * i * 5120 + c * 512)
            e("buffer_load_dwordx4 %s, %s, %s, %s offen sc1", v(R + 16 * c + 4 * i, 4), v(T + 1), s(S_WS, 4), s(S_OFF))
    e.label("L_p3_two")
    e("v_and_b32 %s, 15, %s", v(T + 3), L)
    e("v_mul_u32_u24 %s, 1280, %s", v(T + 3), v(T + 3))
    e("v_bfe_u32 %s, %s, 4, 1", v(T + 4), L)
    e("v_lshl_add_u32 %s, %s, 3, %s", v(T + 3), v(T + 4), v(T + 3))
    e("v_lshl_add_u32 %s, %s, 4, %s", v(T + 3), v(T), v(T + 3))
    e("s_lshl_b32 %s, %s, 3", s(S_T2), s(S_RP))
    e("s_add_u32 %s, %s, %s", s(S_T2), s(S_T2), s(S_HG))
    e("s_mul_i32 %s, %s, %d", s(S_T2), s(S_T2), 16 * 1280)
    e("s_mul_i32 %s, %s, 320", s(S_T3), s(S_CS))
    e("s_add_u32 %s, %s, %s", s(S_T2), s(S_T2), s(S_T3))
    e("s_lshl_b32 %s, %s, 5", s(S_T1), s(S_T1))
    e("s_add_u32 %s, %s, %s", s(S_T2), s(S_T2), s(S_T1))
    e("s_mov_b32 %s, 0x00003f80", s(S_T0))
    e("s_mov_b32 %s, 0x3f800000", s(S_T1))
    def reduce(c):
        r = R + 16 * c; acc = 128 + 8 * c
        for d in range(4):
            e("v_dot2_f32_bf16 %s, %s, %s, 0", v(acc + 2 * d), v(r + d), s(S_T0))
            e("v_dot2_f32_bf16 %s, %s, %s, 0", v(acc + 2 * d + 1), v(r + d), s(S_T1))
        for i in range(1, 4):
            for d in range(4):
                e("v_dot2_f32_bf16 %s, %s, %s, %s", v(acc + 2 * d), v(r + 4 * i + d), s(S_T0), v(acc + 2 * d))
                e("v_dot2_f32_bf16 %s, %s, %s, %s", v(acc + 2 * d + 1), v(r + 4 * i + d), s(S_T1), v(acc + 2 * d + 1))
        e("s_nop 3")
        for d in range(4): e("v_permlane32_swap_b32 %s, %s", v(acc + d), v(acc + 4 + d))
        e("s_nop 1")
        for d in range(4): e("v_add_f32 %s, %s, %s", v(acc + d), v(acc + d), v(acc + 4 + d))
        e("v_cvt_pk_bf16_f32 %s, %s, %s", v(acc), v(acc), v(acc + 1))
        e("v_cvt_pk_bf16_f32 %s, %s, %s", v(acc + 1), v(acc + 2), v(acc + 3))
        e("buffer_store_dwordx2 %s, %s, %s, %s offen offset:%d", v(acc, 2), v(T + 3), s(S_OUT, 4), s(S_T2), 32 * c)
    e("s_waitcnt vmcnt(0)")
    reduce(0); reduce(1)
    e("s_cmp_ge_u32 %s, 2", s(S_W))
    e("s_cbranch_scc1 L_p3_skip")
    reduce(2)
    e.label("L_p3_skip")
    e("s_or_b32 %s, %s, %s", s(S_T0), s(S_HG), s(S_W))
    e("s_cmp_lg_u32 %s, 0", s(S_T0))
    e("s_cbranch_scc1 L_noe2")
    e("s_lshl_b32 %s, %s, 4", s(S_T0), s(S_PB))
    e("s_add_u32 %s, %s, 0x%x", s(S_T0), s(S_T0), WS_E2)
    e("v_mov_b32 %s, %s", v(T), s(S_T0))
    e("s_mov_b64 exec, 1")
    e("buffer_store_dword %s, %s, %s, 0 offen sc1", v(V_TM + 8), v(T), s(S_WS, 4))
    e("s_mov_b64 exec, -1")
    e.label("L_noe2")
    e.stamp()

def dump_stamps(e):
    if not e.o.get("stamps"): return
    n = e.nst
    e("s_waitcnt lgkmcnt(0) vmcnt(0)")
    e("s_lshl_b32 %s, s2, 2", s(S_T0))
    e("s_add_u32 %s, %s, %s", s(S_T0), s(S_T0), s(S_W))
    e("s_lshl_b32 %s, %s, 7", s(S_T0), s(S_T0))
    e("s_add_u32 %s, %s, 0x%x", s(S_T0), s(S_T0), WS_STAMP)
    e("s_mov_b64 exec, 1")
    for i in range(n):
        e("v_mov_b32 v2, %s", s(S_STAMP + 2 * i))
        e("v_mov_b32 v3, %s", s(S_STAMP + 2 * i + 1))
        e("v_mov_b32 v4, %d", 8 * i)
        e("buffer_store_dwordx2 v[2:3], v4, %s, %s offen", s(S_WS, 4), s(S_T0))
        e("s_nop 1")

def build(opts):
    e = K(opts)
    e.raw("; Fused GQA block (q-projection, attention, output projection), one launch, 256 workgroups.")
    e.raw("; Kernarg (64 bytes, pointers): x, k_cache, v_cache, wq, wo, out, debug, ws")
    e.raw("; @launch grid=(256,1,1) block=(%d,1,1) lds=%d" % (512 if opts.get("ldr") else 256, LDS_BYTES))
    e.raw('.amdgcn_target "amdgcn-amd-amdhsa--gfx950"')
    e.raw(".text")
    e.raw(".globl %s" % NAME)
    e.raw(".p2align 8")
    e.raw(".type %s,@function" % NAME)
    e.label(NAME)
    prologue(e)
    addr_gemm1_dma(e)
    if opts.get("ldr"):
        e("s_cmp_eq_u32 %s, %d", s(S_ROLE), 0 if opts.get("ldr_first") else 1)
        e("s_cbranch_scc1 L_loader")
        e.skip_dma = True
    gemm1(e)
    attention(e)
    phase2(e)
    if opts.get("tile2"): tail2(e)
    elif opts.get("tile"): tail1(e)
    else:
        partials(e)
        phase3(e)
    dump_stamps(e)
    e.label("L_end")
    e("s_endpgm")
    if opts.get("ldr"): loader(e)
    e.raw("; NSTAMPS %d" % e.nst)
    return e.text() + KD.format(name=NAME, vgpr=256, sgpr=100, acc=256), e.nst

if __name__ == "__main__":
    out = sys.argv[1]
    opts = {}
    for k in sys.argv[2:]:
        if "=" in k: kk, vv = k.split("="); opts[kk] = vv
        else: opts[k] = True
    t, n = build(opts)
    open(out, "w").write(t)
    print("wrote", out, "stamps:", n, "lines:", t.count("\n"))
```

```python
import sys, struct
from asm import Emit, v, a, s, KD

NAME = "standalone__gqa_block_cached__near_ridge_kernel"
X_BYTES, W_BYTES, KV_BYTES, OUT_BYTES, WS_BYTES = 1310720, 5242880, 8388608, 1310720, 268435456
WS_O    = 0
WS_PART = 16 << 20
WS_E1   = 32 << 20
WS_E2   = WS_E1 + 64 * 128
WS_F1   = WS_E1 + (1 << 16)
WS_F2   = WS_E1 + (2 << 16) + (1 << 17)
WS_F2B  = WS_F2 + (1 << 17)
WS_STAMP = 64 << 20
SCALE_LOG2E = (128 ** -0.5) * 1.4426950408889634
def f32bits(x): return struct.unpack("<I", struct.pack("<f", x))[0]

SLOT = 32768
L_K, L_V = 0, 32768
LDS_BYTES = 163840

S_X, S_WQ, S_K, S_V, S_WO, S_OUT, S_WS = 8, 12, 16, 20, 24, 28, 32
S_W, S_HG, S_RP, S_CS, S_H = 36, 37, 38, 39, 40
S_T0, S_T1, S_T2, S_T3 = 41, 42, 43, 44
S_WQ0, S_X0, S_KV0, S_LW, S_OFF, S_LW8 = 45, 46, 47, 48, 49, 50
S_WOB = 52
S_N1, S_N2 = 56, 57
S_OB, S_PB, S_SPIN = 58, 59, 60
S_SIG, S_TAU = 51, 61
S_PS0, S_PS1, S_P3B, S_OUTB = 4, 5, 6, 7
S_STAMP = 64

V_LANE = 1
V_T = 2
V_DWQ, V_DX, V_DK, V_DV = 16, 20, 24, 28
V_EP = 29
V_LIN = 30
V_RK, V_RV = 32, 40
V_DWO = 44
V_RWO = 49
V_TM = 52
V_TCH, V_TCW = 62, 63
S_ROLE = 97
S_OS0, S_OS1 = 98, 99
S_WOT = 96
S_OBR = 90
V_ACC, V_A, V_B, V_Q, V_S, V_P = 64, 128, 160, 168, 200, 232
V_RG = 200
V2_ACC, V2_A = 64, 200
V_PK = 200
V_PA, V_P3L, V_OUT, V_F2P, V_F2O, V_N2V = 2, 3, 4, 5, 6, 7
V_RO = [168 + 4 * i for i in range(8)] + [144 + 4 * i for i in range(6)] + [240 + 4 * i for i in range(4)] + [16, 20, 24] + [32, 36, 40]

class Cnt:
    def __init__(self): self.ops = []
    def issue(self, tag): self.ops.append(tag)
    def after(self, tags):
        if isinstance(tags, str): tags = [tags]
        last = max(i for i, t in enumerate(self.ops) if t in tags)
        return len(self.ops) - 1 - last

class K(Emit):
    def __init__(self, opts):
        super().__init__()
        self.o = opts; self.vm = Cnt(); self.lg = Cnt(); self.nst = 0; self.nbar = 0; self.skip_dma = False
    def stamp(self, kind="main"):
        if not self.o.get("stamps"): return
        if self.o.get("g1st") and kind == "main" and self.nst >= 13: return
        if kind == "g1" and not self.o.get("g1st"): return
        if kind == "fine" and not self.o.get("fine"): return
        if kind == "p2" and not self.o.get("p2st"): return
        self.ncall = getattr(self, "ncall", 0) + 1
        if self.o.get("p2st") and 1 < self.ncall <= 5: return
        if self.o.get("g1st") and kind == "late": return
        self("%s %s", "s_memtime" if self.o.get("cyc") else "s_memrealtime", s(S_STAMP + 2 * self.nst, 2)); self.nst += 1
    def waitv(self, tags, extra=""):
        if self.skip_dma:
            tl = [tags] if isinstance(tags, str) else tags
            tl = [t for t in tl if not (t[:2] in ("st", "wo") or t in ("K", "V"))]
            if not tl:
                if extra: self("s_waitcnt" + extra)
                return
            tags = tl
        n = self.vm.after(tags); assert n <= 63
        self("s_waitcnt vmcnt(%d)%s", n, extra)
    def waitl(self, tags):
        self("s_waitcnt lgkmcnt(%d)", min(15, self.lg.after(tags)))
    def ds(self, text, tag):
        self(text); self.lg.issue(tag)
    def dma(self, tag, vaddr, srd, soff_reg, imm):
        if (self.o.get("skipV") and srd == S_V) or (self.o.get("skipWO") and srd == S_WO) or (self.o.get("skipK") and srd == S_K):
            self.vm.issue(tag + "_skipped"); self.vm.ops[-1] = tag; self("buffer_load_dword %s, %s, %s, 0 offen", v(V_T + 12), v(V_LIN), s(S_X, 4)); return
        aux = "nt " if (self.o.get("nt") and srd in (S_K, S_V)) or (self.o.get("ntw") and srd in (S_WQ, S_WO)) else ""
        self("buffer_load_dwordx4 %s, %s, %s offen offset:%d %slds", v(vaddr), s(srd, 4), s(soff_reg), imm, aux)
        self.vm.issue(tag)
    def bar(self):
        self("s_barrier"); self.nbar += 1

def prologue(e):
    e("s_cmp_ge_u32 s2, 256")
    e("s_cbranch_scc1 L_end")
    for (srd, off) in ((S_X, 0), (S_WQ, 24), (S_WS, 56), (S_K, 8), (S_V, 16), (S_WO, 32), (S_OUT, 40)):
        e("s_load_dwordx2 %s, s[0:1], %d", s(srd, 2), off)
    e("v_and_b32 %s, 63, v0", v(V_LANE))
    e("v_lshrrev_b32 %s, 6, v0", v(V_T))
    e("s_and_b32 %s, s2, 7", s(S_HG))
    e("s_lshr_b32 %s, s2, 3", s(S_T0))
    e("v_readfirstlane_b32 %s, %s", s(S_W), v(V_T))
    e("s_lshr_b32 %s, %s, 2", s(S_RP), s(S_T0))
    e("s_and_b32 %s, %s, 3", s(S_CS), s(S_T0))
    e("s_lshl_b32 %s, %s, 2", s(S_H), s(S_HG))
    e("s_add_u32 %s, %s, %s", s(S_H), s(S_H), s(S_CS))
    for (srd, size) in ((S_X, X_BYTES), (S_K, KV_BYTES), (S_V, KV_BYTES), (S_WQ, W_BYTES), (S_WO, W_BYTES),
                        (S_OUT, OUT_BYTES), (S_WS, WS_BYTES)):
        e("s_mov_b32 %s, 0x%x", s(srd + 2), size)
        e("s_mov_b32 %s, 0x20000", s(srd + 3))
    if e.o.get("ldr"):
        e("s_lshr_b32 %s, %s, 2", s(S_ROLE), s(S_W))
        e("s_and_b32 %s, %s, 3", s(S_W), s(S_W))

def addr_gemm1_dma(e):
    T = V_T; L = v(V_LANE)
    e("v_lshrrev_b32 %s, 4, %s", v(T), L)
    e("v_and_b32 %s, 15, %s", v(T + 1), L)
    e("v_lshlrev_b32 %s, 2, %s", v(T + 2), v(T))
    e("v_xor_b32 %s, %s, %s", v(T + 2), v(T + 1), v(T + 2))
    e("v_lshlrev_b32 %s, 4, %s", v(T + 2), v(T + 2))
    e("v_lshl_add_u32 %s, %s, 13, %s", v(V_DWQ), v(T), v(T + 2))
    e("v_lshl_add_u32 %s, %s, 8, %s", v(V_DV), v(T), v(T + 2))
    for i in range(1, 4): e("v_add_u32 %s, %d, %s", v(V_DWQ + i), i * 31744, v(V_DWQ))
    e("v_xor_b32 %s, %s, %s", v(T + 2), v(T + 1), v(T))
    e("v_lshlrev_b32 %s, 4, %s", v(T + 2), v(T + 2))
    e("v_lshl_add_u32 %s, %s, 8, %s", v(V_DK), v(T), v(T + 2))
    e("v_lshrrev_b32 %s, 3, %s", v(T + 3), L)
    e("v_and_b32 %s, 7, %s", v(T + 4), L)
    e("v_lshrrev_b32 %s, 1, %s", v(T + 5), v(T + 3))
    e("v_xor_b32 %s, %s, %s", v(T + 5), v(T + 4), v(T + 5))
    e("v_lshlrev_b32 %s, 4, %s", v(T + 5), v(T + 5))
    e("v_mul_u32_u24 %s, 1280, %s", v(T + 3), v(T + 3))
    e("v_add_u32 %s, %s, %s", v(V_DX), v(T + 3), v(T + 5))
    e("v_xor_b32 %s, 64, %s", v(T + 5), v(T + 5))
    e("v_add_u32 %s, %s, %s", v(T + 6), v(T + 3), v(T + 5))
    e("v_add_u32 %s, %d, %s", v(V_DX + 1), 9216, v(T + 6))
    e("v_add_u32 %s, %d, %s", v(V_DX + 2), 2 * 9216, v(V_DX))
    e("v_add_u32 %s, %d, %s", v(V_DX + 3), 3 * 9216, v(T + 6))
    for i in range(1, 4): e("v_xor_b32 %s, %d, %s", v(V_DK + i), 64 * i, v(V_DK))
    e("v_lshlrev_b32 %s, 4, %s", v(V_LIN), L)
    e("s_lshl_b32 %s, %s, 17", s(S_WQ0), s(S_W))
    e("s_lshl_b32 %s, %s, 8", s(S_T0), s(S_H))
    e("s_add_u32 %s, %s, %s", s(S_WQ0), s(S_WQ0), s(S_T0))
    e("s_lshl_b32 %s, %s, 2", s(S_T0), s(S_RP))
    e("s_add_u32 %s, %s, %s", s(S_T0), s(S_T0), s(S_W))
    e("s_mul_i32 %s, %s, %d", s(S_X0), s(S_T0), 32 * 1280)
    e("s_lshl_b32 %s, %s, 12", s(S_LW), s(S_W))
    e("s_lshl_b32 %s, %s, 13", s(S_LW8), s(S_W))
    if e.o.get("rot"):
        a_, b_, sa, sb = [int(x) for x in str(e.o.get("rotab", "1,3,0,0")).split(",")]
        e("s_lshr_b32 %s, %s, %d", s(S_SIG), s(S_CS), sb)
        e("s_mul_i32 %s, %s, %d", s(S_SIG), s(S_SIG), b_)
        e("s_lshr_b32 %s, %s, %d", s(S_T0), s(S_RP), sa)
        e("s_mul_i32 %s, %s, %d", s(S_T0), s(S_T0), a_)
        e("s_add_u32 %s, %s, %s", s(S_SIG), s(S_SIG), s(S_T0))
        for _ in range(3):
            e("s_cmp_ge_u32 %s, 10", s(S_SIG))
            e("s_cselect_b32 %s, 10, 0", s(S_T0))
            e("s_sub_u32 %s, %s, %s", s(S_SIG), s(S_SIG), s(S_T0))
    e("s_lshl_b32 %s, %s, 3", s(S_T0), s(S_RP))
    e("s_add_u32 %s, %s, %s", s(S_T0), s(S_T0), s(S_HG))
    e("s_lshl_b32 %s, %s, 7", s(S_T0), s(S_T0))
    e("s_add_u32 %s, %s, 0x%x", s(S_T0), s(S_T0), WS_E1)
    e("s_lshl_b32 %s, %s, 2", s(S_T1), s(S_RP))
    e("s_add_u32 %s, %s, %s", s(S_T1), s(S_T1), s(S_CS))
    e("s_lshl_b32 %s, %s, 7", s(S_T1), s(S_T1))
    e("s_add_u32 %s, %s, 0x%x", s(S_T1), s(S_T1), WS_E2)
    e("v_mov_b32 %s, %s", v(T), s(S_T0))
    e("v_mov_b32 %s, %s", v(T + 1), s(S_T1))
    e("v_cmp_eq_u32 vcc, 1, %s", L)
    e("s_nop 1")
    e("v_cndmask_b32 %s, %s, %s, vcc", v(V_TM), v(T), v(T + 1))

def addr_rest(e):
    T = V_T; L = v(V_LANE)
    HF, C32, NH, R, C, U, W2 = T, T + 1, T + 2, T + 3, T + 4, T + 5, T + 6
    e("v_lshrrev_b32 %s, 5, %s", v(HF), L)
    e("v_and_b32 %s, 31, %s", v(C32), L)
    e("v_bfe_u32 %s, %s, 4, 1", v(NH), L)
    e("v_bfe_u32 %s, %s, 2, 2", v(R), L)
    e("v_and_b32 %s, 3, %s", v(C), L)
    e("v_lshl_add_u32 %s, %s, 3, %s", v(U), v(HF), v(R))
    e("v_lshlrev_b32 %s, 8, %s", v(U), v(U))
    e("v_lshl_add_u32 %s, %s, 5, %s", v(U), v(NH), v(U))
    e("v_and_b32 %s, 1, %s", v(W2), v(C))
    e("v_lshl_add_u32 %s, %s, 4, %s", v(U), v(W2), v(U))
    e("v_lshrrev_b32 %s, 1, %s", v(W2), v(C))
    e("v_lshl_add_u32 %s, %s, 3, %s", v(U), v(W2), v(U))
    e("v_lshl_add_u32 %s, %s, 6, %s", v(V_RG), v(R), v(U))
    for t in range(1, 4): e("v_xor_b32 %s, %d, %s", v(V_RG + t), 64 * t, v(V_RG))
    e("v_bfe_u32 %s, %s, 1, 3", v(U), v(C32))
    e("v_xor_b32 %s, %s, %s", v(U), v(U), v(HF))
    e("v_lshlrev_b32 %s, 4, %s", v(U), v(U))
    e("v_lshl_add_u32 %s, %s, 7, %s", v(U), v(C32), v(U))
    e("s_add_u32 %s, %s, 16384", s(S_T1), s(S_LW))
    e("v_add_u32 %s, %s, %s", v(V_RG + 4), s(S_T1), v(U))
    for u in range(1, 4): e("v_xor_b32 %s, %d, %s", v(V_RG + 4 + u), 32 * u, v(V_RG + 4))
    for b in range(1, 3):
        for i in range(8): e("v_add_u32 %s, 0x%x, %s", v(V_RG + 8 * b + i), 65536 * b, v(V_RG + i))
    e("s_lshr_b32 %s, %s, 1", s(S_T0), s(S_W))
    e("s_lshl_b32 %s, %s, 14", s(S_T0), s(S_T0))
    e("v_lshl_add_u32 %s, %s, 2, %s", v(U), v(HF), v(R))
    e("v_lshlrev_b32 %s, 8, %s", v(W2), v(U))
    e("v_lshl_add_u32 %s, %s, 5, %s", v(W2), v(NH), v(W2))
    e("v_lshl_add_u32 %s, %s, 3, %s", v(W2), v(C), v(W2))
    e("v_lshl_add_u32 %s, %s, 6, %s", v(W2), v(R), v(W2))
    e("s_add_u32 %s, %s, %d", s(S_T1), s(S_T0), L_V)
    e("v_add_u32 %s, %s, %s", v(V_RV), s(S_T1), v(W2))
    for t in range(1, 4): e("v_xor_b32 %s, %d, %s", v(V_RV + t), 64 * t, v(V_RV))
    e("v_mul_u32_u24 %s, 320, %s", v(U), v(U))
    e("v_lshl_add_u32 %s, %s, 5, %s", v(U), v(NH), v(U))
    e("v_lshl_add_u32 %s, %s, 3, %s", v(V_RWO), v(C), v(U))
    e("v_add_u32 %s, %d, %s", v(V_RWO + 1), 13 * 5120, v(V_RWO))
    e("v_add_u32 %s, %d, %s", v(V_RWO + 2), 25 * 5120, v(V_RWO))
    e("v_and_b32 %s, 15, %s", v(U), v(C32))
    e("v_xor_b32 %s, %s, %s", v(U), v(U), v(HF))
    e("v_lshlrev_b32 %s, 4, %s", v(U), v(U))
    e("v_lshl_add_u32 %s, %s, 8, %s", v(U), v(C32), v(U))
    e("v_add_u32 %s, %s, %s", v(V_RK), s(S_T0), v(U))
    for st in range(1, 8): e("v_xor_b32 %s, %d, %s", v(V_RK + st), 32 * st, v(V_RK))
    for i in range(5):
        e("v_add_u32 %s, %d, %s", v(T), 64 * i, L)
        e("v_mul_u32_u24 %s, %d, %s", v(T + 1), 3277, v(T))
        e("v_lshrrev_b32 %s, 16, %s", v(T + 1), v(T + 1))
        e("v_mul_u32_u24 %s, 20, %s", v(T + 2), v(T + 1))
        e("v_sub_u32 %s, %s, %s", v(T + 2), v(T), v(T + 2))
        e("v_mul_u32_u24 %s, 1280, %s", v(T + 1), v(T + 1))
        e("v_lshl_add_u32 %s, %s, 4, %s", v(V_DWO + i), v(T + 2), v(T + 1))
        if i & 3: e("v_subrev_u32 %s, %d, %s", v(V_DWO + i), (i & 3) * 1024, v(V_DWO + i))
    e("s_lshr_b32 %s, %s, 1", s(S_T0), s(S_W))
    e("s_lshl_b32 %s, %s, 1", s(S_T1), s(S_RP))
    e("s_add_u32 %s, %s, %s", s(S_T0), s(S_T0), s(S_T1))
    e("s_lshl_b32 %s, %s, 5", s(S_T0), s(S_T0))
    e("s_add_u32 %s, %s, %s", s(S_T0), s(S_T0), s(S_H))
    e("s_lshl_b32 %s, %s, 14", s(S_KV0), s(S_T0))
    e("s_and_b32 %s, %s, 1", s(S_T0), s(S_W))
    e("s_lshl_b32 %s, %s, 13", s(S_T0), s(S_T0))
    e("s_add_u32 %s, %s, %s", s(S_KV0), s(S_KV0), s(S_T0))
    e("s_mul_i32 %s, %s, 320", s(S_T2), s(S_CS))
    e("s_mul_i32 %s, %s, %d", s(S_T3), s(S_W), 16 * 1280)
    e("s_add_u32 %s, %s, %s", s(S_T2), s(S_T2), s(S_T3))
    e("s_mul_i32 %s, %s, %d", s(S_T3), s(S_HG), 512 * 1280)
    e("s_add_u32 %s, %s, %s", s(S_T2), s(S_T2), s(S_T3))
    for j in range(4):
        e("s_add_u32 %s, %s, %d", s(S_T0), s(S_CS), j)
        e("s_and_b32 %s, %s, 3", s(S_T0), s(S_T0))
        e("s_mul_i32 %s, %s, %d", s(S_T0), s(S_T0), 128 * 1280)
        e("s_add_u32 %s, %s, %s", s(S_WOB + j), s(S_T0), s(S_T2))
    e("v_lshlrev_b32 %s, 7, %s", v(V_TCH), L)
    e("v_min_u32 %s, 39, %s", v(V_TCW), L)
    e("v_lshlrev_b32 %s, 7, %s", v(V_TCW), v(V_TCW))
    e("s_lshr_b32 %s, s2, 3", s(S_T0))
    e("s_lshl_b32 %s, %s, 2", s(S_T0), s(S_T0))
    e("s_add_u32 %s, %s, %s", s(S_T0), s(S_T0), s(S_W))
    e("s_lshl_b32 %s, %s, 2", s(S_T0), s(S_T0))
    e("s_lshl_b32 %s, %s, 9", s(S_T1), s(S_HG))
    e("s_add_u32 %s, %s, %s", s(S_T0), s(S_T0), s(S_T1))
    e("s_mul_i32 %s, %s, 1280", s(S_WOT), s(S_T0))
    e("s_lshl_b32 %s, %s, 3", s(S_T0), s(S_RP))
    e("s_add_u32 %s, %s, %s", s(S_T0), s(S_T0), s(S_HG))
    e("s_lshl_b32 %s, %s, 2", s(S_T0), s(S_T0))
    e("s_add_u32 %s, %s, %s", s(S_T0), s(S_T0), s(S_W))
    e("s_lshl_b32 %s, %s, 15", s(S_OB), s(S_T0))

def grp_stage(e, st):
    if e.skip_dma: return []
    slot = st % 5
    rot = e.o.get("rot")
    def wq(i):
        def f():
            if i == 0:
                e("s_add_u32 m0, %s, %d", s(S_LW), slot * SLOT)
                if rot:
                    e("s_lshl_b32 %s, %s, 19", s(S_OFF), s(S_SIG))
                    e("s_add_u32 %s, %s, %s", s(S_OFF), s(S_OFF), s(S_WQ0))
                else:
                    e("s_add_u32 %s, %s, %d", s(S_OFF), s(S_WQ0), st * 64 * 8192)
            e.dma("st%d" % st, V_DWQ + i, S_WQ, S_OFF, i * 1024)
        return f
    def xx(i):
        def f():
            if i == 0:
                e("s_add_u32 m0, %s, %d", s(S_LW), slot * SLOT + 16384)
                if rot:
                    e("s_lshl_b32 %s, %s, 7", s(S_OFF), s(S_SIG))
                    e("s_add_u32 %s, %s, %s", s(S_OFF), s(S_OFF), s(S_X0))
                else:
                    e("s_add_u32 %s, %s, %d", s(S_OFF), s(S_X0), st * 128)
            e.dma("st%d" % st, V_DX + i, S_X, S_OFF, i * 1024)
            if i == 3 and rot:
                e("s_add_u32 %s, %s, 1", s(S_SIG), s(S_SIG))
                e("s_cmp_eq_u32 %s, 10", s(S_SIG))
                e("s_cselect_b32 %s, 0, %s", s(S_SIG), s(S_SIG))
        return f
    return [wq(i) for i in range(4)] + [xx(i) for i in range(4)]

def grp_kv(e, which):
    if e.skip_dma: return []
    srd, base, tag = (S_K, L_K, "K") if which == "K" else (S_V, L_V, "V")
    def f(i):
        def g():
            if i % 4 == 0:
                e("s_add_u32 m0, %s, %d", s(S_LW8), base + (i // 4) * 4096)
                e("s_add_u32 %s, %s, %d", s(S_OFF), s(S_KV0), (i // 4) * 4096)
            e.dma(tag, (V_DK + (i & 3)) if which == "K" else V_DV, srd, S_OFF, (i & 3) * 1024)
        return g
    return [f(i) for i in range(8)]

def grp_wo(e, st):
    if e.skip_dma: return []
    def f(i):
        def g():
            if i == 0:
                e("s_add_u32 %s, %s, %d", s(S_T0), s(S_W), 13 + 4 * st)
                e("s_and_b32 %s, %s, 31", s(S_T0), s(S_T0))
                e("s_mul_i32 %s, %s, 5120", s(S_T0), s(S_T0))
                e("s_mov_b32 m0, %s", s(S_T0))
                e("s_add_u32 %s, %s, %d", s(S_OFF), s(S_WOB + (st >> 1)), (st & 1) * 4 * 16 * 1280)
            if i == 4:
                e("s_add_u32 m0, %s, 4096", s(S_T0))
                e("s_nop 0")
            e.dma("wo%d" % st, V_DWO + i, S_WO, S_OFF, (i & 3) * 1024)
        return g
    return [f(i) for i in range(5)]

def g1_reads(ks):
    st, s4, b = ks >> 2, ks & 3, ks & 1
    slot = st % 5
    base, rel = V_RG + 8 * (slot // 2), (slot % 2) * SLOT
    r = ["ds_read_b128 %s, %s offset:%d" % (v(V_B + 4 * b, 4), v(base + 4 + s4), rel)]
    for t in range(4):
        for j in range(2):
            r.append("ds_read_b64_tr_b16 %s, %s offset:%d" % (v(V_A + 16 * b + 4 * t + 2 * j, 2), v(base + t), rel + s4 * 4096 + j * 1024))
    return r

def grp_touch(e, which):
    if e.skip_dma: return []
    nt = "nt" if e.o.get("ntt") else ""
    def f():
        if which in "KV": e("buffer_load_dword %s, %s, %s, %s offen %s", v(V_T + 12), v(V_TCH), s(S_V if which == "V" else S_K, 4), s(S_KV0), nt)
        else: e("buffer_load_dword %s, %s, %s, %s offen %s", v(V_T + 12), v(V_TCW), s(S_WO, 4), s(S_WOT), nt)
        e.vm.issue(which + "t")
    return [f]

def pop(q, n):
    for _ in range(n):
        if q: q.pop(0)()

def gemm1(e):
    o = e.o
    e("s_waitcnt lgkmcnt(0)")
    e.stamp()
    def ep(): e("buffer_load_dword %s, %s, %s, 0 offen sc1", v(V_EP), v(V_TM), s(S_WS, 4)); e.vm.issue("ep")
    if not o.get("eplate"): ep()
    for st in range(2):
        for f in grp_stage(e, st): f()
    def xw_touch():
        L = v(V_LANE); A, B_ = 12, 13
        full = o.get("xw") == "all"
        e("s_lshr_b32 %s, s2, 3", s(S_T0))
        e("s_lshl_b32 %s, %s, 2", s(S_T1), s(S_T0))
        e("s_add_u32 %s, %s, %s", s(S_T1), s(S_T1), s(S_W))
        e("s_mul_i32 %s, %s, %d", s(S_T1), s(S_T1), 8 * 1280)
        e("v_lshrrev_b32 %s, 3, %s", v(A), L)
        e("v_mul_u32_u24 %s, 1280, %s", v(A), v(A))
        e("v_and_b32 %s, 7, %s", v(B_), L)
        e("v_lshl_add_u32 %s, %s, 7, %s", v(A), v(B_), v(A))
        if not full: e("s_add_u32 %s, %s, 256", s(S_T1), s(S_T1))
        e("buffer_load_dword v15, %s, %s, %s offen", v(A), s(S_X, 4), s(S_T1)); e.vm.issue("xt")
        if full:
            e("v_lshrrev_b32 %s, 1, %s", v(A), L)
            e("v_mul_u32_u24 %s, 1280, %s", v(A), v(A))
            e("v_and_b32 %s, 1, %s", v(B_), L)
            e("v_lshl_add_u32 %s, %s, 7, %s", v(A), v(B_), v(A))
            e("s_add_u32 %s, %s, 1024", s(S_T1), s(S_T1))
            e("s_mov_b64 exec, 0xffff")
            e("buffer_load_dword v15, %s, %s, %s offen", v(A), s(S_X, 4), s(S_T1)); e.vm.issue("xt")
            e("s_mov_b64 exec, -1")
        nrow, first = (5, 0) if full else (4, 128)
        e("s_mul_i32 %s, %s, %d", s(S_T1), s(S_T0), 4 * nrow)
        e("s_mul_i32 %s, %s, %d", s(S_T2), s(S_W), nrow)
        e("s_add_u32 %s, %s, %s", s(S_T1), s(S_T1), s(S_T2))
        e("s_add_u32 %s, %s, %d", s(S_T1), s(S_T1), first)
        e("s_lshl_b32 %s, %s, 13", s(S_T1), s(S_T1))
        e("s_lshl_b32 %s, %s, 10", s(S_T2), s(S_HG))
        e("s_add_u32 %s, %s, %s", s(S_T1), s(S_T1), s(S_T2))
        e("v_lshrrev_b32 %s, 3, %s", v(A), L)
        e("v_lshlrev_b32 %s, 13, %s", v(A), v(A))
        e("v_and_b32 %s, 7, %s", v(B_), L)
        e("v_lshl_add_u32 %s, %s, 7, %s", v(A), v(B_), v(A))
        m = (1 << (8 * nrow)) - 1
        e("s_mov_b32 exec_lo, 0x%x\ns_mov_b32 exec_hi, 0x%x", m & 0xffffffff, m >> 32)
        e("buffer_load_dword v15, %s, %s, %s offen", v(A), s(S_WQ, 4), s(S_T1)); e.vm.issue("xt")
        e("s_mov_b64 exec, -1")
    if o.get("cpf"):
        e("s_getpc_b64 s[62:63]")
        e.label("L_pc")
        e("s_sub_u32 s62, s62, L_pc-%s", NAME)
        e("s_subb_u32 s63, s63, 0")
        e("s_lshl_b32 %s, %s, 6", s(S_T0), s(S_W))
        e("v_add_u32 v12, %s, %s", s(S_T0), v(V_LANE))
        e("v_lshlrev_b32 v12, 7, v12")
        e("v_min_u32 v12, L_end-%s, v12", NAME)
        e("global_load_dword v15, v12, s[62:63]"); e.vm.issue("cpf")
    if o.get("xw") and not o.get("xw_b"): xw_touch()
    if o.get("eplate"): ep()
    addr_rest(e)
    if o.get("tlb"):
        e("s_lshl_b32 %s, %s, 2", s(S_T0), s(S_RP))
        e("s_add_u32 %s, %s, %s", s(S_T0), s(S_T0), s(S_CS))
        e("s_mul_i32 %s, %s, %d", s(S_T0), s(S_T0), 64 * 5120)
        e("s_add_u32 %s, %s, 0x%x", s(S_T0), s(S_T0), WS_PART)
        e("s_mul_i32 %s, %s, %d", s(S_T1), s(S_RP), 128 * 1280)
        e("s_mov_b64 exec, 1")
        e("v_mov_b32 v14, 0")
        for (srd, so) in ((S_WS, S_OB), (S_WS, S_T0), (S_OUT, S_T1), (S_K, S_KV0), (S_V, S_KV0), (S_WO, S_WOB)):
            e("buffer_load_dword v15, v14, %s, %s offen", s(srd, 4), s(so)); e.vm.issue("tlb")
        e("s_mov_b64 exec, -1")
    e.waitv("st0")
    e.bar()
    e.stamp()
    for r in g1_reads(0): e(r)
    plan = {b: grp_stage(e, b + 3) for b in range(-1, 7)}
    plan[7] = grp_kv(e, "K") + (grp_touch(e, "V") if o.get("vt") else [])
    def ftouch():
        L = v(V_LANE); A, B_ = 12, 13
        e("s_lshr_b32 %s, %s, 1", s(S_T0), s(S_RP))
        e("s_add_u32 %s, %s, %s", s(S_T0), s(S_T0), s(S_CS))
        e("s_add_u32 %s, %s, 6", s(S_T0), s(S_T0))
        e("s_cmp_ge_u32 %s, 10", s(S_T0))
        e("s_cselect_b32 %s, 10, 0", s(S_T1))
        e("s_sub_u32 %s, %s, %s", s(S_T0), s(S_T0), s(S_T1))
        e("s_lshl_b32 %s, %s, 7", s(S_T0), s(S_T0))
        e("s_add_u32 %s, %s, %s", s(S_T0), s(S_T0), s(S_X0))
        e("v_and_b32 %s, 31, %s", v(A), L)
        e("v_mul_u32_u24 %s, 1280, %s", v(A), v(A))
        e("s_mov_b32 exec_hi, 0")
        e("buffer_load_dword v15, %s, %s, %s offen", v(A), s(S_X, 4), s(S_T0)); e.vm.issue("ft")
        e("s_lshr_b32 %s, %s, 1", s(S_T0), s(S_CS))
        e("s_mul_i32 %s, %s, 3", s(S_T0), s(S_T0))
        e("s_min_u32 %s, %s, 5", s(S_T1), s(S_RP))
        e("s_add_u32 %s, %s, %s", s(S_T0), s(S_T0), s(S_T1))
        e("s_add_u32 %s, %s, 4", s(S_T0), s(S_T0))
        e("s_cmp_ge_u32 %s, 10", s(S_T0))
        e("s_cselect_b32 %s, 10, 0", s(S_T1))
        e("s_sub_u32 %s, %s, %s", s(S_T0), s(S_T0), s(S_T1))
        e("s_lshl_b32 %s, %s, 19", s(S_T0), s(S_T0))
        e("s_add_u32 %s, %s, %s", s(S_T0), s(S_T0), s(S_WQ0))
        e("v_lshrrev_b32 %s, 1, %s", v(A), L)
        e("v_lshlrev_b32 %s, 13, %s", v(A), v(A))
        e("v_and_b32 %s, 1, %s", v(B_), L)
        e("v_lshl_add_u32 %s, %s, 7, %s", v(A), v(B_), v(A))
        e("buffer_load_dword v15, %s, %s, %s offen", v(A), s(S_WQ, 4), s(S_T0)); e.vm.issue("ft")
        e("s_mov_b64 exec, -1")
    if "ft_b" in o:
        b_ = int(o["ft_b"]); plan[b_] = [ftouch] + plan[b_]
    if o.get("xw") and o.get("xw_b"):
        b_ = int(o["xw_b"]); plan[b_] = [xw_touch] + plan[b_]
    if "kt_b" in o:
        b_ = int(o["kt_b"]); plan[b_] = grp_touch(e, "K") + plan[b_]
    if "vt_b" in o:
        b_ = int(o["vt_b"]); plan[b_] = grp_touch(e, "V") + plan[b_]
    if "wot_b" in o:
        b_ = int(o["wot_b"]); plan[b_] = plan[b_] + grp_touch(e, "wo")
    plan[8] = grp_kv(e, "V") + (grp_touch(e, "wo") if o.get("wot") else [])
    plan[9] = grp_wo(e, 0) + grp_wo(e, 1) + (grp_touch(e, "wo") if o.get("wot2") else [])
    if o.get("schedB"): plan[9] = []
    pending = list(plan[-1])
    NK = 40
    for ks in range(NK):
        st, s4, b = ks >> 2, ks & 3, ks & 1
        last = ks == NK - 1
        boundary = (s4 == 3)
        nxt = g1_reads(ks + 1) if not last else []
        if boundary:
            if e.skip_dma and st == 2: e.waitv("ep")
            soft = o.get("softb") and not last
            e.waitv("st%d" % (st + 1) if not last else "K", "" if soft else " lgkmcnt(0)")
            e.bar()
            e.stamp("g1")
            pending += plan[st]
        if last:
            nxt = [kread_text(kt, st_, 2 * st_ + kt) for st_ in range(2) for kt in range(2)]
        left = 3 - ((ks + 1) & 3) + 1 if ks >= 3 else 3 - ks
        want = 0 if last else -(-len(pending) // max(1, left))
        slots = {1: (1,), 2: (1, 3), 3: (1, 2, 3)}.get(min(want, 3), ())
        for t in range(4):
            if not boundary or (o.get("softb") and not last):
                if o.get("w2"):
                    if t in (0, 2): e("s_waitcnt lgkmcnt(%d)", {0: 4, 2: 6}[t])
                else: e("s_waitcnt lgkmcnt(%d)", [6, 7, 8, 9][t])
            c = "0" if ks == 0 else v(V_ACC + 16 * t, 16)
            e("v_mfma_f32_32x32x16_bf16 %s, %s, %s, %s", v(V_ACC + 16 * t, 16), v(V_A + 16 * b + 4 * t, 4), v(V_B + 4 * b, 4), c)
            if t < 3:
                for r in nxt[3 * t:3 * t + 3]: e(r)
            if t in slots: pop(pending, 1)
    e.pending = pending
    e.stamp()

def loader(e):
    o = e.o
    nbar_main = e.nbar
    e.skip_dma = False; e.vm = Cnt(); e.nbar = 0
    e.label("L_loader")
    if o.get("ldr_prio"): e("s_setprio %d" % int(o["ldr_prio"]))
    e("s_waitcnt lgkmcnt(0)")
    def run(fs):
        for f in fs: f()
    run(grp_stage(e, 0)); run(grp_stage(e, 1))
    addr_rest(e)
    e.waitv("st0"); e.bar()
    for b in range(-1, 7):
        run(grp_stage(e, b + 3))
        e.waitv("st%d" % (b + 2)); e.bar()
    run(grp_kv(e, "K")); e.waitv("st9"); e.bar()
    run(grp_kv(e, "V"))
    if o.get("wot"): run(grp_touch(e, "wo"))
    e.waitv("K"); e.bar()
    w0 = grp_wo(e, 0)
    n0 = int(o.get("pre_v", 2))
    run(w0[:n0])
    e.waitv("V"); e.bar()
    run(w0[n0:])
    npv = int(o.get("pre_pv", 3))
    for st_ in range(1, npv): run(grp_wo(e, st_))
    e.waitv("wo1"); e.bar()
    for st_ in range(npv, 8): run(grp_wo(e, st_))
    e("s_waitcnt vmcnt(0)"); e.bar()
    assert e.nbar == nbar_main, (e.nbar, nbar_main)
    e("s_endpgm")

def kread_text(kt, st_, buf):
    return "ds_read_b128 %s, %s offset:%d" % (v(V_A + 4 * buf, 4), v(V_RK + st_), L_K + kt * 8192)

def attention(e):
    lg = e.lg; pending = e.pending
    for st_ in range(2):
        for kt in range(2): lg.issue("k%d_%d" % (st_, kt))
    def kread(kt, st_, buf): e.ds(kread_text(kt, st_, buf), "k%d_%d" % (st_, kt))
    def qcvt(t):
        for u in range(2):
            for d in range(4):
                r0 = V_ACC + 16 * t + 8 * u + 2 * d
                e("v_cvt_pk_bf16_f32 %s, %s, %s", v(V_Q + 8 * t + 4 * u + d), v(r0), v(r0 + 1))
    for st_ in range(2, 4):
        for kt in range(2): kread(kt, st_, 2 * st_ + kt)
    e("s_nop 4")
    qcvt(0); qcvt(1); qcvt(2)
    e("s_nop 1")
    for st_ in range(8):
        if st_ == 2: qcvt(3); e("s_nop 0")
        for kt in range(2):
            buf = (2 * st_ + kt) % 8
            e.waitl("k%d_%d" % (st_, kt))
            c = "0" if st_ == 0 else v(V_S + 16 * kt, 16)
            e("v_mfma_f32_32x32x16_bf16 %s, %s, %s, %s", v(V_S + 16 * kt, 16), v(V_A + 4 * buf, 4), v(V_Q + 4 * st_, 4), c)
            if st_ < 4: kread(kt, st_ + 4, buf)
            if pending: pending.pop(0)()
    schedB = e.o.get("schedB")
    def vreads(t, st_, buf):
        for j in range(2):
            e.ds("ds_read_b64_tr_b16 %s, %s offset:%d" % (v(V_A + 4 * buf + 2 * j, 2), v(V_RV + t), st_ * 4096 + j * 2048), "v%d_%d" % (st_, t))
    def vbarrier():
        e.waitv("V")
        e.bar()
        if e.o.get("pvt"):
            for t in range(2):
                for st_ in range(4): vreads(t, st_, 4 * t + st_)
        else:
            for st_ in range(2):
                for t in range(4): vreads(t, st_, 4 * st_ + t)
    if not schedB: vbarrier()
    else: e("s_nop 7\ns_nop 3")
    e.stamp()
    assert not pending
    S = V_S; M, M2, SUM, SUM2 = V_TM, V_TM + 1, V_TM + 2, V_TM + 4
    e("v_max3_f32 %s, %s, %s, %s", v(M), v(S), v(S + 1), v(S + 2))
    e("v_max3_f32 %s, %s, %s, %s", v(M2), v(S + 3), v(S + 4), v(S + 5))
    for i in range(6, 16, 4):
        e("v_max3_f32 %s, %s, %s, %s", v(M), v(M), v(S + i), v(S + i + 1))
        if i + 2 < 16: e("v_max3_f32 %s, %s, %s, %s", v(M2), v(M2), v(S + i + 2), v(S + i + 3))
    for i in range(16, 32, 4):
        e("v_max3_f32 %s, %s, %s, %s", v(M), v(M), v(S + i), v(S + i + 1))
        e("v_max3_f32 %s, %s, %s, %s", v(M2), v(M2), v(S + i + 2), v(S + i + 3))
    e("v_max_f32 %s, %s, %s", v(M), v(M), v(M2))
    e("v_mov_b32 %s, %s", v(M2), v(M))
    e("s_mov_b32 %s, 0x%08x", s(S_T1), f32bits(SCALE_LOG2E))
    e("s_nop 0")
    e("v_permlane32_swap_b32 %s, %s", v(M), v(M2))
    e("s_nop 0")
    e("v_max_f32 %s, %s, %s", v(M), v(M), v(M2))
    e("v_mul_f32 %s, %s, %s", v(M), s(S_T1), v(M))
    pk = e.o.get("pk")
    if pk:
        e("s_mov_b32 s62, %s", s(S_T1)); e("s_mov_b32 s63, %s", s(S_T1))
        for i in range(0, 32, 2):
            e("v_pk_fma_f32 %s, %s, s[62:63], %s op_sel_hi:[1,1,0] neg_lo:[0,0,1] neg_hi:[0,0,1]", v(S + i, 2), v(S + i, 2), v(M, 2))
    else:
        for i in range(32):
            e("v_fma_f32 %s, %s, %s, -%s", v(S + i), v(S + i), s(S_T1), v(M))
    sm = (grp_wo(e, 2) + grp_wo(e, 3)) if e.o.get("schedA") and not schedB else []
    for i in range(32):
        e("v_exp_f32 %s, %s", v(S + i), v(S + i))
        if i % 3 == 2: pop(sm, 1)
    assert not sm
    if schedB and not e.o.get("vlate"):
        vbarrier()
        sm = grp_wo(e, 0) + grp_wo(e, 1)
    e("s_nop 0")
    if pk:
        e("v_pk_add_f32 %s, %s, %s", v(SUM, 2), v(S, 2), v(S + 2, 2))
        e("v_pk_add_f32 %s, %s, %s", v(SUM2, 2), v(S + 4, 2), v(S + 6, 2))
        for i in range(8, 32, 4):
            e("v_pk_add_f32 %s, %s, %s", v(SUM, 2), v(SUM, 2), v(S + i, 2))
            e("v_pk_add_f32 %s, %s, %s", v(SUM2, 2), v(SUM2, 2), v(S + i + 2, 2))
        e("v_pk_add_f32 %s, %s, %s", v(SUM, 2), v(SUM, 2), v(SUM2, 2))
        e("v_add_f32 %s, %s, %s", v(SUM), v(SUM), v(SUM + 1))
    else:
        e("v_add_f32 %s, %s, %s", v(SUM), v(S), v(S + 1))
        e("v_add_f32 %s, %s, %s", v(SUM + 1), v(S + 2), v(S + 3))
        e("v_add_f32 %s, %s, %s", v(SUM2), v(S + 4), v(S + 5))
        e("v_add_f32 %s, %s, %s", v(SUM2 + 1), v(S + 6), v(S + 7))
        for i in range(8, 32, 4):
            e("v_add_f32 %s, %s, %s", v(SUM), v(SUM), v(S + i))
            e("v_add_f32 %s, %s, %s", v(SUM + 1), v(SUM + 1), v(S + i + 1))
            e("v_add_f32 %s, %s, %s", v(SUM2), v(SUM2), v(S + i + 2))
            e("v_add_f32 %s, %s, %s", v(SUM2 + 1), v(SUM2 + 1), v(S + i + 3))
        e("v_add_f32 %s, %s, %s", v(SUM), v(SUM), v(SUM + 1))
        e("v_add_f32 %s, %s, %s", v(SUM2), v(SUM2), v(SUM2 + 1))
        e("v_add_f32 %s, %s, %s", v(SUM), v(SUM), v(SUM2))
    e("v_mov_b32 %s, %s", v(SUM2), v(SUM))
    e("s_nop 1")
    e("v_permlane32_swap_b32 %s, %s", v(SUM), v(SUM2))
    e("s_nop 0")
    e("v_add_f32 %s, %s, %s", v(SUM), v(SUM), v(SUM2))
    e("v_rcp_f32 %s, %s", v(SUM), v(SUM))
    e("s_nop 0")
    if pk:
        for i in range(0, 32, 2):
            e("v_pk_mul_f32 %s, %s, %s op_sel_hi:[1,0]", v(S + i, 2), v(S + i, 2), v(SUM, 2))
            if i % 4 == 2: pop(sm, 1)
    else:
        for i in range(32):
            e("v_mul_f32 %s, %s, %s", v(S + i), v(S + i), v(SUM))
            if i % 4 == 3: pop(sm, 1)
    for f in range(4):
        for d in range(4):
            r0 = S + 8 * f + 2 * d
            e("v_cvt_pk_bf16_f32 %s, %s, %s", v(V_P + 4 * f + d), v(r0), v(r0 + 1))
    if schedB and e.o.get("vlate"):
        vbarrier()
        sm = grp_wo(e, 0) + grp_wo(e, 1)
    e.stamp()
    pv = (grp_wo(e, 4) + grp_wo(e, 5)) if e.o.get("schedA") and not e.o.get("schedC") else []
    if schedB: pv = sm + ([] if e.o.get("schedD") else grp_wo(e, 2) + grp_wo(e, 3))
    e("v_readlane_b32 %s, %s, 0", s(S_N1), v(V_EP))
    e("v_readlane_b32 %s, %s, 1", s(S_N2), v(V_EP))
    e("s_lshl_b32 %s, %s, 13", s(S_OS0), s(S_CS))
    e("s_add_u32 %s, %s, %s", s(S_OS0), s(S_OS0), s(S_OB))
    e("s_add_u32 %s, %s, 1", s(S_N1), s(S_N1))
    e("s_add_u32 %s, %s, 1", s(S_N2), s(S_N2))
    e("s_add_u32 %s, %s, 4096", s(S_OS1), s(S_OS0))
    def ostore(t):
        for u in range(2):
            for d in range(4):
                r0 = V_ACC + 16 * t + 8 * u + 2 * d
                e("v_cvt_pk_bf16_f32 %s, %s, %s", v(V_Q + 8 * t + 4 * u + d), v(r0), v(r0 + 1))
            f = 2 * t + u
            e("buffer_store_dwordx4 %s, %s, %s, %s offen offset:%d %s", v(V_Q + 4 * f, 4), v(V_LIN), s(S_WS, 4), s(S_OS0 if f < 4 else S_OS1), (f % 4) * 1024, (str(e.o.get("fastO")).replace("True", "").replace("_", " ")) if e.o.get("fastO") else "sc1")
            e.vm.issue("ost")
    if e.o.get("pvt"):
        for t in range(4):
            for st_ in range(4):
                n = 4 * t + st_
                e.waitl("v%d_%d" % (st_, t))
                c = "0" if st_ == 0 else v(V_ACC + 16 * t, 16)
                e("v_mfma_f32_32x32x16_bf16 %s, %s, %s, %s", v(V_ACC + 16 * t, 16), v(V_A + 4 * (n % 8), 4), v(V_P + 4 * st_, 4), c)
                if t < 2: vreads(t + 2, st_, n % 8)
                pop(pv, 1)
            if t >= 1:
                if t == 3: e("s_nop 3")
                if t == 2: e("s_nop 3")
                ostore(t - 1)
        e("s_nop 3")
        ostore(3)
    else:
        for st_ in range(4):
            for t in range(4):
                buf = (4 * st_ + t) % 8
                e.waitl("v%d_%d" % (st_, t))
                c = "0" if st_ == 0 else v(V_ACC + 16 * t, 16)
                e("v_mfma_f32_32x32x16_bf16 %s, %s, %s, %s", v(V_ACC + 16 * t, 16), v(V_A + 4 * buf, 4), v(V_P + 4 * st_, 4), c)
                if st_ < 2: vreads(t, st_ + 2, buf)
                pop(pv, 1)
        e("s_nop 7\ns_nop 1")
        for t in range(4): ostore(t)
    assert not pv
    e.stamp()

def p2_reads(lg_):
    b = lg_ & 1
    pg = (13 + lg_) % 32
    base, rel = (0, pg) if pg < 13 else ((1, pg - 13) if pg < 25 else (2, pg - 25))
    return ["ds_read_b64_tr_b16 %s, %s offset:%d" % (v(V2_A + 20 * b + 4 * nt + 2 * j, 2), v(V_RWO + base), rel * 5120 + 8 * j * 320 + 64 * nt)
            for nt in range(5) for j in range(2)]

def poll(e, label, vaddr, nonce, nlanes):
    e("s_mov_b64 exec, 0x%x", (1 << nlanes) - 1)
    e("s_mov_b32 %s, 0", s(S_SPIN))
    e.label(label)
    e("buffer_load_dword %s, %s, %s, 0 offen sc1", v(V_T + 8), v(vaddr), s(S_WS, 4))
    e("s_waitcnt vmcnt(0)")
    e("v_cmp_ne_u32 vcc, %s, %s", s(nonce), v(V_T + 8))
    e("s_add_u32 %s, %s, 1", s(S_SPIN), s(S_SPIN))
    e("s_cmp_ge_u32 %s, 0x%x", s(S_SPIN), 1 << 17)
    e("s_cbranch_scc1 %s_done", label)
    if e.o.get("psleep"):
        e("s_cbranch_vccz %s_done", label)
        e("s_sleep %d", int(e.o["psleep"]))
        e("s_branch %s", label)
    else:
        e("s_cbranch_vccnz %s", label)
    e.label(label + "_done")
    e("s_mov_b64 exec, -1")
    e.vm.issue("poll"); e.vm.ops = ["poll"]

def phase2(e):
    T = V_T; L = v(V_LANE)
    e.waitv("wo1")
    e.bar()
    for r in p2_reads(0): e(r)
    e("s_lshr_b32 %s, %s, 15", s(S_T2), s(S_OB))
    e("s_lshl_b32 %s, %s, 9", s(S_T2), s(S_T2))
    e("s_add_u32 %s, %s, 0x%x", s(S_T2), s(S_T2), WS_F1)
    e("v_and_b32 %s, 3, %s", v(T), L)
    e("v_lshlrev_b32 %s, 7, %s", v(T), v(T))
    e("v_add_u32 %s, %s, %s", v(V_TM + 6), s(S_T2), v(T))
    e("s_lshl_b32 %s, %s, 7", s(S_T1), s(S_CS))
    e("s_add_u32 %s, %s, %s", s(S_T2), s(S_T2), s(S_T1))
    e("v_mov_b32 %s, %s", v(V_TM + 7), s(S_T2))
    e("v_mov_b32 %s, %s", v(V_TM + 8), s(S_N1))
    early = e.o.get("woearly") or e.o.get("schedA") or e.o.get("schedB")
    schedA = e.o.get("schedA") or e.o.get("schedB")
    flag_at = int(e.o.get("flag_at", 8))
    pending = [] if schedA else grp_wo(e, 2) + grp_wo(e, 3) + ([] if early else grp_wo(e, 4))
    if e.o.get("schedB") or e.o.get("schedC"): pending = grp_wo(e, 4) + grp_wo(e, 5)
    if e.o.get("schedD"): pending = grp_wo(e, 2) + grp_wo(e, 3) + grp_wo(e, 4) + grp_wo(e, 5)
    held = []
    if e.o.get("woafter"): held, pending = pending, []
    def kstep(ks, bsrc, nxt, first):
        b = ks & 1
        for nt in range(5):
            issued_new = min(len(nxt), [0, 3, 6, 8, 10][nt])
            if e.o.get("w2"):
                if nt in (0, 2, 4): e("s_waitcnt lgkmcnt(%d)", min(15, 2 * (4 - min(4, nt + 1)) + issued_new))
            else: e("s_waitcnt lgkmcnt(%d)", min(15, 2 * (4 - nt) + issued_new))
            c = "0" if first else v(V2_ACC + 16 * nt, 16)
            e("v_mfma_f32_32x32x16_bf16 %s, %s, %s, %s", v(V2_ACC + 16 * nt, 16), v(V2_A + 20 * b + 4 * nt, 4), bsrc, c)
            lo, hi = [(0, 3), (3, 6), (6, 8), (8, 10), (10, 10)][nt]
            for r in nxt[lo:hi]: e(r)
            if nt >= 2: pop(pending, 1)
    def publish():
        e.waitv("ost")
        e("s_mov_b64 exec, 1")
        e("buffer_store_dword %s, %s, %s, 0 offen %s", v(V_TM + 8), v(V_TM + 7), s(S_WS, 4), "" if e.o.get("fastO") else "sc1"); e.vm.issue("f1")
        e("s_mov_b64 exec, -1")
    if schedA and e.o.get("wo67first"): pending += grp_wo(e, 6) + grp_wo(e, 7)
    for ks in range(8):
        if ks == flag_at:
            publish()
            pending += held
            if schedA and not e.o.get("wo67first") and not e.o.get("late67"): pending += grp_wo(e, 6) + grp_wo(e, 7)
        kstep(ks, v(V_Q + 4 * ks, 4), p2_reads(ks + 1) if ks < 7 else [], ks == 0)
    e.stamp()
    if flag_at >= 8:
        publish()
        if schedA and not e.o.get("wo67first") and not e.o.get("late67"): pending += grp_wo(e, 6) + grp_wo(e, 7)
    pop(pending, len(pending))
    tile = e.o.get("tile") or e.o.get("tile2")
    if tile: tail_addresses(e)
    if early and not schedA:
        for st_ in range(4, 8): pop(grp_wo(e, st_), 5)
    if e.o.get("barpre"):
        e("s_waitcnt vmcnt(0)")
        e.bar()
    e.stamp("p2")
    poll(e, "L_poll1", V_TM + 6, S_N1, 4)
    e.stamp()
    e("s_or_b32 %s, %s, %s", s(S_T0), s(S_CS), s(S_W))
    e("s_cmp_lg_u32 %s, 0", s(S_T0))
    e("s_cbranch_scc1 L_noe1")
    e("s_lshr_b32 %s, %s, 17", s(S_T0), s(S_OB))
    e("s_lshl_b32 %s, %s, 7", s(S_T0), s(S_T0))
    e("s_add_u32 %s, %s, 0x%x", s(S_T0), s(S_T0), WS_E1)
    e("v_mov_b32 v8, %s", s(S_T0))
    e("s_mov_b64 exec, 1")
    e("buffer_store_dword %s, v8, %s, 0 offen sc1", v(V_TM + 8), s(S_WS, 4))
    e("s_mov_b64 exec, -1")
    e.label("L_noe1")
    for j in range(1, 4):
        e("s_add_u32 %s, %s, %d", s(S_T0), s(S_CS), j)
        e("s_and_b32 %s, %s, 3", s(S_T0), s(S_T0))
        e("s_lshl_b32 %s, %s, 13", s(S_T0), s(S_T0))
        e("s_add_u32 %s, %s, %s", s(S_OBR + 2 * (j - 1)), s(S_T0), s(S_OB))
        e("s_add_u32 %s, %s, 4096", s(S_OBR + 2 * (j - 1) + 1), s(S_OBR + 2 * (j - 1)))
    def oload(j):
        def g(f):
            def h():
                n = 8 * (j - 1) + f
                e("buffer_load_dwordx4 %s, %s, %s, %s offen offset:%d %s", v(V_RO[n], 4), v(V_LIN), s(S_WS, 4), s(S_OBR + 2 * (j - 1) + (f >> 2)), (f % 4) * 1024, "" if e.o.get("plainOL") else "sc1")
                e.vm.issue("o%d" % n)
            return h
        return [g(f) for f in range(8)]
    pop(oload(1), 8)
    e.stamp("p2")
    if not e.o.get("barpre"): e.bar()
    e.stamp("p2")
    if e.o.get("late67"): pending += oload(2) + grp_wo(e, 6) + oload(3) + grp_wo(e, 7)
    else: pending += (oload(2) + oload(3)) if early else (grp_wo(e, 5) + oload(2) + grp_wo(e, 6) + oload(3) + grp_wo(e, 7))
    for r in p2_reads(8): e(r)
    if tile:
        assert early
        for ks in range(8, 16):
            e.waitv("o%d" % (ks - 8))
            if ks in (8, 12): e.stamp("p2")
            nxt = p2_reads(ks + 1) if ks < 15 else [r for q in range(5) for r in a_read(0, 16 + q, V2_A + 4 * q)]
            kstep(ks, v(V_RO[ks - 8], 4), nxt, False)
        if e.o.get("late67"):
            pop(pending, len(pending))
            e.waitv("wo7"); e.bar()
        assert not pending
        e.stamp("fine")
        remote_tiles(e, kstep)
        return
    for ks in range(8, 32):
        n = ks - 8
        if ks in (19, 23, 27) and not early:
            e.waitv(["wo%d" % (5 + (ks - 19) // 4), "o%d" % n])
            e.bar()
        else:
            e.waitv("o%d" % n)
        kstep(ks, v(V_RO[n], 4), p2_reads(ks + 1) if ks < 31 else [], False)
    assert not pending
    e.stamp()

def tail_addresses(e):
    L = v(V_LANE); A, B, C = 8, 9, 11
    e("v_bfe_u32 %s, %s, 4, 1", v(A), L)
    e("v_mul_u32_u24 %s, %d, %s", v(A), 8 * 10 * 512, v(A))
    e("v_and_b32 %s, 15, %s", v(B), L)
    e("v_lshrrev_b32 %s, 5, %s", v(C), L)
    e("v_lshl_add_u32 %s, %s, 4, %s", v(V_PA), v(C), v(B))
    e("v_lshl_add_u32 %s, %s, 4, %s", v(V_PA), v(V_PA), v(A))
    e("s_lshl_b32 %s, %s, 2", s(S_T0), s(S_RP))
    e("s_add_u32 %s, %s, %s", s(S_T0), s(S_T0), s(S_CS))
    e("s_lshl_b32 %s, %s, 3", s(S_PB), s(S_T0))
    e("s_lshl_b32 %s, %s, 1", s(S_T1), s(S_W))
    e("s_add_u32 %s, %s, %s", s(S_T1), s(S_PB), s(S_T1))
    e("s_lshl_b32 %s, %s, 3", s(S_T1), s(S_T1))
    e("s_add_u32 %s, %s, %s", s(S_T1), s(S_T1), s(S_HG))
    e("s_mul_i32 %s, %s, %d", s(S_T1), s(S_T1), 10 * 512)
    e("s_add_u32 %s, %s, 0x%x", s(S_PS0), s(S_T1), WS_PART)
    e("s_add_u32 %s, %s, 4096", s(S_PS1), s(S_PS0))
    e("s_lshl_b32 %s, %s, 2", s(S_T0), s(S_T0))
    e("s_add_u32 %s, %s, %s", s(S_T3), s(S_T0), s(S_W))
    e("s_lshl_b32 %s, %s, 3", s(S_T3), s(S_T3))
    e("s_add_u32 %s, %s, %s", s(S_T3), s(S_T3), s(S_HG))
    e("s_lshl_b32 %s, %s, 7", s(S_T3), s(S_T3))
    e("s_add_u32 %s, %s, 0x%x", s(S_T3), s(S_T3), WS_F2)
    e("v_mov_b32 %s, %s", v(V_F2O), s(S_T3))
    e("s_lshr_b32 %s, %s, 1", s(S_T3), s(S_HG))
    e("s_add_u32 %s, %s, %s", s(S_T3), s(S_T0), s(S_T3))
    e("s_lshl_b32 %s, %s, 10", s(S_T3), s(S_T3))
    e("s_add_u32 %s, %s, 0x%x", s(S_T3), s(S_T3), WS_F2)
    if e.o.get("tile2"):
        e("s_lshr_b32 %s, %s, 1", s(S_T2), s(S_W))
        e("s_lshl_b32 %s, %s, 17", s(S_T2), s(S_T2))
        e("s_add_u32 %s, %s, %s", s(S_T3), s(S_T3), s(S_T2))
    e("v_and_b32 %s, 7, %s", v(A), L)
    e("v_lshlrev_b32 %s, 7, %s", v(A), v(A))
    e("v_add_u32 %s, %s, %s", v(V_F2P), s(S_T3), v(A))
    e("v_mov_b32 %s, %s", v(V_N2V), s(S_N2))
    e("v_mul_u32_u24 %s, 5120, %s", v(A), v(C))
    e("v_and_b32 %s, 31, %s", v(B), L)
    e("v_lshl_add_u32 %s, %s, 4, %s", v(V_P3L), v(B), v(A))
    e("s_add_u32 %s, %s, %s", s(S_T0), s(S_PB), s(S_HG))
    e("s_mul_i32 %s, %s, %d", s(S_T0), s(S_T0), 8 * 5120)
    e("s_add_u32 %s, %s, 0x%x", s(S_T0), s(S_T0), WS_PART)
    e("s_mul_i32 %s, %s, 3", s(S_T1), s(S_W))
    e("s_cmp_eq_u32 %s, 3", s(S_W))
    e("s_cselect_b32 %s, 8, %s", s(S_T1), s(S_T1))
    e("s_lshl_b32 %s, %s, 9", s(S_T2), s(S_T1))
    e("s_add_u32 %s, %s, %s", s(S_P3B), s(S_T0), s(S_T2))
    e("v_and_b32 %s, 15, %s", v(A), L)
    e("v_mul_u32_u24 %s, 1280, %s", v(A), v(A))
    e("v_bfe_u32 %s, %s, 4, 1", v(B), L)
    e("v_lshl_add_u32 %s, %s, 3, %s", v(A), v(B), v(A))
    e("v_lshl_add_u32 %s, %s, 4, %s", v(V_OUT), v(C), v(A))
    e("s_lshl_b32 %s, %s, 3", s(S_T2), s(S_RP))
    e("s_add_u32 %s, %s, %s", s(S_T2), s(S_T2), s(S_HG))
    e("s_mul_i32 %s, %s, %d", s(S_T2), s(S_T2), 16 * 1280)
    e("s_mul_i32 %s, %s, 320", s(S_T3), s(S_CS))
    e("s_add_u32 %s, %s, %s", s(S_T2), s(S_T2), s(S_T3))
    e("s_lshl_b32 %s, %s, 5", s(S_T1), s(S_T1))
    e("s_add_u32 %s, %s, %s", s(S_OUTB), s(S_T2), s(S_T1))

def pack_store(e, nt, m, tag):
    ch = 2 * nt + m
    pk = 168 + 8 * (nt % 4) + 4 * m
    for d in range(4):
        r0 = V2_ACC + 16 * nt + 8 * m + 2 * d
        e("v_cvt_pk_bf16_f32 %s, %s, %s", v(pk + d), v(r0), v(r0 + 1))
    e("buffer_store_dwordx4 %s, %s, %s, %s offen offset:%d sc1", v(pk, 4), v(V_PA), s(S_WS, 4), s(S_PS0 if ch < 8 else S_PS1), (ch % 8) * 512)
    e.vm.issue(tag)

def a_read(nt, lg_, reg):
    pg = (13 + lg_) % 32
    base, rel = (0, pg) if pg < 13 else ((1, pg - 13) if pg < 25 else (2, pg - 25))
    return ["ds_read_b64_tr_b16 %s, %s offset:%d" % (v(reg + 2 * j, 2), v(V_RWO + base), rel * 5120 + 8 * j * 320 + 64 * nt) for j in range(2)]

def p3_loads(e, nch):
    for c in range(nch):
        for i in range(4):
            e("s_add_u32 %s, %s, %d", s(S_OFF), s(S_P3B), 2 * i * 5120 + c * 512)
            e("buffer_load_dwordx4 %s, %s, %s, %s offen sc1", v(64 + 16 * c + 4 * i, 4), v(V_P3L), s(S_WS, 4), s(S_OFF))

def p3_reduce(e, c):
    r = 64 + 16 * c; acc = 128 + 8 * c
    for d in range(4):
        e("v_dot2_f32_bf16 %s, %s, %s, 0", v(acc + 2 * d), v(r + d), s(S_T0))
        e("v_dot2_f32_bf16 %s, %s, %s, 0", v(acc + 2 * d + 1), v(r + d), s(S_T1))
    for i in range(1, 4):
        for d in range(4):
            e("v_dot2_f32_bf16 %s, %s, %s, %s", v(acc + 2 * d), v(r + 4 * i + d), s(S_T0), v(acc + 2 * d))
            e("v_dot2_f32_bf16 %s, %s, %s, %s", v(acc + 2 * d + 1), v(r + 4 * i + d), s(S_T1), v(acc + 2 * d + 1))
    e("s_nop 3")
    for d in range(4): e("v_permlane32_swap_b32 %s, %s", v(acc + d), v(acc + 4 + d))
    e("s_nop 1")
    for d in range(4): e("v_add_f32 %s, %s, %s", v(acc + d), v(acc + d), v(acc + 4 + d))
    e("v_cvt_pk_bf16_f32 %s, %s, %s", v(acc), v(acc), v(acc + 1))
    e("v_cvt_pk_bf16_f32 %s, %s, %s", v(acc + 1), v(acc + 2), v(acc + 3))
    e("buffer_store_dwordx2 %s, %s, %s, %s offen offset:%d %s", v(acc, 2), v(V_OUT), s(S_OUT, 4), s(S_OUTB), 32 * c, {None: ""}.get(e.o.get("outaux"), str(e.o.get("outaux")).replace("_", " ")))

def flag_store(e, vaddr, off):
    e("s_mov_b64 exec, 1")
    e("buffer_store_dword %s, %s, %s, 0 offen offset:0 sc1" if not off else "buffer_store_dword %s, %s, %s, %s offen sc1",
      *((v(V_N2V), v(vaddr), s(S_WS, 4)) if not off else (v(V_N2V), v(vaddr), s(S_WS, 4), s(off))))
    e("s_mov_b64 exec, -1")

def remote_tiles(e, kstep):
    D = 5
    lg = Cnt()
    seq = [(nt, 16 + j) for nt in range(5) for j in range(16)]
    def reg(q): return V2_A + 4 * (q % 10)
    for q in range(D):
        lg.issue("a%d" % q); lg.issue("a%d" % q)
    for q, (nt, ks) in enumerate(seq):
        j = ks - 16
        if j == 0 and nt == 1: e.stamp("fine")
        if nt == 0: e.waitv("o%d" % (ks - 8))
        if e.o.get("w2"):
            if q % 2 == 0: e("s_waitcnt lgkmcnt(%d)", min(15, lg.after("a%d" % min(q + 1, len(seq) - 1))))
        else: e("s_waitcnt lgkmcnt(%d)", min(15, lg.after("a%d" % q)))
        e("v_mfma_f32_32x32x16_bf16 %s, %s, %s, %s", v(V2_ACC + 16 * nt, 16), v(reg(q), 4), v(V_RO[ks - 8], 4), v(V2_ACC + 16 * nt, 16))
        if q + D < len(seq):
            n2, k2 = seq[q + D]
            for r in a_read(n2, k2, reg(q + D)): e(r); lg.issue("a%d" % (q + D))
        if nt >= 1 and j == 4: pack_store(e, nt - 1, 0, "pst%d" % (nt - 1))
        if nt >= 1 and j == 8: pack_store(e, nt - 1, 1, "pst%d" % (nt - 1))
    e.stamp()

def consts_p3(e):
    e("s_mov_b32 %s, 0x00003f80", s(S_T0))
    e("s_mov_b32 %s, 0x3f800000", s(S_T1))

def epoch2(e):
    e("s_or_b32 %s, %s, %s", s(S_T2), s(S_HG), s(S_W))
    e("s_cmp_lg_u32 %s, 0", s(S_T2))
    e("s_cbranch_scc1 L_noe2")
    e("s_lshl_b32 %s, %s, 4", s(S_T2), s(S_PB))
    e("s_add_u32 %s, %s, 0x%x", s(S_T2), s(S_T2), WS_E2)
    e("v_mov_b32 v8, %s", s(S_T2))
    e("s_mov_b64 exec, 1")
    e("buffer_store_dword %s, v8, %s, 0 offen sc1", v(V_N2V), s(S_WS, 4))
    e("s_mov_b64 exec, -1")
    e.label("L_noe2")

def tail1(e):
    e("s_nop 7\ns_nop 3")
    pack_store(e, 4, 0, "pst4"); pack_store(e, 4, 1, "pst4")
    e.waitv("pst4")
    e.stamp()
    flag_store(e, V_F2O, 0)
    poll(e, "L_poll2", V_F2P, S_N2, 8)
    e.stamp()
    e("s_cmp_ge_u32 %s, 2", s(S_W))
    e("s_cbranch_scc1 L_p3_two")
    p3_loads(e, 3); consts_p3(e)
    e("s_waitcnt vmcnt(0)")
    e.stamp("fine");
    for c in range(3): p3_reduce(e, c)
    e("s_branch L_p3_done")
    e.label("L_p3_two")
    p3_loads(e, 2); consts_p3(e)
    e("s_waitcnt vmcnt(0)")
    if e.o.get("fine") and e.o.get("stamps"): e.nst -= 1
    e.stamp("fine")
    for c in range(2): p3_reduce(e, c)
    e.label("L_p3_done")
    epoch2(e)
    e.stamp()
    if e.o.get("fine"):
        e("s_waitcnt vmcnt(0)")
        e.stamp()

def tail2(e):
    e.waitv("pst2")
    flag_store(e, V_F2O, 0)
    e("s_mov_b32 %s, 0x%x", s(S_T3), 1 << 17)
    e("s_nop 7")
    pack_store(e, 4, 0, "pst4"); pack_store(e, 4, 1, "pst4")
    e.waitv("pst4")
    flag_store(e, V_F2O, S_T3)
    e.stamp()
    poll(e, "L_poll2", V_F2P, S_N2, 8)
    e.stamp()
    e("s_cmp_ge_u32 %s, 2", s(S_W))
    e("s_cbranch_scc1 L_p3_two")
    p3_loads(e, 3); consts_p3(e)
    for c, n in enumerate((8, 5, 2)):
        e("s_waitcnt vmcnt(%d)", n); p3_reduce(e, c)
    e("s_branch L_p3_done")
    e.label("L_p3_two")
    p3_loads(e, 2); consts_p3(e)
    for c, n in enumerate((4, 1)):
        e("s_waitcnt vmcnt(%d)", n); p3_reduce(e, c)
    e.label("L_p3_done")
    epoch2(e)
    e.stamp()

def partials(e):
    T = V_T; L = v(V_LANE)
    e("v_bfe_u32 %s, %s, 4, 1", v(T), L)
    e("v_mul_u32_u24 %s, %d, %s", v(T), 8 * 10 * 512, v(T))
    e("v_and_b32 %s, 15, %s", v(T + 1), L)
    e("v_lshrrev_b32 %s, 5, %s", v(T + 2), L)
    e("v_lshl_add_u32 %s, %s, 4, %s", v(T + 1), v(T + 2), v(T + 1))
    e("v_lshl_add_u32 %s, %s, 4, %s", v(T), v(T + 1), v(T))
    e("s_lshl_b32 %s, %s, 2", s(S_T0), s(S_RP))
    e("s_add_u32 %s, %s, %s", s(S_T0), s(S_T0), s(S_CS))
    e("s_lshl_b32 %s, %s, 3", s(S_PB), s(S_T0))
    e("s_lshl_b32 %s, %s, 1", s(S_T1), s(S_W))
    e("s_add_u32 %s, %s, %s", s(S_T1), s(S_PB), s(S_T1))
    e("s_lshl_b32 %s, %s, 3", s(S_T1), s(S_T1))
    e("s_add_u32 %s, %s, %s", s(S_T1), s(S_T1), s(S_HG))
    e("s_mul_i32 %s, %s, %d", s(S_T1), s(S_T1), 10 * 512)
    e("s_add_u32 %s, %s, 0x%x", s(S_T1), s(S_T1), WS_PART)
    e("s_add_u32 %s, %s, 4096", s(S_T2), s(S_T1))
    e("s_lshl_b32 %s, %s, 2", s(S_T0), s(S_T0))
    e("s_add_u32 %s, %s, %s", s(S_T3), s(S_T0), s(S_W))
    e("s_lshl_b32 %s, %s, 3", s(S_T3), s(S_T3))
    e("s_add_u32 %s, %s, %s", s(S_T3), s(S_T3), s(S_HG))
    e("s_lshl_b32 %s, %s, 7", s(S_T3), s(S_T3))
    e("s_add_u32 %s, %s, 0x%x", s(S_T3), s(S_T3), WS_F2)
    e("v_mov_b32 %s, %s", v(V_TM + 7), s(S_T3))
    e("s_lshr_b32 %s, %s, 1", s(S_T3), s(S_HG))
    e("s_add_u32 %s, %s, %s", s(S_T3), s(S_T0), s(S_T3))
    e("s_lshl_b32 %s, %s, 10", s(S_T3), s(S_T3))
    e("s_add_u32 %s, %s, 0x%x", s(S_T3), s(S_T3), WS_F2)
    e("v_and_b32 %s, 7, %s", v(T + 3), L)
    e("v_lshlrev_b32 %s, 7, %s", v(T + 3), v(T + 3))
    e("v_add_u32 %s, %s, %s", v(V_TM + 6), s(S_T3), v(T + 3))
    e("v_mov_b32 %s, %s", v(V_TM + 8), s(S_N2))
    for nt in range(5):
        for m in range(2):
            ch = 2 * nt + m
            for d in range(4):
                r0 = V2_ACC + 16 * nt + 8 * m + 2 * d
                e("v_cvt_pk_bf16_f32 %s, %s, %s", v(V_PK + 4 * ch + d), v(r0), v(r0 + 1))
            e("buffer_store_dwordx4 %s, %s, %s, %s offen offset:%d sc1", v(V_PK + 4 * ch, 4), v(T), s(S_WS, 4), s(S_T1 if ch < 8 else S_T2), (ch % 8) * 512)
            e.vm.issue("pst")
    e.waitv("pst")
    e.stamp()
    e("s_mov_b64 exec, 1")
    e("buffer_store_dword %s, %s, %s, 0 offen sc1", v(V_TM + 8), v(V_TM + 7), s(S_WS, 4)); e.vm.issue("f2")
    poll(e, "L_poll2", V_TM + 6, S_N2, 8)
    e.stamp()

def phase3(e):
    T = V_T; L = v(V_LANE)
    e("v_lshrrev_b32 %s, 5, %s", v(T), L)
    e("v_mul_u32_u24 %s, 5120, %s", v(T + 1), v(T))
    e("v_and_b32 %s, 31, %s", v(T + 2), L)
    e("v_lshl_add_u32 %s, %s, 4, %s", v(T + 1), v(T + 2), v(T + 1))
    e("s_add_u32 %s, %s, %s", s(S_T0), s(S_PB), s(S_HG))
    e("s_mul_i32 %s, %s, %d", s(S_T0), s(S_T0), 8 * 5120)
    e("s_add_u32 %s, %s, 0x%x", s(S_T0), s(S_T0), WS_PART)
    e("s_mul_i32 %s, %s, 3", s(S_T1), s(S_W))
    e("s_cmp_eq_u32 %s, 3", s(S_W))
    e("s_cselect_b32 %s, 8, %s", s(S_T1), s(S_T1))
    e("s_lshl_b32 %s, %s, 9", s(S_T2), s(S_T1))
    e("s_add_u32 %s, %s, %s", s(S_T0), s(S_T0), s(S_T2))
    R = 64
    for c in range(3):
        if c == 2:
            e("s_cmp_ge_u32 %s, 2", s(S_W))
            e("s_cbranch_scc1 L_p3_two")
        for i in range(4):
            e("s_add_u32 %s, %s, %d", s(S_OFF), s(S_T0), 2 * i * 5120 + c * 512)
            e("buffer_load_dwordx4 %s, %s, %s, %s offen sc1", v(R + 16 * c + 4 * i, 4), v(T + 1), s(S_WS, 4), s(S_OFF))
    e.label("L_p3_two")
    e("v_and_b32 %s, 15, %s", v(T + 3), L)
    e("v_mul_u32_u24 %s, 1280, %s", v(T + 3), v(T + 3))
    e("v_bfe_u32 %s, %s, 4, 1", v(T + 4), L)
    e("v_lshl_add_u32 %s, %s, 3, %s", v(T + 3), v(T + 4), v(T + 3))
    e("v_lshl_add_u32 %s, %s, 4, %s", v(T + 3), v(T), v(T + 3))
    e("s_lshl_b32 %s, %s, 3", s(S_T2), s(S_RP))
    e("s_add_u32 %s, %s, %s", s(S_T2), s(S_T2), s(S_HG))
    e("s_mul_i32 %s, %s, %d", s(S_T2), s(S_T2), 16 * 1280)
    e("s_mul_i32 %s, %s, 320", s(S_T3), s(S_CS))
    e("s_add_u32 %s, %s, %s", s(S_T2), s(S_T2), s(S_T3))
    e("s_lshl_b32 %s, %s, 5", s(S_T1), s(S_T1))
    e("s_add_u32 %s, %s, %s", s(S_T2), s(S_T2), s(S_T1))
    e("s_mov_b32 %s, 0x00003f80", s(S_T0))
    e("s_mov_b32 %s, 0x3f800000", s(S_T1))
    def reduce(c):
        r = R + 16 * c; acc = 128 + 8 * c
        for d in range(4):
            e("v_dot2_f32_bf16 %s, %s, %s, 0", v(acc + 2 * d), v(r + d), s(S_T0))
            e("v_dot2_f32_bf16 %s, %s, %s, 0", v(acc + 2 * d + 1), v(r + d), s(S_T1))
        for i in range(1, 4):
            for d in range(4):
                e("v_dot2_f32_bf16 %s, %s, %s, %s", v(acc + 2 * d), v(r + 4 * i + d), s(S_T0), v(acc + 2 * d))
                e("v_dot2_f32_bf16 %s, %s, %s, %s", v(acc + 2 * d + 1), v(r + 4 * i + d), s(S_T1), v(acc + 2 * d + 1))
        e("s_nop 3")
        for d in range(4): e("v_permlane32_swap_b32 %s, %s", v(acc + d), v(acc + 4 + d))
        e("s_nop 1")
        for d in range(4): e("v_add_f32 %s, %s, %s", v(acc + d), v(acc + d), v(acc + 4 + d))
        e("v_cvt_pk_bf16_f32 %s, %s, %s", v(acc), v(acc), v(acc + 1))
        e("v_cvt_pk_bf16_f32 %s, %s, %s", v(acc + 1), v(acc + 2), v(acc + 3))
        e("buffer_store_dwordx2 %s, %s, %s, %s offen offset:%d", v(acc, 2), v(T + 3), s(S_OUT, 4), s(S_T2), 32 * c)
    e("s_waitcnt vmcnt(0)")
    reduce(0); reduce(1)
    e("s_cmp_ge_u32 %s, 2", s(S_W))
    e("s_cbranch_scc1 L_p3_skip")
    reduce(2)
    e.label("L_p3_skip")
    e("s_or_b32 %s, %s, %s", s(S_T0), s(S_HG), s(S_W))
    e("s_cmp_lg_u32 %s, 0", s(S_T0))
    e("s_cbranch_scc1 L_noe2")
    e("s_lshl_b32 %s, %s, 4", s(S_T0), s(S_PB))
    e("s_add_u32 %s, %s, 0x%x", s(S_T0), s(S_T0), WS_E2)
    e("v_mov_b32 %s, %s", v(T), s(S_T0))
    e("s_mov_b64 exec, 1")
    e("buffer_store_dword %s, %s, %s, 0 offen sc1", v(V_TM + 8), v(T), s(S_WS, 4))
    e("s_mov_b64 exec, -1")
    e.label("L_noe2")
    e.stamp()

def dump_stamps(e):
    if not e.o.get("stamps"): return
    n = e.nst
    e("s_waitcnt lgkmcnt(0) vmcnt(0)")
    e("s_lshl_b32 %s, s2, 2", s(S_T0))
    e("s_add_u32 %s, %s, %s", s(S_T0), s(S_T0), s(S_W))
    e("s_lshl_b32 %s, %s, 7", s(S_T0), s(S_T0))
    e("s_add_u32 %s, %s, 0x%x", s(S_T0), s(S_T0), WS_STAMP)
    e("s_mov_b64 exec, 1")
    for i in range(n):
        e("v_mov_b32 v2, %s", s(S_STAMP + 2 * i))
        e("v_mov_b32 v3, %s", s(S_STAMP + 2 * i + 1))
        e("v_mov_b32 v4, %d", 8 * i)
        e("buffer_store_dwordx2 v[2:3], v4, %s, %s offen", s(S_WS, 4), s(S_T0))
        e("s_nop 1")

def build(opts):
    e = K(opts)
    e.raw("; Fused GQA block (q-projection, attention, output projection), one launch, 256 workgroups.")
    e.raw("; Kernarg (64 bytes, pointers): x, k_cache, v_cache, wq, wo, out, debug, ws")
    e.raw("; @launch grid=(256,1,1) block=(%d,1,1) lds=%d" % (512 if opts.get("ldr") else 256, LDS_BYTES))
    e.raw('.amdgcn_target "amdgcn-amd-amdhsa--gfx950"')
    e.raw(".text")
    e.raw(".globl %s" % NAME)
    e.raw(".p2align 8")
    e.raw(".type %s,@function" % NAME)
    e.label(NAME)
    prologue(e)
    addr_gemm1_dma(e)
    if opts.get("ldr"):
        e("s_cmp_eq_u32 %s, %d", s(S_ROLE), 0 if opts.get("ldr_first") else 1)
        e("s_cbranch_scc1 L_loader")
        e.skip_dma = True
    gemm1(e)
    attention(e)
    phase2(e)
    if opts.get("tile2"): tail2(e)
    elif opts.get("tile"): tail1(e)
    else:
        partials(e)
        phase3(e)
    dump_stamps(e)
    e.label("L_end")
    e("s_endpgm")
    if opts.get("ldr"): loader(e)
    e.raw("; NSTAMPS %d" % e.nst)
    return e.text() + KD.format(name=NAME, vgpr=256, sgpr=100, acc=256), e.nst

if __name__ == "__main__":
    out = sys.argv[1]
    opts = {}
    for k in sys.argv[2:]:
        if "=" in k: kk, vv = k.split("="); opts[kk] = vv
        else: opts[k] = True
    t, n = build(opts)
    open(out, "w").write(t)
    print("wrote", out, "stamps:", n, "lines:", t.count("\n"))
```

```python
import sys, struct
from asm import Emit, v, a, s, KD

NAME = "standalone__gqa_block_cached__near_ridge_kernel"
X_BYTES, W_BYTES, KV_BYTES, OUT_BYTES, WS_BYTES = 1310720, 5242880, 8388608, 1310720, 268435456
WS_O    = 0
WS_PART = 16 << 20
WS_E1   = 32 << 20
WS_E2   = WS_E1 + 64 * 128
WS_F1   = WS_E1 + (1 << 16)
WS_F2   = WS_E1 + (2 << 16) + (1 << 17)
WS_F2B  = WS_F2 + (1 << 17)
WS_STAMP = 64 << 20
SCALE_LOG2E = (128 ** -0.5) * 1.4426950408889634
def f32bits(x): return struct.unpack("<I", struct.pack("<f", x))[0]

SLOT = 32768
L_K, L_V = 0, 32768
LDS_BYTES = 163840

S_X, S_WQ, S_K, S_V, S_WO, S_OUT, S_WS = 8, 12, 16, 20, 24, 28, 32
S_W, S_HG, S_RP, S_CS, S_H = 36, 37, 38, 39, 40
S_T0, S_T1, S_T2, S_T3 = 41, 42, 43, 44
S_WQ0, S_X0, S_KV0, S_LW, S_OFF, S_LW8 = 45, 46, 47, 48, 49, 50
S_WOB = 52
S_N1, S_N2 = 56, 57
S_OB, S_PB, S_SPIN = 58, 59, 60
S_SIG, S_TAU = 51, 61
S_PS0, S_PS1, S_P3B, S_OUTB = 4, 5, 6, 7
S_STAMP = 64

V_LANE = 1
V_T = 2
V_DWQ, V_DX, V_DK, V_DV = 16, 20, 24, 28
V_EP = 29
V_LIN = 30
V_RK, V_RV = 32, 40
V_DWO = 44
V_RWO = 49
V_TM = 52
V_TCH, V_TCW = 62, 63
S_ROLE = 97
S_OS0, S_OS1 = 98, 99
S_WOT = 96
S_OBR = 90
V_ACC, V_A, V_B, V_Q, V_S, V_P = 64, 128, 160, 168, 200, 232
V_RG = 200
V2_ACC, V2_A = 64, 200
V_PK = 200
V_PA, V_P3L, V_OUT, V_F2P, V_F2O, V_N2V = 2, 3, 4, 5, 6, 7
V_RO = [168 + 4 * i for i in range(8)] + [144 + 4 * i for i in range(6)] + [240 + 4 * i for i in range(4)] + [16, 20, 24] + [32, 36, 40]

class Cnt:
    def __init__(self): self.ops = []
    def issue(self, tag): self.ops.append(tag)
    def after(self, tags):
        if isinstance(tags, str): tags = [tags]
        last = max(i for i, t in enumerate(self.ops) if t in tags)
        return len(self.ops) - 1 - last

class K(Emit):
    def __init__(self, opts):
        super().__init__()
        self.o = opts; self.vm = Cnt(); self.lg = Cnt(); self.nst = 0; self.nbar = 0; self.skip_dma = False
    def stamp(self, kind="main"):
        if not self.o.get("stamps"): return
        if self.o.get("g1st") and kind == "main" and self.nst >= 13: return
        if kind == "g1" and not self.o.get("g1st"): return
        if kind == "fine" and not self.o.get("fine"): return
        if kind == "p2" and not self.o.get("p2st"): return
        self.ncall = getattr(self, "ncall", 0) + 1
        if self.o.get("p2st") and 1 < self.ncall <= 5: return
        if self.o.get("g1st") and kind == "late": return
        self("%s %s", "s_memtime" if self.o.get("cyc") else "s_memrealtime", s(S_STAMP + 2 * self.nst, 2)); self.nst += 1
    def waitv(self, tags, extra=""):
        if self.skip_dma:
            tl = [tags] if isinstance(tags, str) else tags
            tl = [t for t in tl if not (t[:2] in ("st", "wo") or t in ("K", "V"))]
            if not tl:
                if extra: self("s_waitcnt" + extra)
                return
            tags = tl
        n = self.vm.after(tags); assert n <= 63
        self("s_waitcnt vmcnt(%d)%s", n, extra)
    def waitl(self, tags):
        self("s_waitcnt lgkmcnt(%d)", min(15, self.lg.after(tags)))
    def ds(self, text, tag):
        self(text); self.lg.issue(tag)
    def dma(self, tag, vaddr, srd, soff_reg, imm):
        if (self.o.get("skipV") and srd == S_V) or (self.o.get("skipWO") and srd == S_WO) or (self.o.get("skipK") and srd == S_K):
            self.vm.issue(tag + "_skipped"); self.vm.ops[-1] = tag; self("buffer_load_dword %s, %s, %s, 0 offen", v(V_T + 12), v(V_LIN), s(S_X, 4)); return
        aux = "nt " if (self.o.get("nt") and srd in (S_K, S_V)) or (self.o.get("ntw") and srd in (S_WQ, S_WO)) else ""
        self("buffer_load_dwordx4 %s, %s, %s offen offset:%d %slds", v(vaddr), s(srd, 4), s(soff_reg), imm, aux)
        self.vm.issue(tag)
    def jitter(self, k):
        if not self.o.get("jit"): return
        seed = int(self.o["jit"])
        self.njit = getattr(self, "njit", 0) + 1
        n = self.njit
        self("s_mul_i32 s63, s2, %d", 2654435761 % (1 << 31) + 2 * seed + 2 * k)
        self("s_lshl_b32 s62, %s, %d", s(S_W), 5 + k % 3)
        self("s_add_u32 s63, s63, s62")
        self("s_lshr_b32 s63, s63, %d", 9 + (k + seed) % 5)
        self("s_and_b32 s63, s63, 63")
        self.label("L_jit%d" % n)
        self("s_cmp_eq_u32 s63, 0")
        self("s_cbranch_scc1 L_jitd%d", n)
        self("s_sleep 4")
        self("s_sub_u32 s63, s63, 1")
        self("s_branch L_jit%d", n)
        self.label("L_jitd%d" % n)
    def bar(self):
        self("s_barrier"); self.nbar += 1

def prologue(e):
    e("s_cmp_ge_u32 s2, 256")
    e("s_cbranch_scc1 L_end")
    if e.o.get("perm"):
        e("s_lshr_b32 s3, s2, 5")
        e("s_and_b32 s2, s2, 31")
        e("s_lshl_b32 s2, s2, 3")
        e("s_or_b32 s2, s2, s3")
    for (srd, off) in ((S_X, 0), (S_WQ, 24), (S_WS, 56), (S_K, 8), (S_V, 16), (S_WO, 32), (S_OUT, 40)):
        e("s_load_dwordx2 %s, s[0:1], %d", s(srd, 2), off)
    e("v_and_b32 %s, 63, v0", v(V_LANE))
    e("v_lshrrev_b32 %s, 6, v0", v(V_T))
    e("s_and_b32 %s, s2, 7", s(S_HG))
    e("s_lshr_b32 %s, s2, 3", s(S_T0))
    e("v_readfirstlane_b32 %s, %s", s(S_W), v(V_T))
    e("s_lshr_b32 %s, %s, 2", s(S_RP), s(S_T0))
    e("s_and_b32 %s, %s, 3", s(S_CS), s(S_T0))
    e("s_lshl_b32 %s, %s, 2", s(S_H), s(S_HG))
    e("s_add_u32 %s, %s, %s", s(S_H), s(S_H), s(S_CS))
    for (srd, size) in ((S_X, X_BYTES), (S_K, KV_BYTES), (S_V, KV_BYTES), (S_WQ, W_BYTES), (S_WO, W_BYTES),
                        (S_OUT, OUT_BYTES), (S_WS, WS_BYTES)):
        e("s_mov_b32 %s, 0x%x", s(srd + 2), size)
        e("s_mov_b32 %s, 0x20000", s(srd + 3))
    if e.o.get("ldr"):
        e("s_lshr_b32 %s, %s, 2", s(S_ROLE), s(S_W))
        e("s_and_b32 %s, %s, 3", s(S_W), s(S_W))

def addr_gemm1_dma(e):
    T = V_T; L = v(V_LANE)
    e("v_lshrrev_b32 %s, 4, %s", v(T), L)
    e("v_and_b32 %s, 15, %s", v(T + 1), L)
    e("v_lshlrev_b32 %s, 2, %s", v(T + 2), v(T))
    e("v_xor_b32 %s, %s, %s", v(T + 2), v(T + 1), v(T + 2))
    e("v_lshlrev_b32 %s, 4, %s", v(T + 2), v(T + 2))
    e("v_lshl_add_u32 %s, %s, 13, %s", v(V_DWQ), v(T), v(T + 2))
    e("v_lshl_add_u32 %s, %s, 8, %s", v(V_DV), v(T), v(T + 2))
    for i in range(1, 4): e("v_add_u32 %s, %d, %s", v(V_DWQ + i), i * 31744, v(V_DWQ))
    e("v_xor_b32 %s, %s, %s", v(T + 2), v(T + 1), v(T))
    e("v_lshlrev_b32 %s, 4, %s", v(T + 2), v(T + 2))
    e("v_lshl_add_u32 %s, %s, 8, %s", v(V_DK), v(T), v(T + 2))
    e("v_lshrrev_b32 %s, 3, %s", v(T + 3), L)
    e("v_and_b32 %s, 7, %s", v(T + 4), L)
    e("v_lshrrev_b32 %s, 1, %s", v(T + 5), v(T + 3))
    e("v_xor_b32 %s, %s, %s", v(T + 5), v(T + 4), v(T + 5))
    e("v_lshlrev_b32 %s, 4, %s", v(T + 5), v(T + 5))
    e("v_mul_u32_u24 %s, 1280, %s", v(T + 3), v(T + 3))
    e("v_add_u32 %s, %s, %s", v(V_DX), v(T + 3), v(T + 5))
    e("v_xor_b32 %s, 64, %s", v(T + 5), v(T + 5))
    e("v_add_u32 %s, %s, %s", v(T + 6), v(T + 3), v(T + 5))
    e("v_add_u32 %s, %d, %s", v(V_DX + 1), 9216, v(T + 6))
    e("v_add_u32 %s, %d, %s", v(V_DX + 2), 2 * 9216, v(V_DX))
    e("v_add_u32 %s, %d, %s", v(V_DX + 3), 3 * 9216, v(T + 6))
    for i in range(1, 4): e("v_xor_b32 %s, %d, %s", v(V_DK + i), 64 * i, v(V_DK))
    e("v_lshlrev_b32 %s, 4, %s", v(V_LIN), L)
    e("s_lshl_b32 %s, %s, 17", s(S_WQ0), s(S_W))
    e("s_lshl_b32 %s, %s, 8", s(S_T0), s(S_H))
    e("s_add_u32 %s, %s, %s", s(S_WQ0), s(S_WQ0), s(S_T0))
    e("s_lshl_b32 %s, %s, 2", s(S_T0), s(S_RP))
    e("s_add_u32 %s, %s, %s", s(S_T0), s(S_T0), s(S_W))
    e("s_mul_i32 %s, %s, %d", s(S_X0), s(S_T0), 32 * 1280)
    e("s_lshl_b32 %s, %s, 12", s(S_LW), s(S_W))
    e("s_lshl_b32 %s, %s, 13", s(S_LW8), s(S_W))
    if e.o.get("rot"):
        a_, b_, sa, sb = [int(x) for x in str(e.o.get("rotab", "1,3,0,0")).split(",")]
        e("s_lshr_b32 %s, %s, %d", s(S_SIG), s(S_CS), sb)
        e("s_mul_i32 %s, %s, %d", s(S_SIG), s(S_SIG), b_)
        e("s_lshr_b32 %s, %s, %d", s(S_T0), s(S_RP), sa)
        e("s_mul_i32 %s, %s, %d", s(S_T0), s(S_T0), a_)
        e("s_add_u32 %s, %s, %s", s(S_SIG), s(S_SIG), s(S_T0))
        for _ in range(3):
            e("s_cmp_ge_u32 %s, 10", s(S_SIG))
            e("s_cselect_b32 %s, 10, 0", s(S_T0))
            e("s_sub_u32 %s, %s, %s", s(S_SIG), s(S_SIG), s(S_T0))
    e("s_lshl_b32 %s, %s, 3", s(S_T0), s(S_RP))
    e("s_add_u32 %s, %s, %s", s(S_T0), s(S_T0), s(S_HG))
    e("s_lshl_b32 %s, %s, 7", s(S_T0), s(S_T0))
    e("s_add_u32 %s, %s, 0x%x", s(S_T0), s(S_T0), WS_E1)
    e("s_lshl_b32 %s, %s, 2", s(S_T1), s(S_RP))
    e("s_add_u32 %s, %s, %s", s(S_T1), s(S_T1), s(S_CS))
    e("s_lshl_b32 %s, %s, 7", s(S_T1), s(S_T1))
    e("s_add_u32 %s, %s, 0x%x", s(S_T1), s(S_T1), WS_E2)
    e("v_mov_b32 %s, %s", v(T), s(S_T0))
    e("v_mov_b32 %s, %s", v(T + 1), s(S_T1))
    e("v_cmp_eq_u32 vcc, 1, %s", L)
    e("s_nop 1")
    e("v_cndmask_b32 %s, %s, %s, vcc", v(V_TM), v(T), v(T + 1))

def addr_rest(e):
    T = V_T; L = v(V_LANE)
    HF, C32, NH, R, C, U, W2 = T, T + 1, T + 2, T + 3, T + 4, T + 5, T + 6
    e("v_lshrrev_b32 %s, 5, %s", v(HF), L)
    e("v_and_b32 %s, 31, %s", v(C32), L)
    e("v_bfe_u32 %s, %s, 4, 1", v(NH), L)
    e("v_bfe_u32 %s, %s, 2, 2", v(R), L)
    e("v_and_b32 %s, 3, %s", v(C), L)
    e("v_lshl_add_u32 %s, %s, 3, %s", v(U), v(HF), v(R))
    e("v_lshlrev_b32 %s, 8, %s", v(U), v(U))
    e("v_lshl_add_u32 %s, %s, 5, %s", v(U), v(NH), v(U))
    e("v_and_b32 %s, 1, %s", v(W2), v(C))
    e("v_lshl_add_u32 %s, %s, 4, %s", v(U), v(W2), v(U))
    e("v_lshrrev_b32 %s, 1, %s", v(W2), v(C))
    e("v_lshl_add_u32 %s, %s, 3, %s", v(U), v(W2), v(U))
    e("v_lshl_add_u32 %s, %s, 6, %s", v(V_RG), v(R), v(U))
    for t in range(1, 4): e("v_xor_b32 %s, %d, %s", v(V_RG + t), 64 * t, v(V_RG))
    e("v_bfe_u32 %s, %s, 1, 3", v(U), v(C32))
    e("v_xor_b32 %s, %s, %s", v(U), v(U), v(HF))
    e("v_lshlrev_b32 %s, 4, %s", v(U), v(U))
    e("v_lshl_add_u32 %s, %s, 7, %s", v(U), v(C32), v(U))
    e("s_add_u32 %s, %s, 16384", s(S_T1), s(S_LW))
    e("v_add_u32 %s, %s, %s", v(V_RG + 4), s(S_T1), v(U))
    for u in range(1, 4): e("v_xor_b32 %s, %d, %s", v(V_RG + 4 + u), 32 * u, v(V_RG + 4))
    for b in range(1, 3):
        for i in range(8): e("v_add_u32 %s, 0x%x, %s", v(V_RG + 8 * b + i), 65536 * b, v(V_RG + i))
    e("s_lshr_b32 %s, %s, 1", s(S_T0), s(S_W))
    e("s_lshl_b32 %s, %s, 14", s(S_T0), s(S_T0))
    e("v_lshl_add_u32 %s, %s, 2, %s", v(U), v(HF), v(R))
    e("v_lshlrev_b32 %s, 8, %s", v(W2), v(U))
    e("v_lshl_add_u32 %s, %s, 5, %s", v(W2), v(NH), v(W2))
    e("v_lshl_add_u32 %s, %s, 3, %s", v(W2), v(C), v(W2))
    e("v_lshl_add_u32 %s, %s, 6, %s", v(W2), v(R), v(W2))
    e("s_add_u32 %s, %s, %d", s(S_T1), s(S_T0), L_V)
    e("v_add_u32 %s, %s, %s", v(V_RV), s(S_T1), v(W2))
    for t in range(1, 4): e("v_xor_b32 %s, %d, %s", v(V_RV + t), 64 * t, v(V_RV))
    e("v_mul_u32_u24 %s, 320, %s", v(U), v(U))
    e("v_lshl_add_u32 %s, %s, 5, %s", v(U), v(NH), v(U))
    e("v_lshl_add_u32 %s, %s, 3, %s", v(V_RWO), v(C), v(U))
    e("v_add_u32 %s, %d, %s", v(V_RWO + 1), 13 * 5120, v(V_RWO))
    e("v_add_u32 %s, %d, %s", v(V_RWO + 2), 25 * 5120, v(V_RWO))
    e("v_and_b32 %s, 15, %s", v(U), v(C32))
    e("v_xor_b32 %s, %s, %s", v(U), v(U), v(HF))
    e("v_lshlrev_b32 %s, 4, %s", v(U), v(U))
    e("v_lshl_add_u32 %s, %s, 8, %s", v(U), v(C32), v(U))
    e("v_add_u32 %s, %s, %s", v(V_RK), s(S_T0), v(U))
    for st in range(1, 8): e("v_xor_b32 %s, %d, %s", v(V_RK + st), 32 * st, v(V_RK))
    for i in range(5):
        e("v_add_u32 %s, %d, %s", v(T), 64 * i, L)
        e("v_mul_u32_u24 %s, %d, %s", v(T + 1), 3277, v(T))
        e("v_lshrrev_b32 %s, 16, %s", v(T + 1), v(T + 1))
        e("v_mul_u32_u24 %s, 20, %s", v(T + 2), v(T + 1))
        e("v_sub_u32 %s, %s, %s", v(T + 2), v(T), v(T + 2))
        e("v_mul_u32_u24 %s, 1280, %s", v(T + 1), v(T + 1))
        e("v_lshl_add_u32 %s, %s, 4, %s", v(V_DWO + i), v(T + 2), v(T + 1))
        if i & 3: e("v_subrev_u32 %s, %d, %s", v(V_DWO + i), (i & 3) * 1024, v(V_DWO + i))
    e("s_lshr_b32 %s, %s, 1", s(S_T0), s(S_W))
    e("s_lshl_b32 %s, %s, 1", s(S_T1), s(S_RP))
    e("s_add_u32 %s, %s, %s", s(S_T0), s(S_T0), s(S_T1))
    e("s_lshl_b32 %s, %s, 5", s(S_T0), s(S_T0))
    e("s_add_u32 %s, %s, %s", s(S_T0), s(S_T0), s(S_H))
    e("s_lshl_b32 %s, %s, 14", s(S_KV0), s(S_T0))
    e("s_and_b32 %s, %s, 1", s(S_T0), s(S_W))
    e("s_lshl_b32 %s, %s, 13", s(S_T0), s(S_T0))
    e("s_add_u32 %s, %s, %s", s(S_KV0), s(S_KV0), s(S_T0))
    e("s_mul_i32 %s, %s, 320", s(S_T2), s(S_CS))
    e("s_mul_i32 %s, %s, %d", s(S_T3), s(S_W), 16 * 1280)
    e("s_add_u32 %s, %s, %s", s(S_T2), s(S_T2), s(S_T3))
    e("s_mul_i32 %s, %s, %d", s(S_T3), s(S_HG), 512 * 1280)
    e("s_add_u32 %s, %s, %s", s(S_T2), s(S_T2), s(S_T3))
    for j in range(4):
        e("s_add_u32 %s, %s, %d", s(S_T0), s(S_CS), j)
        e("s_and_b32 %s, %s, 3", s(S_T0), s(S_T0))
        e("s_mul_i32 %s, %s, %d", s(S_T0), s(S_T0), 128 * 1280)
        e("s_add_u32 %s, %s, %s", s(S_WOB + j), s(S_T0), s(S_T2))
    e("v_lshlrev_b32 %s, 7, %s", v(V_TCH), L)
    e("v_min_u32 %s, 39, %s", v(V_TCW), L)
    e("v_lshlrev_b32 %s, 7, %s", v(V_TCW), v(V_TCW))
    e("s_lshr_b32 %s, s2, 3", s(S_T0))
    e("s_lshl_b32 %s, %s, 2", s(S_T0), s(S_T0))
    e("s_add_u32 %s, %s, %s", s(S_T0), s(S_T0), s(S_W))
    e("s_lshl_b32 %s, %s, 2", s(S_T0), s(S_T0))
    e("s_lshl_b32 %s, %s, 9", s(S_T1), s(S_HG))
    e("s_add_u32 %s, %s, %s", s(S_T0), s(S_T0), s(S_T1))
    e("s_mul_i32 %s, %s, 1280", s(S_WOT), s(S_T0))
    e("s_lshl_b32 %s, %s, 3", s(S_T0), s(S_RP))
    e("s_add_u32 %s, %s, %s", s(S_T0), s(S_T0), s(S_HG))
    e("s_lshl_b32 %s, %s, 2", s(S_T0), s(S_T0))
    e("s_add_u32 %s, %s, %s", s(S_T0), s(S_T0), s(S_W))
    e("s_lshl_b32 %s, %s, 15", s(S_OB), s(S_T0))

def grp_stage(e, st):
    if e.skip_dma: return []
    slot = st % 5
    rot = e.o.get("rot")
    def wq(i):
        def f():
            if i == 0:
                e("s_add_u32 m0, %s, %d", s(S_LW), slot * SLOT)
                if rot:
                    e("s_lshl_b32 %s, %s, 19", s(S_OFF), s(S_SIG))
                    e("s_add_u32 %s, %s, %s", s(S_OFF), s(S_OFF), s(S_WQ0))
                else:
                    e("s_add_u32 %s, %s, %d", s(S_OFF), s(S_WQ0), st * 64 * 8192)
            e.dma("st%d" % st, V_DWQ + i, S_WQ, S_OFF, i * 1024)
        return f
    def xx(i):
        def f():
            if i == 0:
                e("s_add_u32 m0, %s, %d", s(S_LW), slot * SLOT + 16384)
                if rot:
                    e("s_lshl_b32 %s, %s, 7", s(S_OFF), s(S_SIG))
                    e("s_add_u32 %s, %s, %s", s(S_OFF), s(S_OFF), s(S_X0))
                else:
                    e("s_add_u32 %s, %s, %d", s(S_OFF), s(S_X0), st * 128)
            e.dma("st%d" % st, V_DX + i, S_X, S_OFF, i * 1024)
            if i == 3 and rot:
                e("s_add_u32 %s, %s, 1", s(S_SIG), s(S_SIG))
                e("s_cmp_eq_u32 %s, 10", s(S_SIG))
                e("s_cselect_b32 %s, 0, %s", s(S_SIG), s(S_SIG))
        return f
    return [wq(i) for i in range(4)] + [xx(i) for i in range(4)]

def grp_kv(e, which):
    if e.skip_dma: return []
    srd, base, tag = (S_K, L_K, "K") if which == "K" else (S_V, L_V, "V")
    def f(i):
        def g():
            if i % 4 == 0:
                e("s_add_u32 m0, %s, %d", s(S_LW8), base + (i // 4) * 4096)
                e("s_add_u32 %s, %s, %d", s(S_OFF), s(S_KV0), (i // 4) * 4096)
            e.dma(tag, (V_DK + (i & 3)) if which == "K" else V_DV, srd, S_OFF, (i & 3) * 1024)
        return g
    return [f(i) for i in range(8)]

def grp_wo(e, st):
    if e.skip_dma: return []
    def f(i):
        def g():
            if i == 0:
                e("s_add_u32 %s, %s, %d", s(S_T0), s(S_W), 13 + 4 * st)
                e("s_and_b32 %s, %s, 31", s(S_T0), s(S_T0))
                e("s_mul_i32 %s, %s, 5120", s(S_T0), s(S_T0))
                e("s_mov_b32 m0, %s", s(S_T0))
                e("s_add_u32 %s, %s, %d", s(S_OFF), s(S_WOB + (st >> 1)), (st & 1) * 4 * 16 * 1280)
            if i == 4:
                e("s_add_u32 m0, %s, 4096", s(S_T0))
                e("s_nop 0")
            e.dma("wo%d" % st, V_DWO + i, S_WO, S_OFF, (i & 3) * 1024)
        return g
    return [f(i) for i in range(5)]

def g1_reads(ks):
    st, s4, b = ks >> 2, ks & 3, ks & 1
    slot = st % 5
    base, rel = V_RG + 8 * (slot // 2), (slot % 2) * SLOT
    r = ["ds_read_b128 %s, %s offset:%d" % (v(V_B + 4 * b, 4), v(base + 4 + s4), rel)]
    for t in range(4):
        for j in range(2):
            r.append("ds_read_b64_tr_b16 %s, %s offset:%d" % (v(V_A + 16 * b + 4 * t + 2 * j, 2), v(base + t), rel + s4 * 4096 + j * 1024))
    return r

def grp_touch(e, which):
    if e.skip_dma: return []
    nt = "nt" if e.o.get("ntt") else ""
    def f():
        if which in "KV": e("buffer_load_dword %s, %s, %s, %s offen %s", v(V_T + 12), v(V_TCH), s(S_V if which == "V" else S_K, 4), s(S_KV0), nt)
        else: e("buffer_load_dword %s, %s, %s, %s offen %s", v(V_T + 12), v(V_TCW), s(S_WO, 4), s(S_WOT), nt)
        e.vm.issue(which + "t")
    return [f]

def pop(q, n):
    for _ in range(n):
        if q: q.pop(0)()

def gemm1(e):
    o = e.o
    e("s_waitcnt lgkmcnt(0)")
    e.jitter(0)
    e.stamp()
    def ep(): e("buffer_load_dword %s, %s, %s, 0 offen sc1", v(V_EP), v(V_TM), s(S_WS, 4)); e.vm.issue("ep")
    if not o.get("eplate"): ep()
    for st in range(2):
        for f in grp_stage(e, st): f()
    def xw_touch():
        L = v(V_LANE); A, B_ = 12, 13
        full = o.get("xw") == "all"
        e("s_lshr_b32 %s, s2, 3", s(S_T0))
        e("s_lshl_b32 %s, %s, 2", s(S_T1), s(S_T0))
        e("s_add_u32 %s, %s, %s", s(S_T1), s(S_T1), s(S_W))
        e("s_mul_i32 %s, %s, %d", s(S_T1), s(S_T1), 8 * 1280)
        e("v_lshrrev_b32 %s, 3, %s", v(A), L)
        e("v_mul_u32_u24 %s, 1280, %s", v(A), v(A))
        e("v_and_b32 %s, 7, %s", v(B_), L)
        e("v_lshl_add_u32 %s, %s, 7, %s", v(A), v(B_), v(A))
        if not full: e("s_add_u32 %s, %s, 256", s(S_T1), s(S_T1))
        e("buffer_load_dword v15, %s, %s, %s offen", v(A), s(S_X, 4), s(S_T1)); e.vm.issue("xt")
        if full:
            e("v_lshrrev_b32 %s, 1, %s", v(A), L)
            e("v_mul_u32_u24 %s, 1280, %s", v(A), v(A))
            e("v_and_b32 %s, 1, %s", v(B_), L)
            e("v_lshl_add_u32 %s, %s, 7, %s", v(A), v(B_), v(A))
            e("s_add_u32 %s, %s, 1024", s(S_T1), s(S_T1))
            e("s_mov_b64 exec, 0xffff")
            e("buffer_load_dword v15, %s, %s, %s offen", v(A), s(S_X, 4), s(S_T1)); e.vm.issue("xt")
            e("s_mov_b64 exec, -1")
        nrow, first = (5, 0) if full else (4, 128)
        e("s_mul_i32 %s, %s, %d", s(S_T1), s(S_T0), 4 * nrow)
        e("s_mul_i32 %s, %s, %d", s(S_T2), s(S_W), nrow)
        e("s_add_u32 %s, %s, %s", s(S_T1), s(S_T1), s(S_T2))
        e("s_add_u32 %s, %s, %d", s(S_T1), s(S_T1), first)
        e("s_lshl_b32 %s, %s, 13", s(S_T1), s(S_T1))
        e("s_lshl_b32 %s, %s, 10", s(S_T2), s(S_HG))
        e("s_add_u32 %s, %s, %s", s(S_T1), s(S_T1), s(S_T2))
        e("v_lshrrev_b32 %s, 3, %s", v(A), L)
        e("v_lshlrev_b32 %s, 13, %s", v(A), v(A))
        e("v_and_b32 %s, 7, %s", v(B_), L)
        e("v_lshl_add_u32 %s, %s, 7, %s", v(A), v(B_), v(A))
        m = (1 << (8 * nrow)) - 1
        e("s_mov_b32 exec_lo, 0x%x\ns_mov_b32 exec_hi, 0x%x", m & 0xffffffff, m >> 32)
        e("buffer_load_dword v15, %s, %s, %s offen", v(A), s(S_WQ, 4), s(S_T1)); e.vm.issue("xt")
        e("s_mov_b64 exec, -1")
    if o.get("cpf"):
        e("s_getpc_b64 s[62:63]")
        e.label("L_pc")
        e("s_sub_u32 s62, s62, L_pc-%s", NAME)
        e("s_subb_u32 s63, s63, 0")
        e("s_lshl_b32 %s, %s, 6", s(S_T0), s(S_W))
        e("v_add_u32 v12, %s, %s", s(S_T0), v(V_LANE))
        e("v_lshlrev_b32 v12, 7, v12")
        e("v_min_u32 v12, L_end-%s, v12", NAME)
        e("global_load_dword v15, v12, s[62:63]"); e.vm.issue("cpf")
    if o.get("xw") and not o.get("xw_b"): xw_touch()
    if o.get("eplate"): ep()
    addr_rest(e)
    if o.get("wot_pro"):
        for f in grp_touch(e, "wo"): f()
    if o.get("kt_pro"):
        for f in grp_touch(e, "K"): f()
    if o.get("tlb"):
        e("s_lshl_b32 %s, %s, 2", s(S_T0), s(S_RP))
        e("s_add_u32 %s, %s, %s", s(S_T0), s(S_T0), s(S_CS))
        e("s_mul_i32 %s, %s, %d", s(S_T0), s(S_T0), 64 * 5120)
        e("s_add_u32 %s, %s, 0x%x", s(S_T0), s(S_T0), WS_PART)
        e("s_mul_i32 %s, %s, %d", s(S_T1), s(S_RP), 128 * 1280)
        e("s_mov_b64 exec, 1")
        e("v_mov_b32 v14, 0")
        for (srd, so) in ((S_WS, S_OB), (S_WS, S_T0), (S_OUT, S_T1), (S_K, S_KV0), (S_V, S_KV0), (S_WO, S_WOB)):
            e("buffer_load_dword v15, v14, %s, %s offen", s(srd, 4), s(so)); e.vm.issue("tlb")
        e("s_mov_b64 exec, -1")
    LK = 4 if o.get("look4") else (3 if o.get("look3") else 2)
    for st in range(2, LK):
        for f in grp_stage(e, st): f()
    e.waitv("st0")
    e.bar()
    e.stamp()
    for r in g1_reads(0): e(r)
    if LK > 2:
        assert LK < 4 or not o.get("softb")
        plan = {b: grp_stage(e, b + LK + 1) for b in range(-1, 9 - LK)}
        plan[9 - LK] = grp_kv(e, "K"); plan[10 - LK] = grp_kv(e, "V")
        for b in range(11 - LK, 9): plan.setdefault(b, [])
    else:
        plan = {b: grp_stage(e, b + 3) for b in range(-1, 7)}
        plan[7] = grp_kv(e, "K") + (grp_touch(e, "V") if o.get("vt") else [])
    def ftouch():
        L = v(V_LANE); A, B_ = 12, 13
        e("s_lshr_b32 %s, %s, 1", s(S_T0), s(S_RP))
        e("s_add_u32 %s, %s, %s", s(S_T0), s(S_T0), s(S_CS))
        e("s_add_u32 %s, %s, 6", s(S_T0), s(S_T0))
        e("s_cmp_ge_u32 %s, 10", s(S_T0))
        e("s_cselect_b32 %s, 10, 0", s(S_T1))
        e("s_sub_u32 %s, %s, %s", s(S_T0), s(S_T0), s(S_T1))
        e("s_lshl_b32 %s, %s, 7", s(S_T0), s(S_T0))
        e("s_add_u32 %s, %s, %s", s(S_T0), s(S_T0), s(S_X0))
        e("v_and_b32 %s, 31, %s", v(A), L)
        e("v_mul_u32_u24 %s, 1280, %s", v(A), v(A))
        e("s_mov_b32 exec_hi, 0")
        e("buffer_load_dword v15, %s, %s, %s offen", v(A), s(S_X, 4), s(S_T0)); e.vm.issue("ft")
        e("s_lshr_b32 %s, %s, 1", s(S_T0), s(S_CS))
        e("s_mul_i32 %s, %s, 3", s(S_T0), s(S_T0))
        e("s_min_u32 %s, %s, 5", s(S_T1), s(S_RP))
        e("s_add_u32 %s, %s, %s", s(S_T0), s(S_T0), s(S_T1))
        e("s_add_u32 %s, %s, 4", s(S_T0), s(S_T0))
        e("s_cmp_ge_u32 %s, 10", s(S_T0))
        e("s_cselect_b32 %s, 10, 0", s(S_T1))
        e("s_sub_u32 %s, %s, %s", s(S_T0), s(S_T0), s(S_T1))
        e("s_lshl_b32 %s, %s, 19", s(S_T0), s(S_T0))
        e("s_add_u32 %s, %s, %s", s(S_T0), s(S_T0), s(S_WQ0))
        e("v_lshrrev_b32 %s, 1, %s", v(A), L)
        e("v_lshlrev_b32 %s, 13, %s", v(A), v(A))
        e("v_and_b32 %s, 1, %s", v(B_), L)
        e("v_lshl_add_u32 %s, %s, 7, %s", v(A), v(B_), v(A))
        e("buffer_load_dword v15, %s, %s, %s offen", v(A), s(S_WQ, 4), s(S_T0)); e.vm.issue("ft")
        e("s_mov_b64 exec, -1")
    if "ft_b" in o:
        b_ = int(o["ft_b"]); plan[b_] = [ftouch] + plan[b_]
    if o.get("xw") and o.get("xw_b"):
        b_ = int(o["xw_b"]); plan[b_] = [xw_touch] + plan[b_]
    if "kt_b" in o:
        b_ = int(o["kt_b"]); plan[b_] = grp_touch(e, "K") + plan[b_]
    if "vt_b" in o:
        b_ = int(o["vt_b"]); plan[b_] = grp_touch(e, "V") + plan[b_]
    if "wot_b" in o:
        b_ = int(o["wot_b"]); plan[b_] = plan[b_] + grp_touch(e, "wo")
    plan[8] = ([] if LK > 2 else grp_kv(e, "V")) + (grp_touch(e, "wo") if o.get("wot") else [])
    plan[9] = grp_wo(e, 0) + grp_wo(e, 1) + (grp_touch(e, "wo") if o.get("wot2") else [])
    if o.get("schedB"): plan[9] = []
    pending = list(plan[-1])
    NK = 40
    for ks in range(NK):
        st, s4, b = ks >> 2, ks & 3, ks & 1
        last = ks == NK - 1
        boundary = (s4 == 3)
        nxt = g1_reads(ks + 1) if not last else []
        if boundary:
            if e.skip_dma and st == 2: e.waitv("ep")
            soft = o.get("softb") and not last
            e.waitv("st%d" % (st + 1) if not last else "K", "" if soft else " lgkmcnt(0)")
            e.bar()
            e.stamp("g1")
            pending += plan[st]
        if last:
            nxt = [kread_text(kt, st_, 2 * st_ + kt) for st_ in range(2) for kt in range(2)]
        left = 3 - ((ks + 1) & 3) + 1 if ks >= 3 else 3 - ks
        want = 0 if last else -(-len(pending) // max(1, left))
        slots = {1: (1,), 2: (1, 3), 3: (1, 2, 3)}.get(min(want, 3), ())
        for t in range(4):
            if not boundary or (o.get("softb") and not last):
                if o.get("w2"):
                    if t in (0, 2): e("s_waitcnt lgkmcnt(%d)", {0: 4, 2: 6}[t])
                else: e("s_waitcnt lgkmcnt(%d)", [6, 7, 8, 9][t])
            c = "0" if ks == 0 else v(V_ACC + 16 * t, 16)
            e("v_mfma_f32_32x32x16_bf16 %s, %s, %s, %s", v(V_ACC + 16 * t, 16), v(V_A + 16 * b + 4 * t, 4), v(V_B + 4 * b, 4), c)
            if t < 3:
                for r in nxt[3 * t:3 * t + 3]: e(r)
            if t in slots: pop(pending, 1)
    e.pending = pending
    e.stamp()

def loader(e):
    o = e.o
    nbar_main = e.nbar
    e.skip_dma = False; e.vm = Cnt(); e.nbar = 0
    e.label("L_loader")
    if o.get("ldr_prio"): e("s_setprio %d" % int(o["ldr_prio"]))
    e("s_waitcnt lgkmcnt(0)")
    def run(fs):
        for f in fs: f()
    run(grp_stage(e, 0)); run(grp_stage(e, 1))
    addr_rest(e)
    e.waitv("st0"); e.bar()
    for b in range(-1, 7):
        run(grp_stage(e, b + 3))
        e.waitv("st%d" % (b + 2)); e.bar()
    run(grp_kv(e, "K")); e.waitv("st9"); e.bar()
    run(grp_kv(e, "V"))
    if o.get("wot"): run(grp_touch(e, "wo"))
    e.waitv("K"); e.bar()
    w0 = grp_wo(e, 0)
    n0 = int(o.get("pre_v", 2))
    run(w0[:n0])
    e.waitv("V"); e.bar()
    run(w0[n0:])
    npv = int(o.get("pre_pv", 3))
    for st_ in range(1, npv): run(grp_wo(e, st_))
    e.waitv("wo1"); e.bar()
    for st_ in range(npv, 8): run(grp_wo(e, st_))
    e("s_waitcnt vmcnt(0)"); e.bar()
    assert e.nbar == nbar_main, (e.nbar, nbar_main)
    e("s_endpgm")

def kread_text(kt, st_, buf):
    return "ds_read_b128 %s, %s offset:%d" % (v(V_A + 4 * buf, 4), v(V_RK + st_), L_K + kt * 8192)

def attention(e):
    lg = e.lg; pending = e.pending
    e.jitter(1)
    for st_ in range(2):
        for kt in range(2): lg.issue("k%d_%d" % (st_, kt))
    def kread(kt, st_, buf): e.ds(kread_text(kt, st_, buf), "k%d_%d" % (st_, kt))
    def qcvt(t):
        for u in range(2):
            for d in range(4):
                r0 = V_ACC + 16 * t + 8 * u + 2 * d
                e("v_cvt_pk_bf16_f32 %s, %s, %s", v(V_Q + 8 * t + 4 * u + d), v(r0), v(r0 + 1))
    for st_ in range(2, 4):
        for kt in range(2): kread(kt, st_, 2 * st_ + kt)
    e("s_nop 4")
    qcvt(0); qcvt(1); qcvt(2)
    e("s_nop 1")
    for st_ in range(8):
        if st_ == 2: qcvt(3); e("s_nop 0")
        for kt in range(2):
            buf = (2 * st_ + kt) % 8
            e.waitl("k%d_%d" % (st_, kt))
            c = "0" if st_ == 0 else v(V_S + 16 * kt, 16)
            e("v_mfma_f32_32x32x16_bf16 %s, %s, %s, %s", v(V_S + 16 * kt, 16), v(V_A + 4 * buf, 4), v(V_Q + 4 * st_, 4), c)
            if st_ < 4: kread(kt, st_ + 4, buf)
            if pending: pending.pop(0)()
    schedB = e.o.get("schedB")
    def vreads(t, st_, buf):
        for j in range(2):
            e.ds("ds_read_b64_tr_b16 %s, %s offset:%d" % (v(V_A + 4 * buf + 2 * j, 2), v(V_RV + t), st_ * 4096 + j * 2048), "v%d_%d" % (st_, t))
    def vbarrier():
        e.waitv("V")
        e.bar()
        if e.o.get("pvt"):
            for t in range(2):
                for st_ in range(4): vreads(t, st_, 4 * t + st_)
        else:
            for st_ in range(2):
                for t in range(4): vreads(t, st_, 4 * st_ + t)
    if not schedB: vbarrier()
    else: e("s_nop 7\ns_nop 3")
    e.stamp()
    assert not pending
    S = V_S; M, M2, SUM, SUM2 = V_TM, V_TM + 1, V_TM + 2, V_TM + 4
    e("v_max3_f32 %s, %s, %s, %s", v(M), v(S), v(S + 1), v(S + 2))
    e("v_max3_f32 %s, %s, %s, %s", v(M2), v(S + 3), v(S + 4), v(S + 5))
    for i in range(6, 16, 4):
        e("v_max3_f32 %s, %s, %s, %s", v(M), v(M), v(S + i), v(S + i + 1))
        if i + 2 < 16: e("v_max3_f32 %s, %s, %s, %s", v(M2), v(M2), v(S + i + 2), v(S + i + 3))
    for i in range(16, 32, 4):
        e("v_max3_f32 %s, %s, %s, %s", v(M), v(M), v(S + i), v(S + i + 1))
        e("v_max3_f32 %s, %s, %s, %s", v(M2), v(M2), v(S + i + 2), v(S + i + 3))
    e("v_max_f32 %s, %s, %s", v(M), v(M), v(M2))
    e("v_mov_b32 %s, %s", v(M2), v(M))
    e("s_mov_b32 %s, 0x%08x", s(S_T1), f32bits(SCALE_LOG2E))
    e("s_nop 0")
    e("v_permlane32_swap_b32 %s, %s", v(M), v(M2))
    e("s_nop 0")
    e("v_max_f32 %s, %s, %s", v(M), v(M), v(M2))
    e("v_mul_f32 %s, %s, %s", v(M), s(S_T1), v(M))
    pk = e.o.get("pk")
    if pk:
        e("s_mov_b32 s62, %s", s(S_T1)); e("s_mov_b32 s63, %s", s(S_T1))
        for i in range(0, 32, 2):
            e("v_pk_fma_f32 %s, %s, s[62:63], %s op_sel_hi:[1,1,0] neg_lo:[0,0,1] neg_hi:[0,0,1]", v(S + i, 2), v(S + i, 2), v(M, 2))
    else:
        for i in range(32):
            e("v_fma_f32 %s, %s, %s, -%s", v(S + i), v(S + i), s(S_T1), v(M))
    sm = (grp_wo(e, 2) + grp_wo(e, 3)) if e.o.get("schedA") and not schedB else []
    for i in range(32):
        e("v_exp_f32 %s, %s", v(S + i), v(S + i))
        if i % 3 == 2: pop(sm, 1)
    assert not sm
    if schedB and not e.o.get("vlate"):
        vbarrier()
        sm = grp_wo(e, 0) + grp_wo(e, 1)
    e("s_nop 0")
    if pk:
        e("v_pk_add_f32 %s, %s, %s", v(SUM, 2), v(S, 2), v(S + 2, 2))
        e("v_pk_add_f32 %s, %s, %s", v(SUM2, 2), v(S + 4, 2), v(S + 6, 2))
        for i in range(8, 32, 4):
            e("v_pk_add_f32 %s, %s, %s", v(SUM, 2), v(SUM, 2), v(S + i, 2))
            e("v_pk_add_f32 %s, %s, %s", v(SUM2, 2), v(SUM2, 2), v(S + i + 2, 2))
        e("v_pk_add_f32 %s, %s, %s", v(SUM, 2), v(SUM, 2), v(SUM2, 2))
        e("v_add_f32 %s, %s, %s", v(SUM), v(SUM), v(SUM + 1))
    else:
        e("v_add_f32 %s, %s, %s", v(SUM), v(S), v(S + 1))
        e("v_add_f32 %s, %s, %s", v(SUM + 1), v(S + 2), v(S + 3))
        e("v_add_f32 %s, %s, %s", v(SUM2), v(S + 4), v(S + 5))
        e("v_add_f32 %s, %s, %s", v(SUM2 + 1), v(S + 6), v(S + 7))
        for i in range(8, 32, 4):
            e("v_add_f32 %s, %s, %s", v(SUM), v(SUM), v(S + i))
            e("v_add_f32 %s, %s, %s", v(SUM + 1), v(SUM + 1), v(S + i + 1))
            e("v_add_f32 %s, %s, %s", v(SUM2), v(SUM2), v(S + i + 2))
            e("v_add_f32 %s, %s, %s", v(SUM2 + 1), v(SUM2 + 1), v(S + i + 3))
        e("v_add_f32 %s, %s, %s", v(SUM), v(SUM), v(SUM + 1))
        e("v_add_f32 %s, %s, %s", v(SUM2), v(SUM2), v(SUM2 + 1))
        e("v_add_f32 %s, %s, %s", v(SUM), v(SUM), v(SUM2))
    e("v_mov_b32 %s, %s", v(SUM2), v(SUM))
    e("s_nop 1")
    e("v_permlane32_swap_b32 %s, %s", v(SUM), v(SUM2))
    e("s_nop 0")
    e("v_add_f32 %s, %s, %s", v(SUM), v(SUM), v(SUM2))
    e("v_rcp_f32 %s, %s", v(SUM), v(SUM))
    e("s_nop 0")
    if pk:
        for i in range(0, 32, 2):
            e("v_pk_mul_f32 %s, %s, %s op_sel_hi:[1,0]", v(S + i, 2), v(S + i, 2), v(SUM, 2))
            if i % 4 == 2: pop(sm, 1)
    else:
        for i in range(32):
            e("v_mul_f32 %s, %s, %s", v(S + i), v(S + i), v(SUM))
            if i % 4 == 3: pop(sm, 1)
    for f in range(4):
        for d in range(4):
            r0 = S + 8 * f + 2 * d
            e("v_cvt_pk_bf16_f32 %s, %s, %s", v(V_P + 4 * f + d), v(r0), v(r0 + 1))
    if schedB and e.o.get("vlate"):
        vbarrier()
        sm = grp_wo(e, 0) + grp_wo(e, 1)
    e.stamp()
    e.jitter(2)
    pv = (grp_wo(e, 4) + grp_wo(e, 5)) if e.o.get("schedA") and not e.o.get("schedC") else []
    if schedB: pv = sm + ([] if e.o.get("schedD") else grp_wo(e, 2) + grp_wo(e, 3))
    e("v_readlane_b32 %s, %s, 0", s(S_N1), v(V_EP))
    e("v_readlane_b32 %s, %s, 1", s(S_N2), v(V_EP))
    e("s_lshl_b32 %s, %s, 13", s(S_OS0), s(S_CS))
    e("s_add_u32 %s, %s, %s", s(S_OS0), s(S_OS0), s(S_OB))
    e("s_add_u32 %s, %s, 1", s(S_N1), s(S_N1))
    e("s_add_u32 %s, %s, 1", s(S_N2), s(S_N2))
    e("s_add_u32 %s, %s, 4096", s(S_OS1), s(S_OS0))
    def ostore(t):
        for u in range(2):
            for d in range(4):
                r0 = V_ACC + 16 * t + 8 * u + 2 * d
                e("v_cvt_pk_bf16_f32 %s, %s, %s", v(V_Q + 8 * t + 4 * u + d), v(r0), v(r0 + 1))
            f = 2 * t + u
            e("buffer_store_dwordx4 %s, %s, %s, %s offen offset:%d %s", v(V_Q + 4 * f, 4), v(V_LIN), s(S_WS, 4), s(S_OS0 if f < 4 else S_OS1), (f % 4) * 1024, (str(e.o.get("fastO")).replace("True", "").replace("_", " ")) if e.o.get("fastO") else "sc1")
            e.vm.issue("ost")
    if e.o.get("pvt"):
        for t in range(4):
            for st_ in range(4):
                n = 4 * t + st_
                e.waitl("v%d_%d" % (st_, t))
                c = "0" if st_ == 0 else v(V_ACC + 16 * t, 16)
                e("v_mfma_f32_32x32x16_bf16 %s, %s, %s, %s", v(V_ACC + 16 * t, 16), v(V_A + 4 * (n % 8), 4), v(V_P + 4 * st_, 4), c)
                if t < 2: vreads(t + 2, st_, n % 8)
                pop(pv, 1)
            if t >= 1:
                if t == 3: e("s_nop 3")
                if t == 2: e("s_nop 3")
                ostore(t - 1)
        e("s_nop 3")
        ostore(3)
    else:
        for st_ in range(4):
            for t in range(4):
                buf = (4 * st_ + t) % 8
                e.waitl("v%d_%d" % (st_, t))
                c = "0" if st_ == 0 else v(V_ACC + 16 * t, 16)
                e("v_mfma_f32_32x32x16_bf16 %s, %s, %s, %s", v(V_ACC + 16 * t, 16), v(V_A + 4 * buf, 4), v(V_P + 4 * st_, 4), c)
                if st_ < 2: vreads(t, st_ + 2, buf)
                pop(pv, 1)
        e("s_nop 7\ns_nop 1")
        for t in range(4): ostore(t)
    assert not pv
    e.stamp()

def p2_reads(lg_):
    b = lg_ & 1
    pg = (13 + lg_) % 32
    base, rel = (0, pg) if pg < 13 else ((1, pg - 13) if pg < 25 else (2, pg - 25))
    return ["ds_read_b64_tr_b16 %s, %s offset:%d" % (v(V2_A + 20 * b + 4 * nt + 2 * j, 2), v(V_RWO + base), rel * 5120 + 8 * j * 320 + 64 * nt)
            for nt in range(5) for j in range(2)]

def poll(e, label, vaddr, nonce, nlanes):
    P = int(e.o.get("ppoll", 0))
    if P > 1:
        e("s_mov_b64 exec, 0x%x", (1 << nlanes) - 1)
        e("s_mov_b32 %s, 0", s(S_SPIN))
        e("s_waitcnt vmcnt(0)")
        for k in range(P):
            e("buffer_load_dword %s, %s, %s, 0 offen sc1", v(V_T + 8 + k), v(vaddr), s(S_WS, 4))
            if k < P - 1: e("s_sleep %d", int(e.o.get("pgap", 2)))
        e.label(label)
        for k in range(P):
            e("s_waitcnt vmcnt(%d)", P - 1)
            e("v_cmp_ne_u32 vcc, %s, %s", s(nonce), v(V_T + 8 + k))
            e("s_add_u32 %s, %s, 1", s(S_SPIN), s(S_SPIN))
            e("s_cmp_ge_u32 %s, 0x%x", s(S_SPIN), 1 << 18)
            e("s_cbranch_scc1 %s_done", label)
            e("s_cbranch_vccz %s_done", label)
            e("buffer_load_dword %s, %s, %s, 0 offen sc1", v(V_T + 8 + k), v(vaddr), s(S_WS, 4))
        e("s_branch %s", label)
        e.label(label + "_done")
        e("s_mov_b64 exec, -1")
        e.vm.ops = ["poll"] * P
        return
    e("s_mov_b64 exec, 0x%x", (1 << nlanes) - 1)
    e("s_mov_b32 %s, 0", s(S_SPIN))
    e.label(label)
    e("buffer_load_dword %s, %s, %s, 0 offen sc1", v(V_T + 8), v(vaddr), s(S_WS, 4))
    e("s_waitcnt vmcnt(0)")
    e("v_cmp_ne_u32 vcc, %s, %s", s(nonce), v(V_T + 8))
    e("s_add_u32 %s, %s, 1", s(S_SPIN), s(S_SPIN))
    e("s_cmp_ge_u32 %s, 0x%x", s(S_SPIN), 1 << 17)
    e("s_cbranch_scc1 %s_done", label)
    if e.o.get("psleep"):
        e("s_cbranch_vccz %s_done", label)
        e("s_sleep %d", int(e.o["psleep"]))
        e("s_branch %s", label)
    else:
        e("s_cbranch_vccnz %s", label)
    e.label(label + "_done")
    e("s_mov_b64 exec, -1")
    e.vm.issue("poll"); e.vm.ops = ["poll"]

def phase2(e):
    T = V_T; L = v(V_LANE)
    e.waitv("wo1")
    e.bar()
    for r in p2_reads(0): e(r)
    e("s_lshr_b32 %s, %s, 15", s(S_T2), s(S_OB))
    e("s_lshl_b32 %s, %s, 9", s(S_T2), s(S_T2))
    e("s_add_u32 %s, %s, 0x%x", s(S_T2), s(S_T2), WS_F1)
    e("v_and_b32 %s, 3, %s", v(T), L)
    e("v_lshlrev_b32 %s, 7, %s", v(T), v(T))
    e("v_add_u32 %s, %s, %s", v(V_TM + 6), s(S_T2), v(T))
    e("s_lshl_b32 %s, %s, 7", s(S_T1), s(S_CS))
    e("s_add_u32 %s, %s, %s", s(S_T2), s(S_T2), s(S_T1))
    e("v_mov_b32 %s, %s", v(V_TM + 7), s(S_T2))
    e("v_mov_b32 %s, %s", v(V_TM + 8), s(S_N1))
    early = e.o.get("woearly") or e.o.get("schedA") or e.o.get("schedB")
    schedA = e.o.get("schedA") or e.o.get("schedB")
    flag_at = int(e.o.get("flag_at", 8))
    pending = [] if schedA else grp_wo(e, 2) + grp_wo(e, 3) + ([] if early else grp_wo(e, 4))
    if e.o.get("schedB") or e.o.get("schedC"): pending = grp_wo(e, 4) + grp_wo(e, 5)
    if e.o.get("schedD"): pending = grp_wo(e, 2) + grp_wo(e, 3) + grp_wo(e, 4) + grp_wo(e, 5)
    held = []
    if e.o.get("woafter"): held, pending = pending, []
    def kstep(ks, bsrc, nxt, first):
        b = ks & 1
        for nt in range(5):
            issued_new = min(len(nxt), [0, 3, 6, 8, 10][nt])
            if e.o.get("w2"):
                if nt in (0, 2, 4): e("s_waitcnt lgkmcnt(%d)", min(15, 2 * (4 - min(4, nt + 1)) + issued_new))
            else: e("s_waitcnt lgkmcnt(%d)", min(15, 2 * (4 - nt) + issued_new))
            c = "0" if first else v(V2_ACC + 16 * nt, 16)
            e("v_mfma_f32_32x32x16_bf16 %s, %s, %s, %s", v(V2_ACC + 16 * nt, 16), v(V2_A + 20 * b + 4 * nt, 4), bsrc, c)
            lo, hi = [(0, 3), (3, 6), (6, 8), (8, 10), (10, 10)][nt]
            for r in nxt[lo:hi]: e(r)
            if nt >= 2: pop(pending, 1)
    def publish():
        e.jitter(3)
        e.waitv("ost")
        e("s_mov_b64 exec, 1")
        e("buffer_store_dword %s, %s, %s, 0 offen %s", v(V_TM + 8), v(V_TM + 7), s(S_WS, 4), "" if e.o.get("fastO") else "sc1"); e.vm.issue("f1")
        e("s_mov_b64 exec, -1")
    if schedA and e.o.get("wo67first"): pending += grp_wo(e, 6) + grp_wo(e, 7)
    for ks in range(8):
        if ks == flag_at:
            publish()
            pending += held
            if schedA and not e.o.get("wo67first") and not e.o.get("late67") and not e.o.get("r2split"): pending += grp_wo(e, 6) + grp_wo(e, 7)
        kstep(ks, v(V_Q + 4 * ks, 4), p2_reads(ks + 1) if ks < 7 else [], ks == 0)
    e.stamp()
    if flag_at >= 8:
        publish()
        if schedA and not e.o.get("wo67first") and not e.o.get("late67"): pending += grp_wo(e, 6) + grp_wo(e, 7)
    pop(pending, len(pending))
    tile = e.o.get("tile") or e.o.get("tile2")
    if tile: tail_addresses(e)
    if early and not schedA:
        for st_ in range(4, 8): pop(grp_wo(e, st_), 5)
    if e.o.get("barpre"):
        e("s_waitcnt vmcnt(0)")
        e.bar()
    e.stamp("p2")
    poll(e, "L_poll1", V_TM + 6, S_N1, 4)
    e.stamp()
    e("s_or_b32 %s, %s, %s", s(S_T0), s(S_CS), s(S_W))
    e("s_cmp_lg_u32 %s, 0", s(S_T0))
    e("s_cbranch_scc1 L_noe1")
    e("s_lshr_b32 %s, %s, 17", s(S_T0), s(S_OB))
    e("s_lshl_b32 %s, %s, 7", s(S_T0), s(S_T0))
    e("s_add_u32 %s, %s, 0x%x", s(S_T0), s(S_T0), WS_E1)
    e("v_mov_b32 v8, %s", s(S_T0))
    e("s_mov_b64 exec, 1")
    e("buffer_store_dword %s, v8, %s, 0 offen sc1", v(V_TM + 8), s(S_WS, 4))
    e("s_mov_b64 exec, -1")
    e.label("L_noe1")
    for j in range(1, 4):
        e("s_add_u32 %s, %s, %d", s(S_T0), s(S_CS), j)
        e("s_and_b32 %s, %s, 3", s(S_T0), s(S_T0))
        e("s_lshl_b32 %s, %s, 13", s(S_T0), s(S_T0))
        e("s_add_u32 %s, %s, %s", s(S_OBR + 2 * (j - 1)), s(S_T0), s(S_OB))
        e("s_add_u32 %s, %s, 4096", s(S_OBR + 2 * (j - 1) + 1), s(S_OBR + 2 * (j - 1)))
    def oload(j):
        def g(f):
            def h():
                n = 8 * (j - 1) + f
                e("buffer_load_dwordx4 %s, %s, %s, %s offen offset:%d %s", v(V_RO[n], 4), v(V_LIN), s(S_WS, 4), s(S_OBR + 2 * (j - 1) + (f >> 2)), (f % 4) * 1024, "" if e.o.get("plainOL") else "sc1")
                e.vm.issue("o%d" % n)
            return h
        return [g(f) for f in range(8)]
    e.jitter(4)
    pop(oload(1), 8)
    e.stamp("p2")
    if not e.o.get("barpre"): e.bar()
    e.stamp("p2")
    if e.o.get("r2split"): pending += oload(2)
    elif e.o.get("late67"): pending += oload(2) + grp_wo(e, 6) + oload(3) + grp_wo(e, 7)
    else: pending += (oload(2) + oload(3)) if early else (grp_wo(e, 5) + oload(2) + grp_wo(e, 6) + oload(3) + grp_wo(e, 7))
    for r in p2_reads(8): e(r)
    if tile and e.o.get("r2split"):
        for ks in range(8, 24):
            if ks == 16: pending += grp_wo(e, 6) + oload(3) + grp_wo(e, 7) if e.o.get("r2order") == "a" else oload(3) + grp_wo(e, 6) + grp_wo(e, 7)
            e.waitv("o%d" % (ks - 8))
            if ks == 23:
                pop(pending, len(pending))
                e.waitv("wo7"); e.bar()
            nxt = p2_reads(ks + 1) if ks < 23 else [r for q in range(5) for r in a_read(0, 24 + q, V2_A + 4 * q)]
            kstep(ks, v(V_RO[ks - 8], 4), nxt, False)
        assert not pending
        e.stamp("fine")
        remote_tiles(e, kstep, 24)
        return
    if tile:
        assert early
        for ks in range(8, 16):
            e.waitv("o%d" % (ks - 8))
            if ks in (8, 12): e.stamp("p2")
            nxt = p2_reads(ks + 1) if ks < 15 else [r for q in range(5) for r in a_read(0, 16 + q, V2_A + 4 * q)]
            kstep(ks, v(V_RO[ks - 8], 4), nxt, False)
        if e.o.get("late67"):
            pop(pending, len(pending))
            e.waitv("wo7"); e.bar()
        assert not pending
        e.stamp("fine")
        remote_tiles(e, kstep)
        return
    for ks in range(8, 32):
        n = ks - 8
        if ks in (19, 23, 27) and not early:
            e.waitv(["wo%d" % (5 + (ks - 19) // 4), "o%d" % n])
            e.bar()
        else:
            e.waitv("o%d" % n)
        kstep(ks, v(V_RO[n], 4), p2_reads(ks + 1) if ks < 31 else [], False)
    assert not pending
    e.stamp()

def tail_addresses(e):
    L = v(V_LANE); A, B, C = 8, 9, 11
    e("v_bfe_u32 %s, %s, 4, 1", v(A), L)
    e("v_mul_u32_u24 %s, %d, %s", v(A), 8 * 10 * 512, v(A))
    e("v_and_b32 %s, 15, %s", v(B), L)
    e("v_lshrrev_b32 %s, 5, %s", v(C), L)
    e("v_lshl_add_u32 %s, %s, 4, %s", v(V_PA), v(C), v(B))
    e("v_lshl_add_u32 %s, %s, 4, %s", v(V_PA), v(V_PA), v(A))
    e("s_lshl_b32 %s, %s, 2", s(S_T0), s(S_RP))
    e("s_add_u32 %s, %s, %s", s(S_T0), s(S_T0), s(S_CS))
    e("s_lshl_b32 %s, %s, 3", s(S_PB), s(S_T0))
    e("s_lshl_b32 %s, %s, 1", s(S_T1), s(S_W))
    e("s_add_u32 %s, %s, %s", s(S_T1), s(S_PB), s(S_T1))
    e("s_lshl_b32 %s, %s, 3", s(S_T1), s(S_T1))
    e("s_add_u32 %s, %s, %s", s(S_T1), s(S_T1), s(S_HG))
    e("s_mul_i32 %s, %s, %d", s(S_T1), s(S_T1), 10 * 512)
    e("s_add_u32 %s, %s, 0x%x", s(S_PS0), s(S_T1), WS_PART)
    e("s_add_u32 %s, %s, 4096", s(S_PS1), s(S_PS0))
    e("s_lshl_b32 %s, %s, 2", s(S_T0), s(S_T0))
    e("s_add_u32 %s, %s, %s", s(S_T3), s(S_T0), s(S_W))
    e("s_lshl_b32 %s, %s, 3", s(S_T3), s(S_T3))
    e("s_add_u32 %s, %s, %s", s(S_T3), s(S_T3), s(S_HG))
    e("s_lshl_b32 %s, %s, 7", s(S_T3), s(S_T3))
    e("s_add_u32 %s, %s, 0x%x", s(S_T3), s(S_T3), WS_F2)
    e("v_mov_b32 %s, %s", v(V_F2O), s(S_T3))
    e("s_lshr_b32 %s, %s, 1", s(S_T3), s(S_HG))
    e("s_add_u32 %s, %s, %s", s(S_T3), s(S_T0), s(S_T3))
    e("s_lshl_b32 %s, %s, 10", s(S_T3), s(S_T3))
    e("s_add_u32 %s, %s, 0x%x", s(S_T3), s(S_T3), WS_F2)
    if e.o.get("tile2"):
        e("s_lshr_b32 %s, %s, 1", s(S_T2), s(S_W))
        e("s_lshl_b32 %s, %s, 17", s(S_T2), s(S_T2))
        e("s_add_u32 %s, %s, %s", s(S_T3), s(S_T3), s(S_T2))
    e("v_and_b32 %s, 7, %s", v(A), L)
    e("v_lshlrev_b32 %s, 7, %s", v(A), v(A))
    e("v_add_u32 %s, %s, %s", v(V_F2P), s(S_T3), v(A))
    e("v_mov_b32 %s, %s", v(V_N2V), s(S_N2))
    e("v_mul_u32_u24 %s, 5120, %s", v(A), v(C))
    e("v_and_b32 %s, 31, %s", v(B), L)
    e("v_lshl_add_u32 %s, %s, 4, %s", v(V_P3L), v(B), v(A))
    e("s_add_u32 %s, %s, %s", s(S_T0), s(S_PB), s(S_HG))
    e("s_mul_i32 %s, %s, %d", s(S_T0), s(S_T0), 8 * 5120)
    e("s_add_u32 %s, %s, 0x%x", s(S_T0), s(S_T0), WS_PART)
    e("s_mul_i32 %s, %s, 3", s(S_T1), s(S_W))
    e("s_cmp_eq_u32 %s, 3", s(S_W))
    e("s_cselect_b32 %s, 8, %s", s(S_T1), s(S_T1))
    e("s_lshl_b32 %s, %s, 9", s(S_T2), s(S_T1))
    e("s_add_u32 %s, %s, %s", s(S_P3B), s(S_T0), s(S_T2))
    e("v_and_b32 %s, 15, %s", v(A), L)
    e("v_mul_u32_u24 %s, 1280, %s", v(A), v(A))
    e("v_bfe_u32 %s, %s, 4, 1", v(B), L)
    e("v_lshl_add_u32 %s, %s, 3, %s", v(A), v(B), v(A))
    e("v_lshl_add_u32 %s, %s, 4, %s", v(V_OUT), v(C), v(A))
    e("s_lshl_b32 %s, %s, 3", s(S_T2), s(S_RP))
    e("s_add_u32 %s, %s, %s", s(S_T2), s(S_T2), s(S_HG))
    e("s_mul_i32 %s, %s, %d", s(S_T2), s(S_T2), 16 * 1280)
    e("s_mul_i32 %s, %s, 320", s(S_T3), s(S_CS))
    e("s_add_u32 %s, %s, %s", s(S_T2), s(S_T2), s(S_T3))
    e("s_lshl_b32 %s, %s, 5", s(S_T1), s(S_T1))
    e("s_add_u32 %s, %s, %s", s(S_OUTB), s(S_T2), s(S_T1))

def pack_store(e, nt, m, tag):
    ch = 2 * nt + m
    pk = 168 + 8 * (nt % 4) + 4 * m
    for d in range(4):
        r0 = V2_ACC + 16 * nt + 8 * m + 2 * d
        e("v_cvt_pk_bf16_f32 %s, %s, %s", v(pk + d), v(r0), v(r0 + 1))
    e("buffer_store_dwordx4 %s, %s, %s, %s offen offset:%d sc1", v(pk, 4), v(V_PA), s(S_WS, 4), s(S_PS0 if ch < 8 else S_PS1), (ch % 8) * 512)
    e.vm.issue(tag)

def a_read(nt, lg_, reg):
    pg = (13 + lg_) % 32
    base, rel = (0, pg) if pg < 13 else ((1, pg - 13) if pg < 25 else (2, pg - 25))
    return ["ds_read_b64_tr_b16 %s, %s offset:%d" % (v(reg + 2 * j, 2), v(V_RWO + base), rel * 5120 + 8 * j * 320 + 64 * nt) for j in range(2)]

def p3_loads(e, nch):
    for c in range(nch):
        for i in range(4):
            e("s_add_u32 %s, %s, %d", s(S_OFF), s(S_P3B), 2 * i * 5120 + c * 512)
            e("buffer_load_dwordx4 %s, %s, %s, %s offen sc1", v(64 + 16 * c + 4 * i, 4), v(V_P3L), s(S_WS, 4), s(S_OFF))

def p3_reduce(e, c):
    r = 64 + 16 * c; acc = 128 + 8 * c
    for d in range(4):
        e("v_dot2_f32_bf16 %s, %s, %s, 0", v(acc + 2 * d), v(r + d), s(S_T0))
        e("v_dot2_f32_bf16 %s, %s, %s, 0", v(acc + 2 * d + 1), v(r + d), s(S_T1))
    for i in range(1, 4):
        for d in range(4):
            e("v_dot2_f32_bf16 %s, %s, %s, %s", v(acc + 2 * d), v(r + 4 * i + d), s(S_T0), v(acc + 2 * d))
            e("v_dot2_f32_bf16 %s, %s, %s, %s", v(acc + 2 * d + 1), v(r + 4 * i + d), s(S_T1), v(acc + 2 * d + 1))
    e("s_nop 3")
    for d in range(4): e("v_permlane32_swap_b32 %s, %s", v(acc + d), v(acc + 4 + d))
    e("s_nop 1")
    for d in range(4): e("v_add_f32 %s, %s, %s", v(acc + d), v(acc + d), v(acc + 4 + d))
    e("v_cvt_pk_bf16_f32 %s, %s, %s", v(acc), v(acc), v(acc + 1))
    e("v_cvt_pk_bf16_f32 %s, %s, %s", v(acc + 1), v(acc + 2), v(acc + 3))
    e("buffer_store_dwordx2 %s, %s, %s, %s offen offset:%d %s", v(acc, 2), v(V_OUT), s(S_OUT, 4), s(S_OUTB), 32 * c, {None: ""}.get(e.o.get("outaux"), str(e.o.get("outaux")).replace("_", " ")))

def flag_store(e, vaddr, off):
    e("s_mov_b64 exec, 1")
    e("buffer_store_dword %s, %s, %s, 0 offen offset:0 sc1" if not off else "buffer_store_dword %s, %s, %s, %s offen sc1",
      *((v(V_N2V), v(vaddr), s(S_WS, 4)) if not off else (v(V_N2V), v(vaddr), s(S_WS, 4), s(off))))
    e("s_mov_b64 exec, -1")

def remote_tiles(e, kstep, k0=16):
    D = 5
    lg = Cnt()
    nk = 32 - k0
    seq = [(nt, k0 + j) for nt in range(5) for j in range(nk)]
    def reg(q): return V2_A + 4 * (q % 10)
    for q in range(D):
        lg.issue("a%d" % q); lg.issue("a%d" % q)
    for q, (nt, ks) in enumerate(seq):
        j = ks - k0
        if j == 0 and nt == 1: e.stamp("fine")
        if nt == 0: e.waitv("o%d" % (ks - 8))
        if e.o.get("w2"):
            if q % 2 == 0: e("s_waitcnt lgkmcnt(%d)", min(15, lg.after("a%d" % min(q + 1, len(seq) - 1))))
        else: e("s_waitcnt lgkmcnt(%d)", min(15, lg.after("a%d" % q)))
        e("v_mfma_f32_32x32x16_bf16 %s, %s, %s, %s", v(V2_ACC + 16 * nt, 16), v(reg(q), 4), v(V_RO[ks - 8], 4), v(V2_ACC + 16 * nt, 16))
        if q + D < len(seq):
            n2, k2 = seq[q + D]
            for r in a_read(n2, k2, reg(q + D)): e(r); lg.issue("a%d" % (q + D))
        if nt >= 1 and j == (4 if nk == 16 else 3): pack_store(e, nt - 1, 0, "pst%d" % (nt - 1))
        if nt >= 1 and j == (8 if nk == 16 else 5): pack_store(e, nt - 1, 1, "pst%d" % (nt - 1))
    e.stamp()

def consts_p3(e):
    e("s_mov_b32 %s, 0x00003f80", s(S_T0))
    e("s_mov_b32 %s, 0x3f800000", s(S_T1))

def epoch2(e):
    e("s_or_b32 %s, %s, %s", s(S_T2), s(S_HG), s(S_W))
    e("s_cmp_lg_u32 %s, 0", s(S_T2))
    e("s_cbranch_scc1 L_noe2")
    e("s_lshl_b32 %s, %s, 4", s(S_T2), s(S_PB))
    e("s_add_u32 %s, %s, 0x%x", s(S_T2), s(S_T2), WS_E2)
    e("v_mov_b32 v8, %s", s(S_T2))
    e("s_mov_b64 exec, 1")
    e("buffer_store_dword %s, v8, %s, 0 offen sc1", v(V_N2V), s(S_WS, 4))
    e("s_mov_b64 exec, -1")
    e.label("L_noe2")

def tail1(e):
    e("s_nop 7\ns_nop 3")
    pack_store(e, 4, 0, "pst4"); pack_store(e, 4, 1, "pst4")
    e.waitv("pst4")
    e.stamp()
    flag_store(e, V_F2O, 0)
    poll(e, "L_poll2", V_F2P, S_N2, 8)
    e.stamp()
    e("s_cmp_ge_u32 %s, 2", s(S_W))
    e("s_cbranch_scc1 L_p3_two")
    p3_loads(e, 3); consts_p3(e)
    e("s_waitcnt vmcnt(0)")
    e.stamp("fine");
    for c in range(3): p3_reduce(e, c)
    e("s_branch L_p3_done")
    e.label("L_p3_two")
    p3_loads(e, 2); consts_p3(e)
    e("s_waitcnt vmcnt(0)")
    if e.o.get("fine") and e.o.get("stamps"): e.nst -= 1
    e.stamp("fine")
    for c in range(2): p3_reduce(e, c)
    e.label("L_p3_done")
    epoch2(e)
    e.stamp()
    if e.o.get("fine"):
        e("s_waitcnt vmcnt(0)")
        e.stamp()

def tail2(e):
    e.jitter(5)
    if e.o.get("r2split"):
        e("s_mov_b32 %s, 0x%x", s(S_T3), 1 << 17)
        e("s_nop 7\ns_nop 3")
        pack_store(e, 4, 0, "pst4"); pack_store(e, 4, 1, "pst4")
        e.waitv("pst2")
        flag_store(e, V_F2O, 0)
        e.vm.issue("fA")
    else:
        e.waitv("pst2")
        flag_store(e, V_F2O, 0)
        e("s_mov_b32 %s, 0x%x", s(S_T3), 1 << 17)
        e("s_nop 7")
        pack_store(e, 4, 0, "pst4"); pack_store(e, 4, 1, "pst4")
    e.jitter(6)
    e.waitv("pst4")
    flag_store(e, V_F2O, S_T3)
    e.stamp()
    poll(e, "L_poll2", V_F2P, S_N2, 8)
    e.stamp()
    e("s_cmp_ge_u32 %s, 2", s(S_W))
    e("s_cbranch_scc1 L_p3_two")
    p3_loads(e, 3); consts_p3(e)
    for c, n in enumerate((8, 5, 2)):
        e("s_waitcnt vmcnt(%d)", n); p3_reduce(e, c)
    e("s_branch L_p3_done")
    e.label("L_p3_two")
    p3_loads(e, 2); consts_p3(e)
    for c, n in enumerate((4, 1)):
        e("s_waitcnt vmcnt(%d)", n); p3_reduce(e, c)
    e.label("L_p3_done")
    epoch2(e)
    e.stamp()

def partials(e):
    T = V_T; L = v(V_LANE)
    e("v_bfe_u32 %s, %s, 4, 1", v(T), L)
    e("v_mul_u32_u24 %s, %d, %s", v(T), 8 * 10 * 512, v(T))
    e("v_and_b32 %s, 15, %s", v(T + 1), L)
    e("v_lshrrev_b32 %s, 5, %s", v(T + 2), L)
    e("v_lshl_add_u32 %s, %s, 4, %s", v(T + 1), v(T + 2), v(T + 1))
    e("v_lshl_add_u32 %s, %s, 4, %s", v(T), v(T + 1), v(T))
    e("s_lshl_b32 %s, %s, 2", s(S_T0), s(S_RP))
    e("s_add_u32 %s, %s, %s", s(S_T0), s(S_T0), s(S_CS))
    e("s_lshl_b32 %s, %s, 3", s(S_PB), s(S_T0))
    e("s_lshl_b32 %s, %s, 1", s(S_T1), s(S_W))
    e("s_add_u32 %s, %s, %s", s(S_T1), s(S_PB), s(S_T1))
    e("s_lshl_b32 %s, %s, 3", s(S_T1), s(S_T1))
    e("s_add_u32 %s, %s, %s", s(S_T1), s(S_T1), s(S_HG))
    e("s_mul_i32 %s, %s, %d", s(S_T1), s(S_T1), 10 * 512)
    e("s_add_u32 %s, %s, 0x%x", s(S_T1), s(S_T1), WS_PART)
    e("s_add_u32 %s, %s, 4096", s(S_T2), s(S_T1))
    e("s_lshl_b32 %s, %s, 2", s(S_T0), s(S_T0))
    e("s_add_u32 %s, %s, %s", s(S_T3), s(S_T0), s(S_W))
    e("s_lshl_b32 %s, %s, 3", s(S_T3), s(S_T3))
    e("s_add_u32 %s, %s, %s", s(S_T3), s(S_T3), s(S_HG))
    e("s_lshl_b32 %s, %s, 7", s(S_T3), s(S_T3))
    e("s_add_u32 %s, %s, 0x%x", s(S_T3), s(S_T3), WS_F2)
    e("v_mov_b32 %s, %s", v(V_TM + 7), s(S_T3))
    e("s_lshr_b32 %s, %s, 1", s(S_T3), s(S_HG))
    e("s_add_u32 %s, %s, %s", s(S_T3), s(S_T0), s(S_T3))
    e("s_lshl_b32 %s, %s, 10", s(S_T3), s(S_T3))
    e("s_add_u32 %s, %s, 0x%x", s(S_T3), s(S_T3), WS_F2)
    e("v_and_b32 %s, 7, %s", v(T + 3), L)
    e("v_lshlrev_b32 %s, 7, %s", v(T + 3), v(T + 3))
    e("v_add_u32 %s, %s, %s", v(V_TM + 6), s(S_T3), v(T + 3))
    e("v_mov_b32 %s, %s", v(V_TM + 8), s(S_N2))
    for nt in range(5):
        for m in range(2):
            ch = 2 * nt + m
            for d in range(4):
                r0 = V2_ACC + 16 * nt + 8 * m + 2 * d
                e("v_cvt_pk_bf16_f32 %s, %s, %s", v(V_PK + 4 * ch + d), v(r0), v(r0 + 1))
            e("buffer_store_dwordx4 %s, %s, %s, %s offen offset:%d sc1", v(V_PK + 4 * ch, 4), v(T), s(S_WS, 4), s(S_T1 if ch < 8 else S_T2), (ch % 8) * 512)
            e.vm.issue("pst")
    e.waitv("pst")
    e.stamp()
    e("s_mov_b64 exec, 1")
    e("buffer_store_dword %s, %s, %s, 0 offen sc1", v(V_TM + 8), v(V_TM + 7), s(S_WS, 4)); e.vm.issue("f2")
    poll(e, "L_poll2", V_TM + 6, S_N2, 8)
    e.stamp()

def phase3(e):
    T = V_T; L = v(V_LANE)
    e("v_lshrrev_b32 %s, 5, %s", v(T), L)
    e("v_mul_u32_u24 %s, 5120, %s", v(T + 1), v(T))
    e("v_and_b32 %s, 31, %s", v(T + 2), L)
    e("v_lshl_add_u32 %s, %s, 4, %s", v(T + 1), v(T + 2), v(T + 1))
    e("s_add_u32 %s, %s, %s", s(S_T0), s(S_PB), s(S_HG))
    e("s_mul_i32 %s, %s, %d", s(S_T0), s(S_T0), 8 * 5120)
    e("s_add_u32 %s, %s, 0x%x", s(S_T0), s(S_T0), WS_PART)
    e("s_mul_i32 %s, %s, 3", s(S_T1), s(S_W))
    e("s_cmp_eq_u32 %s, 3", s(S_W))
    e("s_cselect_b32 %s, 8, %s", s(S_T1), s(S_T1))
    e("s_lshl_b32 %s, %s, 9", s(S_T2), s(S_T1))
    e("s_add_u32 %s, %s, %s", s(S_T0), s(S_T0), s(S_T2))
    R = 64
    for c in range(3):
        if c == 2:
            e("s_cmp_ge_u32 %s, 2", s(S_W))
            e("s_cbranch_scc1 L_p3_two")
        for i in range(4):
            e("s_add_u32 %s, %s, %d", s(S_OFF), s(S_T0), 2 * i * 5120 + c * 512)
            e("buffer_load_dwordx4 %s, %s, %s, %s offen sc1", v(R + 16 * c + 4 * i, 4), v(T + 1), s(S_WS, 4), s(S_OFF))
    e.label("L_p3_two")
    e("v_and_b32 %s, 15, %s", v(T + 3), L)
    e("v_mul_u32_u24 %s, 1280, %s", v(T + 3), v(T + 3))
    e("v_bfe_u32 %s, %s, 4, 1", v(T + 4), L)
    e("v_lshl_add_u32 %s, %s, 3, %s", v(T + 3), v(T + 4), v(T + 3))
    e("v_lshl_add_u32 %s, %s, 4, %s", v(T + 3), v(T), v(T + 3))
    e("s_lshl_b32 %s, %s, 3", s(S_T2), s(S_RP))
    e("s_add_u32 %s, %s, %s", s(S_T2), s(S_T2), s(S_HG))
    e("s_mul_i32 %s, %s, %d", s(S_T2), s(S_T2), 16 * 1280)
    e("s_mul_i32 %s, %s, 320", s(S_T3), s(S_CS))
    e("s_add_u32 %s, %s, %s", s(S_T2), s(S_T2), s(S_T3))
    e("s_lshl_b32 %s, %s, 5", s(S_T1), s(S_T1))
    e("s_add_u32 %s, %s, %s", s(S_T2), s(S_T2), s(S_T1))
    e("s_mov_b32 %s, 0x00003f80", s(S_T0))
    e("s_mov_b32 %s, 0x3f800000", s(S_T1))
    def reduce(c):
        r = R + 16 * c; acc = 128 + 8 * c
        for d in range(4):
            e("v_dot2_f32_bf16 %s, %s, %s, 0", v(acc + 2 * d), v(r + d), s(S_T0))
            e("v_dot2_f32_bf16 %s, %s, %s, 0", v(acc + 2 * d + 1), v(r + d), s(S_T1))
        for i in range(1, 4):
            for d in range(4):
                e("v_dot2_f32_bf16 %s, %s, %s, %s", v(acc + 2 * d), v(r + 4 * i + d), s(S_T0), v(acc + 2 * d))
                e("v_dot2_f32_bf16 %s, %s, %s, %s", v(acc + 2 * d + 1), v(r + 4 * i + d), s(S_T1), v(acc + 2 * d + 1))
        e("s_nop 3")
        for d in range(4): e("v_permlane32_swap_b32 %s, %s", v(acc + d), v(acc + 4 + d))
        e("s_nop 1")
        for d in range(4): e("v_add_f32 %s, %s, %s", v(acc + d), v(acc + d), v(acc + 4 + d))
        e("v_cvt_pk_bf16_f32 %s, %s, %s", v(acc), v(acc), v(acc + 1))
        e("v_cvt_pk_bf16_f32 %s, %s, %s", v(acc + 1), v(acc + 2), v(acc + 3))
        e("buffer_store_dwordx2 %s, %s, %s, %s offen offset:%d", v(acc, 2), v(T + 3), s(S_OUT, 4), s(S_T2), 32 * c)
    e("s_waitcnt vmcnt(0)")
    reduce(0); reduce(1)
    e("s_cmp_ge_u32 %s, 2", s(S_W))
    e("s_cbranch_scc1 L_p3_skip")
    reduce(2)
    e.label("L_p3_skip")
    e("s_or_b32 %s, %s, %s", s(S_T0), s(S_HG), s(S_W))
    e("s_cmp_lg_u32 %s, 0", s(S_T0))
    e("s_cbranch_scc1 L_noe2")
    e("s_lshl_b32 %s, %s, 4", s(S_T0), s(S_PB))
    e("s_add_u32 %s, %s, 0x%x", s(S_T0), s(S_T0), WS_E2)
    e("v_mov_b32 %s, %s", v(T), s(S_T0))
    e("s_mov_b64 exec, 1")
    e("buffer_store_dword %s, %s, %s, 0 offen sc1", v(V_TM + 8), v(T), s(S_WS, 4))
    e("s_mov_b64 exec, -1")
    e.label("L_noe2")
    e.stamp()

def dump_stamps(e):
    if not e.o.get("stamps"): return
    n = e.nst
    e("s_waitcnt lgkmcnt(0) vmcnt(0)")
    e("s_lshl_b32 %s, s2, 2", s(S_T0))
    e("s_add_u32 %s, %s, %s", s(S_T0), s(S_T0), s(S_W))
    e("s_lshl_b32 %s, %s, 7", s(S_T0), s(S_T0))
    e("s_add_u32 %s, %s, 0x%x", s(S_T0), s(S_T0), WS_STAMP)
    e("s_mov_b64 exec, 1")
    for i in range(n):
        e("v_mov_b32 v2, %s", s(S_STAMP + 2 * i))
        e("v_mov_b32 v3, %s", s(S_STAMP + 2 * i + 1))
        e("v_mov_b32 v4, %d", 8 * i)
        e("buffer_store_dwordx2 v[2:3], v4, %s, %s offen", s(S_WS, 4), s(S_T0))
        e("s_nop 1")

HEADER = """
; Fused GQA block in one launch: q = x Wq, S = K q^T, softmax, O = P V, out = O Wo   (bf16 in / out, f32 accumulate)
; Kernarg (64 bytes, pointers): x, k_cache, v_cache, wq, wo, out, debug, ws
;
; 256 workgroups of 4 waves, one per CU (160 KiB of LDS each).  wg = xcd + 8 * (4 * rp + cs):
; Phase 1  q^T (128 d x 128 q, K = 640): wq / x tiles stream through an LDS ring (LDS-DMA, 10 stages of 64 k,
;          stage order rotated per workgroup), wq is read with the transposing LDS read; then S^T = K q^T,
;          softmax over the keys (true row maximum), O^T = V^T P^T - all operands stay in MFMA register layouts.
; Phase 2  the 4 heads of (rp, hg) exchange O (bf16 MFMA fragments in ws); workgroup cs multiplies the 128 x 512
;          block with wo[512 hg .. +512][160 cs .. +160] (own head first, then the partners').
; Phase 3  the 8 head groups exchange bf16 partial sums; workgroup hg adds them for rows 16 hg .. +16 in f32.
; Hand-offs: write-through (sc1) stores, drained, then a flag word; consumers poll the flag and read with sc1.
;   A flag is valid when it equals (epoch word found in ws at entry) + 1; the epoch word is advanced by one
;   member of the group once every member has read it, so stale or arbitrary ws contents never look valid.
; Generated by the author's own script (register maps, schedules and wait counts are derived there).
"""
def build(opts):
    e = K(opts)
    for l in HEADER.strip("\n").split("\n"): e.raw(l)
    e.raw("; @launch grid=(256,1,1) block=(%d,1,1) lds=%d" % (512 if opts.get("ldr") else 256, LDS_BYTES))
    e.raw('.amdgcn_target "amdgcn-amd-amdhsa--gfx950"')
    e.raw(".text")
    e.raw(".globl %s" % NAME)
    e.raw(".p2align 8")
    e.raw(".type %s,@function" % NAME)
    e.label(NAME)
    prologue(e)
    addr_gemm1_dma(e)
    if opts.get("ldr"):
        e("s_cmp_eq_u32 %s, %d", s(S_ROLE), 0 if opts.get("ldr_first") else 1)
        e("s_cbranch_scc1 L_loader")
        e.skip_dma = True
    gemm1(e)
    attention(e)
    phase2(e)
    if opts.get("tile2"): tail2(e)
    elif opts.get("tile"): tail1(e)
    else:
        partials(e)
        phase3(e)
    dump_stamps(e)
    e.label("L_end")
    e("s_endpgm")
    if opts.get("ldr"): loader(e)
    e.raw("; NSTAMPS %d" % e.nst)
    return e.text() + KD.format(name=NAME, vgpr=256, sgpr=100, acc=256), e.nst

if __name__ == "__main__":
    out = sys.argv[1]
    opts = {}
    for k in sys.argv[2:]:
        if "=" in k: kk, vv = k.split("="); opts[kk] = vv
        else: opts[k] = True
    t, n = build(opts)
    open(out, "w").write(t)
    print("wrote", out, "stamps:", n, "lines:", t.count("\n"))
```

```python
import sys, struct
from asm import Emit, v, a, s, KD

NAME = "standalone__gqa_block_cached__near_ridge_kernel"
X_BYTES, W_BYTES, KV_BYTES, OUT_BYTES, WS_BYTES = 1310720, 5242880, 8388608, 1310720, 268435456
WS_O    = 0
WS_PART = 16 << 20
WS_E1   = 32 << 20
WS_E2   = WS_E1 + 64 * 128
WS_F1   = WS_E1 + (1 << 16)
WS_F2   = WS_E1 + (2 << 16) + (1 << 17)
WS_F2B  = WS_F2 + (1 << 17)
WS_STAMP = 64 << 20
SCALE_LOG2E = (128 ** -0.5) * 1.4426950408889634
def f32bits(x): return struct.unpack("<I", struct.pack("<f", x))[0]

SLOT = 32768
L_K, L_V = 0, 32768
LDS_BYTES = 163840

S_X, S_WQ, S_K, S_V, S_WO, S_OUT, S_WS = 8, 12, 16, 20, 24, 28, 32
S_W, S_HG, S_RP, S_CS, S_H = 36, 37, 38, 39, 40
S_T0, S_T1, S_T2, S_T3 = 41, 42, 43, 44
S_WQ0, S_X0, S_KV0, S_LW, S_OFF, S_LW8 = 45, 46, 47, 48, 49, 50
S_WOB = 52
S_N1, S_N2 = 56, 57
S_OB, S_PB, S_SPIN = 58, 59, 60
S_SIG, S_TAU = 51, 61
S_PS0, S_PS1, S_P3B, S_OUTB = 4, 5, 6, 7
S_STAMP = 64

V_LANE = 1
V_T = 2
V_DWQ, V_DX, V_DK, V_DV = 16, 20, 24, 28
V_EP = 29
V_LIN = 30
V_RK, V_RV = 32, 40
V_DWO = 44
V_RWO = 49
V_TM = 52
V_TCH, V_TCW = 62, 63
S_ROLE = 97
S_OS0, S_OS1 = 98, 99
S_WOT = 96
S_OBR = 90
V_ACC, V_A, V_B, V_Q, V_S, V_P = 64, 128, 160, 168, 200, 232
V_RG = 200
V2_ACC, V2_A = 64, 200
V_PK = 200
V_PA, V_P3L, V_OUT, V_F2P, V_F2O, V_N2V = 2, 3, 4, 5, 6, 7
V_RO = [168 + 4 * i for i in range(8)] + [144 + 4 * i for i in range(6)] + [240 + 4 * i for i in range(4)] + [16, 20, 24] + [32, 36, 40]

class Cnt:
    def __init__(self): self.ops = []
    def issue(self, tag): self.ops.append(tag)
    def after(self, tags):
        if isinstance(tags, str): tags = [tags]
        last = max(i for i, t in enumerate(self.ops) if t in tags)
        return len(self.ops) - 1 - last

class K(Emit):
    def __init__(self, opts):
        super().__init__()
        self.o = opts; self.vm = Cnt(); self.lg = Cnt(); self.nst = 0; self.nbar = 0; self.skip_dma = False
    def stamp(self, kind="main"):
        if not self.o.get("stamps"): return
        if self.o.get("g1st") and kind == "main" and self.nst >= 13: return
        if kind == "g1" and not self.o.get("g1st"): return
        if kind == "fine" and not self.o.get("fine"): return
        if kind == "p2" and not self.o.get("p2st"): return
        self.ncall = getattr(self, "ncall", 0) + 1
        if self.o.get("p2st") and 1 < self.ncall <= 5: return
        if self.o.get("g1st") and kind == "late": return
        self("%s %s", "s_memtime" if self.o.get("cyc") else "s_memrealtime", s(S_STAMP + 2 * self.nst, 2)); self.nst += 1
    def waitv(self, tags, extra=""):
        if self.skip_dma:
            tl = [tags] if isinstance(tags, str) else tags
            tl = [t for t in tl if not (t[:2] in ("st", "wo") or t in ("K", "V"))]
            if not tl:
                if extra: self("s_waitcnt" + extra)
                return
            tags = tl
        n = self.vm.after(tags); assert n <= 63
        self("s_waitcnt vmcnt(%d)%s", n, extra)
    def waitl(self, tags):
        self("s_waitcnt lgkmcnt(%d)", min(15, self.lg.after(tags)))
    def ds(self, text, tag):
        self(text); self.lg.issue(tag)
    def dma(self, tag, vaddr, srd, soff_reg, imm):
        if (self.o.get("skipV") and srd == S_V) or (self.o.get("skipWO") and srd == S_WO) or (self.o.get("skipK") and srd == S_K):
            self.vm.issue(tag + "_skipped"); self.vm.ops[-1] = tag; self("buffer_load_dword %s, %s, %s, 0 offen", v(V_T + 12), v(V_LIN), s(S_X, 4)); return
        aux = "nt " if (self.o.get("nt") and srd in (S_K, S_V)) or (self.o.get("ntw") and srd in (S_WQ, S_WO)) else ""
        self("buffer_load_dwordx4 %s, %s, %s offen offset:%d %slds", v(vaddr), s(srd, 4), s(soff_reg), imm, aux)
        self.vm.issue(tag)
    def jitter(self, k):
        if not self.o.get("jit"): return
        seed = int(self.o["jit"])
        self.njit = getattr(self, "njit", 0) + 1
        n = self.njit
        self("s_mul_i32 s63, s2, %d", 2654435761 % (1 << 31) + 2 * seed + 2 * k)
        self("s_lshl_b32 s62, %s, %d", s(S_W), 5 + k % 3)
        self("s_add_u32 s63, s63, s62")
        self("s_lshr_b32 s63, s63, %d", 9 + (k + seed) % 5)
        self("s_and_b32 s63, s63, 63")
        self.label("L_jit%d" % n)
        self("s_cmp_eq_u32 s63, 0")
        self("s_cbranch_scc1 L_jitd%d", n)
        self("s_sleep 4")
        self("s_sub_u32 s63, s63, 1")
        self("s_branch L_jit%d", n)
        self.label("L_jitd%d" % n)
    def bar(self):
        self("s_barrier"); self.nbar += 1

def prologue(e):
    e("s_cmp_ge_u32 s2, 256")
    e("s_cbranch_scc1 L_end")
    if e.o.get("perm"):
        e("s_lshr_b32 s3, s2, 5")
        e("s_and_b32 s2, s2, 31")
        e("s_lshl_b32 s2, s2, 3")
        e("s_or_b32 s2, s2, s3")
    for (srd, off) in ((S_X, 0), (S_WQ, 24), (S_WS, 56), (S_K, 8), (S_V, 16), (S_WO, 32), (S_OUT, 40)):
        e("s_load_dwordx2 %s, s[0:1], %d", s(srd, 2), off)
    e("v_and_b32 %s, 63, v0", v(V_LANE))
    e("v_lshrrev_b32 %s, 6, v0", v(V_T))
    e("s_and_b32 %s, s2, 7", s(S_HG))
    e("s_lshr_b32 %s, s2, 3", s(S_T0))
    e("v_readfirstlane_b32 %s, %s", s(S_W), v(V_T))
    e("s_lshr_b32 %s, %s, 2", s(S_RP), s(S_T0))
    e("s_and_b32 %s, %s, 3", s(S_CS), s(S_T0))
    e("s_lshl_b32 %s, %s, 2", s(S_H), s(S_HG))
    e("s_add_u32 %s, %s, %s", s(S_H), s(S_H), s(S_CS))
    for (srd, size) in ((S_X, X_BYTES), (S_K, KV_BYTES), (S_V, KV_BYTES), (S_WQ, W_BYTES), (S_WO, W_BYTES),
                        (S_OUT, OUT_BYTES), (S_WS, WS_BYTES)):
        e("s_mov_b32 %s, 0x%x", s(srd + 2), size)
        e("s_mov_b32 %s, 0x20000", s(srd + 3))
    if e.o.get("ldr"):
        e("s_lshr_b32 %s, %s, 2", s(S_ROLE), s(S_W))
        e("s_and_b32 %s, %s, 3", s(S_W), s(S_W))

def addr_gemm1_dma(e):
    T = V_T; L = v(V_LANE)
    e("v_lshrrev_b32 %s, 4, %s", v(T), L)
    e("v_and_b32 %s, 15, %s", v(T + 1), L)
    e("v_lshlrev_b32 %s, 2, %s", v(T + 2), v(T))
    e("v_xor_b32 %s, %s, %s", v(T + 2), v(T + 1), v(T + 2))
    e("v_lshlrev_b32 %s, 4, %s", v(T + 2), v(T + 2))
    e("v_lshl_add_u32 %s, %s, 13, %s", v(V_DWQ), v(T), v(T + 2))
    e("v_lshl_add_u32 %s, %s, 8, %s", v(V_DV), v(T), v(T + 2))
    for i in range(1, 4): e("v_add_u32 %s, %d, %s", v(V_DWQ + i), i * 31744, v(V_DWQ))
    e("v_xor_b32 %s, %s, %s", v(T + 2), v(T + 1), v(T))
    e("v_lshlrev_b32 %s, 4, %s", v(T + 2), v(T + 2))
    e("v_lshl_add_u32 %s, %s, 8, %s", v(V_DK), v(T), v(T + 2))
    e("v_lshrrev_b32 %s, 3, %s", v(T + 3), L)
    e("v_and_b32 %s, 7, %s", v(T + 4), L)
    e("v_lshrrev_b32 %s, 1, %s", v(T + 5), v(T + 3))
    e("v_xor_b32 %s, %s, %s", v(T + 5), v(T + 4), v(T + 5))
    e("v_lshlrev_b32 %s, 4, %s", v(T + 5), v(T + 5))
    e("v_mul_u32_u24 %s, 1280, %s", v(T + 3), v(T + 3))
    e("v_add_u32 %s, %s, %s", v(V_DX), v(T + 3), v(T + 5))
    e("v_xor_b32 %s, 64, %s", v(T + 5), v(T + 5))
    e("v_add_u32 %s, %s, %s", v(T + 6), v(T + 3), v(T + 5))
    e("v_add_u32 %s, %d, %s", v(V_DX + 1), 9216, v(T + 6))
    e("v_add_u32 %s, %d, %s", v(V_DX + 2), 2 * 9216, v(V_DX))
    e("v_add_u32 %s, %d, %s", v(V_DX + 3), 3 * 9216, v(T + 6))
    for i in range(1, 4): e("v_xor_b32 %s, %d, %s", v(V_DK + i), 64 * i, v(V_DK))
    e("v_lshlrev_b32 %s, 4, %s", v(V_LIN), L)
    e("s_lshl_b32 %s, %s, 17", s(S_WQ0), s(S_W))
    e("s_lshl_b32 %s, %s, 8", s(S_T0), s(S_H))
    e("s_add_u32 %s, %s, %s", s(S_WQ0), s(S_WQ0), s(S_T0))
    e("s_lshl_b32 %s, %s, 2", s(S_T0), s(S_RP))
    e("s_add_u32 %s, %s, %s", s(S_T0), s(S_T0), s(S_W))
    e("s_mul_i32 %s, %s, %d", s(S_X0), s(S_T0), 32 * 1280)
    e("s_lshl_b32 %s, %s, 12", s(S_LW), s(S_W))
    e("s_lshl_b32 %s, %s, 13", s(S_LW8), s(S_W))
    if e.o.get("rot"):
        a_, b_, sa, sb = [int(x) for x in str(e.o.get("rotab", "1,3,0,0")).split(",")]
        e("s_lshr_b32 %s, %s, %d", s(S_SIG), s(S_CS), sb)
        e("s_mul_i32 %s, %s, %d", s(S_SIG), s(S_SIG), b_)
        e("s_lshr_b32 %s, %s, %d", s(S_T0), s(S_RP), sa)
        e("s_mul_i32 %s, %s, %d", s(S_T0), s(S_T0), a_)
        e("s_add_u32 %s, %s, %s", s(S_SIG), s(S_SIG), s(S_T0))
        for _ in range(3):
            e("s_cmp_ge_u32 %s, 10", s(S_SIG))
            e("s_cselect_b32 %s, 10, 0", s(S_T0))
            e("s_sub_u32 %s, %s, %s", s(S_SIG), s(S_SIG), s(S_T0))
    e("s_lshl_b32 %s, %s, 3", s(S_T0), s(S_RP))
    e("s_add_u32 %s, %s, %s", s(S_T0), s(S_T0), s(S_HG))
    e("s_lshl_b32 %s, %s, 7", s(S_T0), s(S_T0))
    e("s_add_u32 %s, %s, 0x%x", s(S_T0), s(S_T0), WS_E1)
    e("s_lshl_b32 %s, %s, 2", s(S_T1), s(S_RP))
    e("s_add_u32 %s, %s, %s", s(S_T1), s(S_T1), s(S_CS))
    e("s_lshl_b32 %s, %s, 7", s(S_T1), s(S_T1))
    e("s_add_u32 %s, %s, 0x%x", s(S_T1), s(S_T1), WS_E2)
    e("v_mov_b32 %s, %s", v(T), s(S_T0))
    e("v_mov_b32 %s, %s", v(T + 1), s(S_T1))
    e("v_cmp_eq_u32 vcc, 1, %s", L)
    e("s_nop 1")
    e("v_cndmask_b32 %s, %s, %s, vcc", v(V_TM), v(T), v(T + 1))

def addr_rest(e):
    T = V_T; L = v(V_LANE)
    HF, C32, NH, R, C, U, W2 = T, T + 1, T + 2, T + 3, T + 4, T + 5, T + 6
    e("v_lshrrev_b32 %s, 5, %s", v(HF), L)
    e("v_and_b32 %s, 31, %s", v(C32), L)
    e("v_bfe_u32 %s, %s, 4, 1", v(NH), L)
    e("v_bfe_u32 %s, %s, 2, 2", v(R), L)
    e("v_and_b32 %s, 3, %s", v(C), L)
    e("v_lshl_add_u32 %s, %s, 3, %s", v(U), v(HF), v(R))
    e("v_lshlrev_b32 %s, 8, %s", v(U), v(U))
    e("v_lshl_add_u32 %s, %s, 5, %s", v(U), v(NH), v(U))
    e("v_and_b32 %s, 1, %s", v(W2), v(C))
    e("v_lshl_add_u32 %s, %s, 4, %s", v(U), v(W2), v(U))
    e("v_lshrrev_b32 %s, 1, %s", v(W2), v(C))
    e("v_lshl_add_u32 %s, %s, 3, %s", v(U), v(W2), v(U))
    e("v_lshl_add_u32 %s, %s, 6, %s", v(V_RG), v(R), v(U))
    for t in range(1, 4): e("v_xor_b32 %s, %d, %s", v(V_RG + t), 64 * t, v(V_RG))
    e("v_bfe_u32 %s, %s, 1, 3", v(U), v(C32))
    e("v_xor_b32 %s, %s, %s", v(U), v(U), v(HF))
    e("v_lshlrev_b32 %s, 4, %s", v(U), v(U))
    e("v_lshl_add_u32 %s, %s, 7, %s", v(U), v(C32), v(U))
    e("s_add_u32 %s, %s, 16384", s(S_T1), s(S_LW))
    e("v_add_u32 %s, %s, %s", v(V_RG + 4), s(S_T1), v(U))
    for u in range(1, 4): e("v_xor_b32 %s, %d, %s", v(V_RG + 4 + u), 32 * u, v(V_RG + 4))
    for b in range(1, 3):
        for i in range(8): e("v_add_u32 %s, 0x%x, %s", v(V_RG + 8 * b + i), 65536 * b, v(V_RG + i))
    e("s_lshr_b32 %s, %s, 1", s(S_T0), s(S_W))
    e("s_lshl_b32 %s, %s, 14", s(S_T0), s(S_T0))
    e("v_lshl_add_u32 %s, %s, 2, %s", v(U), v(HF), v(R))
    e("v_lshlrev_b32 %s, 8, %s", v(W2), v(U))
    e("v_lshl_add_u32 %s, %s, 5, %s", v(W2), v(NH), v(W2))
    e("v_lshl_add_u32 %s, %s, 3, %s", v(W2), v(C), v(W2))
    e("v_lshl_add_u32 %s, %s, 6, %s", v(W2), v(R), v(W2))
    e("s_add_u32 %s, %s, %d", s(S_T1), s(S_T0), L_V)
    e("v_add_u32 %s, %s, %s", v(V_RV), s(S_T1), v(W2))
    for t in range(1, 4): e("v_xor_b32 %s, %d, %s", v(V_RV + t), 64 * t, v(V_RV))
    e("v_mul_u32_u24 %s, 320, %s", v(U), v(U))
    e("v_lshl_add_u32 %s, %s, 5, %s", v(U), v(NH), v(U))
    e("v_lshl_add_u32 %s, %s, 3, %s", v(V_RWO), v(C), v(U))
    e("v_add_u32 %s, %d, %s", v(V_RWO + 1), 13 * 5120, v(V_RWO))
    e("v_add_u32 %s, %d, %s", v(V_RWO + 2), 25 * 5120, v(V_RWO))
    e("v_and_b32 %s, 15, %s", v(U), v(C32))
    e("v_xor_b32 %s, %s, %s", v(U), v(U), v(HF))
    e("v_lshlrev_b32 %s, 4, %s", v(U), v(U))
    e("v_lshl_add_u32 %s, %s, 8, %s", v(U), v(C32), v(U))
    e("v_add_u32 %s, %s, %s", v(V_RK), s(S_T0), v(U))
    for st in range(1, 8): e("v_xor_b32 %s, %d, %s", v(V_RK + st), 32 * st, v(V_RK))
    for i in range(5):
        e("v_add_u32 %s, %d, %s", v(T), 64 * i, L)
        e("v_mul_u32_u24 %s, %d, %s", v(T + 1), 3277, v(T))
        e("v_lshrrev_b32 %s, 16, %s", v(T + 1), v(T + 1))
        e("v_mul_u32_u24 %s, 20, %s", v(T + 2), v(T + 1))
        e("v_sub_u32 %s, %s, %s", v(T + 2), v(T), v(T + 2))
        e("v_mul_u32_u24 %s, 1280, %s", v(T + 1), v(T + 1))
        e("v_lshl_add_u32 %s, %s, 4, %s", v(V_DWO + i), v(T + 2), v(T + 1))
        if i & 3: e("v_subrev_u32 %s, %d, %s", v(V_DWO + i), (i & 3) * 1024, v(V_DWO + i))
    e("s_lshr_b32 %s, %s, 1", s(S_T0), s(S_W))
    e("s_lshl_b32 %s, %s, 1", s(S_T1), s(S_RP))
    e("s_add_u32 %s, %s, %s", s(S_T0), s(S_T0), s(S_T1))
    e("s_lshl_b32 %s, %s, 5", s(S_T0), s(S_T0))
    e("s_add_u32 %s, %s, %s", s(S_T0), s(S_T0), s(S_H))
    e("s_lshl_b32 %s, %s, 14", s(S_KV0), s(S_T0))
    e("s_and_b32 %s, %s, 1", s(S_T0), s(S_W))
    e("s_lshl_b32 %s, %s, 13", s(S_T0), s(S_T0))
    e("s_add_u32 %s, %s, %s", s(S_KV0), s(S_KV0), s(S_T0))
    e("s_mul_i32 %s, %s, 320", s(S_T2), s(S_CS))
    e("s_mul_i32 %s, %s, %d", s(S_T3), s(S_W), 16 * 1280)
    e("s_add_u32 %s, %s, %s", s(S_T2), s(S_T2), s(S_T3))
    e("s_mul_i32 %s, %s, %d", s(S_T3), s(S_HG), 512 * 1280)
    e("s_add_u32 %s, %s, %s", s(S_T2), s(S_T2), s(S_T3))
    for j in range(4):
        e("s_add_u32 %s, %s, %d", s(S_T0), s(S_CS), j)
        e("s_and_b32 %s, %s, 3", s(S_T0), s(S_T0))
        e("s_mul_i32 %s, %s, %d", s(S_T0), s(S_T0), 128 * 1280)
        e("s_add_u32 %s, %s, %s", s(S_WOB + j), s(S_T0), s(S_T2))
    e("v_lshlrev_b32 %s, 7, %s", v(V_TCH), L)
    e("v_min_u32 %s, 39, %s", v(V_TCW), L)
    e("v_lshlrev_b32 %s, 7, %s", v(V_TCW), v(V_TCW))
    e("s_lshr_b32 %s, s2, 3", s(S_T0))
    e("s_lshl_b32 %s, %s, 2", s(S_T0), s(S_T0))
    e("s_add_u32 %s, %s, %s", s(S_T0), s(S_T0), s(S_W))
    e("s_lshl_b32 %s, %s, 2", s(S_T0), s(S_T0))
    e("s_lshl_b32 %s, %s, 9", s(S_T1), s(S_HG))
    e("s_add_u32 %s, %s, %s", s(S_T0), s(S_T0), s(S_T1))
    e("s_mul_i32 %s, %s, 1280", s(S_WOT), s(S_T0))
    e("s_lshl_b32 %s, %s, 3", s(S_T0), s(S_RP))
    e("s_add_u32 %s, %s, %s", s(S_T0), s(S_T0), s(S_HG))
    e("s_lshl_b32 %s, %s, 2", s(S_T0), s(S_T0))
    e("s_add_u32 %s, %s, %s", s(S_T0), s(S_T0), s(S_W))
    e("s_lshl_b32 %s, %s, 15", s(S_OB), s(S_T0))

def grp_stage(e, st):
    if e.skip_dma: return []
    slot = st % 5
    rot = e.o.get("rot")
    def wq(i):
        def f():
            if i == 0:
                e("s_add_u32 m0, %s, %d", s(S_LW), slot * SLOT)
                if rot:
                    e("s_lshl_b32 %s, %s, 19", s(S_OFF), s(S_SIG))
                    e("s_add_u32 %s, %s, %s", s(S_OFF), s(S_OFF), s(S_WQ0))
                else:
                    e("s_add_u32 %s, %s, %d", s(S_OFF), s(S_WQ0), st * 64 * 8192)
            e.dma("st%d" % st, V_DWQ + i, S_WQ, S_OFF, i * 1024)
        return f
    def xx(i):
        def f():
            if i == 0:
                e("s_add_u32 m0, %s, %d", s(S_LW), slot * SLOT + 16384)
                if rot:
                    e("s_lshl_b32 %s, %s, 7", s(S_OFF), s(S_SIG))
                    e("s_add_u32 %s, %s, %s", s(S_OFF), s(S_OFF), s(S_X0))
                else:
                    e("s_add_u32 %s, %s, %d", s(S_OFF), s(S_X0), st * 128)
            e.dma("st%d" % st, V_DX + i, S_X, S_OFF, i * 1024)
            if i == 3 and rot:
                e("s_add_u32 %s, %s, 1", s(S_SIG), s(S_SIG))
                e("s_cmp_eq_u32 %s, 10", s(S_SIG))
                e("s_cselect_b32 %s, 0, %s", s(S_SIG), s(S_SIG))
        return f
    return [wq(i) for i in range(4)] + [xx(i) for i in range(4)]

def grp_kv(e, which):
    if e.skip_dma: return []
    srd, base, tag = (S_K, L_K, "K") if which == "K" else (S_V, L_V, "V")
    def f(i):
        def g():
            if i % 4 == 0:
                e("s_add_u32 m0, %s, %d", s(S_LW8), base + (i // 4) * 4096)
                e("s_add_u32 %s, %s, %d", s(S_OFF), s(S_KV0), (i // 4) * 4096)
            e.dma(tag, (V_DK + (i & 3)) if which == "K" else V_DV, srd, S_OFF, (i & 3) * 1024)
        return g
    return [f(i) for i in range(8)]

def grp_wo(e, st):
    if e.skip_dma: return []
    def f(i):
        def g():
            if i == 0:
                e("s_add_u32 %s, %s, %d", s(S_T0), s(S_W), 13 + 4 * st)
                e("s_and_b32 %s, %s, 31", s(S_T0), s(S_T0))
                e("s_mul_i32 %s, %s, 5120", s(S_T0), s(S_T0))
                e("s_mov_b32 m0, %s", s(S_T0))
                e("s_add_u32 %s, %s, %d", s(S_OFF), s(S_WOB + (st >> 1)), (st & 1) * 4 * 16 * 1280)
            if i == 4:
                e("s_add_u32 m0, %s, 4096", s(S_T0))
                e("s_nop 0")
            e.dma("wo%d" % st, V_DWO + i, S_WO, S_OFF, (i & 3) * 1024)
        return g
    return [f(i) for i in range(5)]

def g1_reads(ks):
    st, s4, b = ks >> 2, ks & 3, ks & 1
    slot = st % 5
    base, rel = V_RG + 8 * (slot // 2), (slot % 2) * SLOT
    r = ["ds_read_b128 %s, %s offset:%d" % (v(V_B + 4 * b, 4), v(base + 4 + s4), rel)]
    for t in range(4):
        for j in range(2):
            r.append("ds_read_b64_tr_b16 %s, %s offset:%d" % (v(V_A + 16 * b + 4 * t + 2 * j, 2), v(base + t), rel + s4 * 4096 + j * 1024))
    return r

def grp_touch(e, which):
    if e.skip_dma: return []
    nt = "nt" if e.o.get("ntt") else ""
    def f():
        if which in "KV": e("buffer_load_dword %s, %s, %s, %s offen %s", v(V_T + 12), v(V_TCH), s(S_V if which == "V" else S_K, 4), s(S_KV0), nt)
        else: e("buffer_load_dword %s, %s, %s, %s offen %s", v(V_T + 12), v(V_TCW), s(S_WO, 4), s(S_WOT), nt)
        e.vm.issue(which + "t")
    return [f]

def pop(q, n):
    for _ in range(n):
        if q: q.pop(0)()

def gemm1(e):
    o = e.o
    e("s_waitcnt lgkmcnt(0)")
    e.jitter(0)
    e.stamp()
    def ep(): e("buffer_load_dword %s, %s, %s, 0 offen sc1", v(V_EP), v(V_TM), s(S_WS, 4)); e.vm.issue("ep")
    if not o.get("eplate"): ep()
    for st in range(2):
        for f in grp_stage(e, st): f()
    def xw_touch():
        L = v(V_LANE); A, B_ = 12, 13
        full = o.get("xw") == "all"
        e("s_lshr_b32 %s, s2, 3", s(S_T0))
        e("s_lshl_b32 %s, %s, 2", s(S_T1), s(S_T0))
        e("s_add_u32 %s, %s, %s", s(S_T1), s(S_T1), s(S_W))
        e("s_mul_i32 %s, %s, %d", s(S_T1), s(S_T1), 8 * 1280)
        e("v_lshrrev_b32 %s, 3, %s", v(A), L)
        e("v_mul_u32_u24 %s, 1280, %s", v(A), v(A))
        e("v_and_b32 %s, 7, %s", v(B_), L)
        e("v_lshl_add_u32 %s, %s, 7, %s", v(A), v(B_), v(A))
        if not full: e("s_add_u32 %s, %s, 256", s(S_T1), s(S_T1))
        e("buffer_load_dword v15, %s, %s, %s offen", v(A), s(S_X, 4), s(S_T1)); e.vm.issue("xt")
        if full:
            e("v_lshrrev_b32 %s, 1, %s", v(A), L)
            e("v_mul_u32_u24 %s, 1280, %s", v(A), v(A))
            e("v_and_b32 %s, 1, %s", v(B_), L)
            e("v_lshl_add_u32 %s, %s, 7, %s", v(A), v(B_), v(A))
            e("s_add_u32 %s, %s, 1024", s(S_T1), s(S_T1))
            e("s_mov_b64 exec, 0xffff")
            e("buffer_load_dword v15, %s, %s, %s offen", v(A), s(S_X, 4), s(S_T1)); e.vm.issue("xt")
            e("s_mov_b64 exec, -1")
        nrow, first = (5, 0) if full else (4, 128)
        e("s_mul_i32 %s, %s, %d", s(S_T1), s(S_T0), 4 * nrow)
        e("s_mul_i32 %s, %s, %d", s(S_T2), s(S_W), nrow)
        e("s_add_u32 %s, %s, %s", s(S_T1), s(S_T1), s(S_T2))
        e("s_add_u32 %s, %s, %d", s(S_T1), s(S_T1), first)
        e("s_lshl_b32 %s, %s, 13", s(S_T1), s(S_T1))
        e("s_lshl_b32 %s, %s, 10", s(S_T2), s(S_HG))
        e("s_add_u32 %s, %s, %s", s(S_T1), s(S_T1), s(S_T2))
        e("v_lshrrev_b32 %s, 3, %s", v(A), L)
        e("v_lshlrev_b32 %s, 13, %s", v(A), v(A))
        e("v_and_b32 %s, 7, %s", v(B_), L)
        e("v_lshl_add_u32 %s, %s, 7, %s", v(A), v(B_), v(A))
        m = (1 << (8 * nrow)) - 1
        e("s_mov_b32 exec_lo, 0x%x\ns_mov_b32 exec_hi, 0x%x", m & 0xffffffff, m >> 32)
        e("buffer_load_dword v15, %s, %s, %s offen", v(A), s(S_WQ, 4), s(S_T1)); e.vm.issue("xt")
        e("s_mov_b64 exec, -1")
    if o.get("cpf"):
        e("s_getpc_b64 s[62:63]")
        e.label("L_pc")
        e("s_sub_u32 s62, s62, L_pc-%s", NAME)
        e("s_subb_u32 s63, s63, 0")
        e("s_lshl_b32 %s, %s, 6", s(S_T0), s(S_W))
        e("v_add_u32 v12, %s, %s", s(S_T0), v(V_LANE))
        e("v_lshlrev_b32 v12, 7, v12")
        e("v_min_u32 v12, L_end-%s, v12", NAME)
        e("global_load_dword v15, v12, s[62:63]"); e.vm.issue("cpf")
    if o.get("xw") and not o.get("xw_b"): xw_touch()
    if o.get("eplate"): ep()
    addr_rest(e)
    if o.get("wot_pro"):
        for f in grp_touch(e, "wo"): f()
    if o.get("kt_pro"):
        for f in grp_touch(e, "K"): f()
    if o.get("tlb"):
        e("s_lshl_b32 %s, %s, 2", s(S_T0), s(S_RP))
        e("s_add_u32 %s, %s, %s", s(S_T0), s(S_T0), s(S_CS))
        e("s_mul_i32 %s, %s, %d", s(S_T0), s(S_T0), 64 * 5120)
        e("s_add_u32 %s, %s, 0x%x", s(S_T0), s(S_T0), WS_PART)
        e("s_mul_i32 %s, %s, %d", s(S_T1), s(S_RP), 128 * 1280)
        e("s_mov_b64 exec, 1")
        e("v_mov_b32 v14, 0")
        for (srd, so) in ((S_WS, S_OB), (S_WS, S_T0), (S_OUT, S_T1), (S_K, S_KV0), (S_V, S_KV0), (S_WO, S_WOB)):
            e("buffer_load_dword v15, v14, %s, %s offen", s(srd, 4), s(so)); e.vm.issue("tlb")
        e("s_mov_b64 exec, -1")
    LK = 4 if o.get("look4") else (3 if o.get("look3") else 2)
    for st in range(2, LK):
        for f in grp_stage(e, st): f()
    e.waitv("st0")
    e.bar()
    e.stamp()
    for r in g1_reads(0): e(r)
    if LK > 2:
        assert LK < 4 or not o.get("softb")
        plan = {b: grp_stage(e, b + LK + 1) for b in range(-1, 9 - LK)}
        plan[9 - LK] = grp_kv(e, "K"); plan[10 - LK] = grp_kv(e, "V")
        for b in range(11 - LK, 9): plan.setdefault(b, [])
    else:
        plan = {b: grp_stage(e, b + 3) for b in range(-1, 7)}
        plan[7] = grp_kv(e, "K") + (grp_touch(e, "V") if o.get("vt") else [])
    def ftouch():
        L = v(V_LANE); A, B_ = 12, 13
        e("s_lshr_b32 %s, %s, 1", s(S_T0), s(S_RP))
        e("s_add_u32 %s, %s, %s", s(S_T0), s(S_T0), s(S_CS))
        e("s_add_u32 %s, %s, 6", s(S_T0), s(S_T0))
        e("s_cmp_ge_u32 %s, 10", s(S_T0))
        e("s_cselect_b32 %s, 10, 0", s(S_T1))
        e("s_sub_u32 %s, %s, %s", s(S_T0), s(S_T0), s(S_T1))
        e("s_lshl_b32 %s, %s, 7", s(S_T0), s(S_T0))
        e("s_add_u32 %s, %s, %s", s(S_T0), s(S_T0), s(S_X0))
        e("v_and_b32 %s, 31, %s", v(A), L)
        e("v_mul_u32_u24 %s, 1280, %s", v(A), v(A))
        e("s_mov_b32 exec_hi, 0")
        e("buffer_load_dword v15, %s, %s, %s offen", v(A), s(S_X, 4), s(S_T0)); e.vm.issue("ft")
        e("s_lshr_b32 %s, %s, 1", s(S_T0), s(S_CS))
        e("s_mul_i32 %s, %s, 3", s(S_T0), s(S_T0))
        e("s_min_u32 %s, %s, 5", s(S_T1), s(S_RP))
        e("s_add_u32 %s, %s, %s", s(S_T0), s(S_T0), s(S_T1))
        e("s_add_u32 %s, %s, 4", s(S_T0), s(S_T0))
        e("s_cmp_ge_u32 %s, 10", s(S_T0))
        e("s_cselect_b32 %s, 10, 0", s(S_T1))
        e("s_sub_u32 %s, %s, %s", s(S_T0), s(S_T0), s(S_T1))
        e("s_lshl_b32 %s, %s, 19", s(S_T0), s(S_T0))
        e("s_add_u32 %s, %s, %s", s(S_T0), s(S_T0), s(S_WQ0))
        e("v_lshrrev_b32 %s, 1, %s", v(A), L)
        e("v_lshlrev_b32 %s, 13, %s", v(A), v(A))
        e("v_and_b32 %s, 1, %s", v(B_), L)
        e("v_lshl_add_u32 %s, %s, 7, %s", v(A), v(B_), v(A))
        e("buffer_load_dword v15, %s, %s, %s offen", v(A), s(S_WQ, 4), s(S_T0)); e.vm.issue("ft")
        e("s_mov_b64 exec, -1")
    if "ft_b" in o:
        b_ = int(o["ft_b"]); plan[b_] = [ftouch] + plan[b_]
    if o.get("xw") and o.get("xw_b"):
        b_ = int(o["xw_b"]); plan[b_] = [xw_touch] + plan[b_]
    if "kt_b" in o:
        b_ = int(o["kt_b"]); plan[b_] = grp_touch(e, "K") + plan[b_]
    if "vt_b" in o:
        b_ = int(o["vt_b"]); plan[b_] = grp_touch(e, "V") + plan[b_]
    if "wot_b" in o:
        b_ = int(o["wot_b"]); plan[b_] = plan[b_] + grp_touch(e, "wo")
    plan[8] = ([] if LK > 2 else grp_kv(e, "V")) + (grp_touch(e, "wo") if o.get("wot") else [])
    plan[9] = grp_wo(e, 0) + grp_wo(e, 1) + (grp_touch(e, "wo") if o.get("wot2") else [])
    if o.get("schedB"): plan[9] = []
    if o.get("woshift"):
        assert LK == 3 and o.get("schedA") and o.get("schedC")
        plan[8] = plan[8] + grp_wo(e, 0)
        plan[9] = grp_wo(e, 1) + grp_wo(e, 2)
    pending = list(plan[-1])
    NK = 40
    for ks in range(NK):
        st, s4, b = ks >> 2, ks & 3, ks & 1
        last = ks == NK - 1
        boundary = (s4 == 3)
        nxt = g1_reads(ks + 1) if not last else []
        if boundary:
            if e.skip_dma and st == 2: e.waitv("ep")
            soft = o.get("softb") and not last
            e.waitv("st%d" % (st + 1) if not last else "K", "" if soft else " lgkmcnt(0)")
            e.bar()
            e.stamp("g1")
            pending += plan[st]
        if last:
            nxt = [kread_text(kt, st_, 2 * st_ + kt) for st_ in range(2) for kt in range(2)]
        left = 3 - ((ks + 1) & 3) + 1 if ks >= 3 else 3 - ks
        want = 0 if last else -(-len(pending) // max(1, left))
        slots = {1: (1,), 2: (1, 3), 3: (1, 2, 3)}.get(min(want, 3), ())
        for t in range(4):
            if not boundary or (o.get("softb") and not last):
                if o.get("w2"):
                    if t in (0, 2): e("s_waitcnt lgkmcnt(%d)", {0: 4, 2: 6}[t])
                else: e("s_waitcnt lgkmcnt(%d)", [6, 7, 8, 9][t])
            c = "0" if ks == 0 else v(V_ACC + 16 * t, 16)
            e("v_mfma_f32_32x32x16_bf16 %s, %s, %s, %s", v(V_ACC + 16 * t, 16), v(V_A + 16 * b + 4 * t, 4), v(V_B + 4 * b, 4), c)
            if t < 3:
                for r in nxt[3 * t:3 * t + 3]: e(r)
            if t in slots: pop(pending, 1)
    e.pending = pending
    e.stamp()

def loader(e):
    o = e.o
    nbar_main = e.nbar
    e.skip_dma = False; e.vm = Cnt(); e.nbar = 0
    e.label("L_loader")
    if o.get("ldr_prio"): e("s_setprio %d" % int(o["ldr_prio"]))
    e("s_waitcnt lgkmcnt(0)")
    def run(fs):
        for f in fs: f()
    run(grp_stage(e, 0)); run(grp_stage(e, 1))
    addr_rest(e)
    e.waitv("st0"); e.bar()
    for b in range(-1, 7):
        run(grp_stage(e, b + 3))
        e.waitv("st%d" % (b + 2)); e.bar()
    run(grp_kv(e, "K")); e.waitv("st9"); e.bar()
    run(grp_kv(e, "V"))
    if o.get("wot"): run(grp_touch(e, "wo"))
    e.waitv("K"); e.bar()
    w0 = grp_wo(e, 0)
    n0 = int(o.get("pre_v", 2))
    run(w0[:n0])
    e.waitv("V"); e.bar()
    run(w0[n0:])
    npv = int(o.get("pre_pv", 3))
    for st_ in range(1, npv): run(grp_wo(e, st_))
    e.waitv("wo1"); e.bar()
    for st_ in range(npv, 8): run(grp_wo(e, st_))
    e("s_waitcnt vmcnt(0)"); e.bar()
    assert e.nbar == nbar_main, (e.nbar, nbar_main)
    e("s_endpgm")

def kread_text(kt, st_, buf):
    return "ds_read_b128 %s, %s offset:%d" % (v(V_A + 4 * buf, 4), v(V_RK + st_), L_K + kt * 8192)

def attention(e):
    lg = e.lg; pending = e.pending
    e.jitter(1)
    for st_ in range(2):
        for kt in range(2): lg.issue("k%d_%d" % (st_, kt))
    def kread(kt, st_, buf): e.ds(kread_text(kt, st_, buf), "k%d_%d" % (st_, kt))
    def qcvt(t):
        for u in range(2):
            for d in range(4):
                r0 = V_ACC + 16 * t + 8 * u + 2 * d
                e("v_cvt_pk_bf16_f32 %s, %s, %s", v(V_Q + 8 * t + 4 * u + d), v(r0), v(r0 + 1))
    for st_ in range(2, 4):
        for kt in range(2): kread(kt, st_, 2 * st_ + kt)
    e("s_nop 4")
    qcvt(0); qcvt(1); qcvt(2)
    e("s_nop 1")
    for st_ in range(8):
        if st_ == 2: qcvt(3); e("s_nop 0")
        for kt in range(2):
            buf = (2 * st_ + kt) % 8
            e.waitl("k%d_%d" % (st_, kt))
            c = "0" if st_ == 0 else v(V_S + 16 * kt, 16)
            e("v_mfma_f32_32x32x16_bf16 %s, %s, %s, %s", v(V_S + 16 * kt, 16), v(V_A + 4 * buf, 4), v(V_Q + 4 * st_, 4), c)
            if st_ < 4: kread(kt, st_ + 4, buf)
            if pending: pending.pop(0)()
    schedB = e.o.get("schedB")
    def vreads(t, st_, buf):
        for j in range(2):
            e.ds("ds_read_b64_tr_b16 %s, %s offset:%d" % (v(V_A + 4 * buf + 2 * j, 2), v(V_RV + t), st_ * 4096 + j * 2048), "v%d_%d" % (st_, t))
    def vbarrier():
        e.waitv("V")
        e.bar()
        if e.o.get("pvt"):
            for t in range(2):
                for st_ in range(4): vreads(t, st_, 4 * t + st_)
        else:
            for st_ in range(2):
                for t in range(4): vreads(t, st_, 4 * st_ + t)
    if not schedB: vbarrier()
    else: e("s_nop 7\ns_nop 3")
    e.stamp()
    assert not pending
    S = V_S; M, M2, SUM, SUM2 = V_TM, V_TM + 1, V_TM + 2, V_TM + 4
    e("v_max3_f32 %s, %s, %s, %s", v(M), v(S), v(S + 1), v(S + 2))
    e("v_max3_f32 %s, %s, %s, %s", v(M2), v(S + 3), v(S + 4), v(S + 5))
    for i in range(6, 16, 4):
        e("v_max3_f32 %s, %s, %s, %s", v(M), v(M), v(S + i), v(S + i + 1))
        if i + 2 < 16: e("v_max3_f32 %s, %s, %s, %s", v(M2), v(M2), v(S + i + 2), v(S + i + 3))
    for i in range(16, 32, 4):
        e("v_max3_f32 %s, %s, %s, %s", v(M), v(M), v(S + i), v(S + i + 1))
        e("v_max3_f32 %s, %s, %s, %s", v(M2), v(M2), v(S + i + 2), v(S + i + 3))
    e("v_max_f32 %s, %s, %s", v(M), v(M), v(M2))
    e("v_mov_b32 %s, %s", v(M2), v(M))
    e("s_mov_b32 %s, 0x%08x", s(S_T1), f32bits(SCALE_LOG2E))
    e("s_nop 0")
    e("v_permlane32_swap_b32 %s, %s", v(M), v(M2))
    e("s_nop 0")
    e("v_max_f32 %s, %s, %s", v(M), v(M), v(M2))
    e("v_mul_f32 %s, %s, %s", v(M), s(S_T1), v(M))
    pk = e.o.get("pk")
    if pk:
        e("s_mov_b32 s62, %s", s(S_T1)); e("s_mov_b32 s63, %s", s(S_T1))
        for i in range(0, 32, 2):
            e("v_pk_fma_f32 %s, %s, s[62:63], %s op_sel_hi:[1,1,0] neg_lo:[0,0,1] neg_hi:[0,0,1]", v(S + i, 2), v(S + i, 2), v(M, 2))
    else:
        for i in range(32):
            e("v_fma_f32 %s, %s, %s, -%s", v(S + i), v(S + i), s(S_T1), v(M))
    sm = (grp_wo(e, 2) + grp_wo(e, 3)) if e.o.get("schedA") and not schedB else []
    if e.o.get("woshift"): sm = grp_wo(e, 3) + grp_wo(e, 4)
    for i in range(32):
        e("v_exp_f32 %s, %s", v(S + i), v(S + i))
        if i % 3 == 2: pop(sm, 1)
    assert not sm
    if schedB and not e.o.get("vlate"):
        vbarrier()
        sm = grp_wo(e, 0) + grp_wo(e, 1)
    e("s_nop 0")
    if pk:
        e("v_pk_add_f32 %s, %s, %s", v(SUM, 2), v(S, 2), v(S + 2, 2))
        e("v_pk_add_f32 %s, %s, %s", v(SUM2, 2), v(S + 4, 2), v(S + 6, 2))
        for i in range(8, 32, 4):
            e("v_pk_add_f32 %s, %s, %s", v(SUM, 2), v(SUM, 2), v(S + i, 2))
            e("v_pk_add_f32 %s, %s, %s", v(SUM2, 2), v(SUM2, 2), v(S + i + 2, 2))
        e("v_pk_add_f32 %s, %s, %s", v(SUM, 2), v(SUM, 2), v(SUM2, 2))
        e("v_add_f32 %s, %s, %s", v(SUM), v(SUM), v(SUM + 1))
    else:
        e("v_add_f32 %s, %s, %s", v(SUM), v(S), v(S + 1))
        e("v_add_f32 %s, %s, %s", v(SUM + 1), v(S + 2), v(S + 3))
        e("v_add_f32 %s, %s, %s", v(SUM2), v(S + 4), v(S + 5))
        e("v_add_f32 %s, %s, %s", v(SUM2 + 1), v(S + 6), v(S + 7))
        for i in range(8, 32, 4):
            e("v_add_f32 %s, %s, %s", v(SUM), v(SUM), v(S + i))
            e("v_add_f32 %s, %s, %s", v(SUM + 1), v(SUM + 1), v(S + i + 1))
            e("v_add_f32 %s, %s, %s", v(SUM2), v(SUM2), v(S + i + 2))
            e("v_add_f32 %s, %s, %s", v(SUM2 + 1), v(SUM2 + 1), v(S + i + 3))
        e("v_add_f32 %s, %s, %s", v(SUM), v(SUM), v(SUM + 1))
        e("v_add_f32 %s, %s, %s", v(SUM2), v(SUM2), v(SUM2 + 1))
        e("v_add_f32 %s, %s, %s", v(SUM), v(SUM), v(SUM2))
    e("v_mov_b32 %s, %s", v(SUM2), v(SUM))
    e("s_nop 1")
    e("v_permlane32_swap_b32 %s, %s", v(SUM), v(SUM2))
    e("s_nop 0")
    e("v_add_f32 %s, %s, %s", v(SUM), v(SUM), v(SUM2))
    e("v_rcp_f32 %s, %s", v(SUM), v(SUM))
    e("s_nop 0")
    if pk:
        for i in range(0, 32, 2):
            e("v_pk_mul_f32 %s, %s, %s op_sel_hi:[1,0]", v(S + i, 2), v(S + i, 2), v(SUM, 2))
            if i % 4 == 2: pop(sm, 1)
    else:
        for i in range(32):
            e("v_mul_f32 %s, %s, %s", v(S + i), v(S + i), v(SUM))
            if i % 4 == 3: pop(sm, 1)
    for f in range(4):
        for d in range(4):
            r0 = S + 8 * f + 2 * d
            e("v_cvt_pk_bf16_f32 %s, %s, %s", v(V_P + 4 * f + d), v(r0), v(r0 + 1))
    if schedB and e.o.get("vlate"):
        vbarrier()
        sm = grp_wo(e, 0) + grp_wo(e, 1)
    e.stamp()
    e.jitter(2)
    pv = (grp_wo(e, 4) + grp_wo(e, 5)) if e.o.get("schedA") and not e.o.get("schedC") else []
    if schedB: pv = sm + ([] if e.o.get("schedD") else grp_wo(e, 2) + grp_wo(e, 3))
    e("v_readlane_b32 %s, %s, 0", s(S_N1), v(V_EP))
    e("v_readlane_b32 %s, %s, 1", s(S_N2), v(V_EP))
    e("s_lshl_b32 %s, %s, 13", s(S_OS0), s(S_CS))
    e("s_add_u32 %s, %s, %s", s(S_OS0), s(S_OS0), s(S_OB))
    e("s_add_u32 %s, %s, 1", s(S_N1), s(S_N1))
    e("s_add_u32 %s, %s, 1", s(S_N2), s(S_N2))
    e("s_add_u32 %s, %s, 4096", s(S_OS1), s(S_OS0))
    def ostore(t):
        for u in range(2):
            for d in range(4):
                r0 = V_ACC + 16 * t + 8 * u + 2 * d
                e("v_cvt_pk_bf16_f32 %s, %s, %s", v(V_Q + 8 * t + 4 * u + d), v(r0), v(r0 + 1))
            f = 2 * t + u
            e("buffer_store_dwordx4 %s, %s, %s, %s offen offset:%d %s", v(V_Q + 4 * f, 4), v(V_LIN), s(S_WS, 4), s(S_OS0 if f < 4 else S_OS1), (f % 4) * 1024, (str(e.o.get("fastO")).replace("True", "").replace("_", " ")) if e.o.get("fastO") else "sc1")
            e.vm.issue("ost")
    if e.o.get("pvt"):
        for t in range(4):
            for st_ in range(4):
                n = 4 * t + st_
                e.waitl("v%d_%d" % (st_, t))
                c = "0" if st_ == 0 else v(V_ACC + 16 * t, 16)
                e("v_mfma_f32_32x32x16_bf16 %s, %s, %s, %s", v(V_ACC + 16 * t, 16), v(V_A + 4 * (n % 8), 4), v(V_P + 4 * st_, 4), c)
                if t < 2: vreads(t + 2, st_, n % 8)
                pop(pv, 1)
            if t >= 1:
                if t == 3: e("s_nop 3")
                if t == 2: e("s_nop 3")
                ostore(t - 1)
        e("s_nop 3")
        ostore(3)
    else:
        for st_ in range(4):
            for t in range(4):
                buf = (4 * st_ + t) % 8
                e.waitl("v%d_%d" % (st_, t))
                c = "0" if st_ == 0 else v(V_ACC + 16 * t, 16)
                e("v_mfma_f32_32x32x16_bf16 %s, %s, %s, %s", v(V_ACC + 16 * t, 16), v(V_A + 4 * buf, 4), v(V_P + 4 * st_, 4), c)
                if st_ < 2: vreads(t, st_ + 2, buf)
                pop(pv, 1)
        e("s_nop 7\ns_nop 1")
        for t in range(4): ostore(t)
    assert not pv
    e.stamp()

def p2_reads(lg_):
    b = lg_ & 1
    pg = (13 + lg_) % 32
    base, rel = (0, pg) if pg < 13 else ((1, pg - 13) if pg < 25 else (2, pg - 25))
    return ["ds_read_b64_tr_b16 %s, %s offset:%d" % (v(V2_A + 20 * b + 4 * nt + 2 * j, 2), v(V_RWO + base), rel * 5120 + 8 * j * 320 + 64 * nt)
            for nt in range(5) for j in range(2)]

def poll(e, label, vaddr, nonce, nlanes):
    P = int(e.o.get("ppoll", 0))
    if P > 1:
        e("s_mov_b64 exec, 0x%x", (1 << nlanes) - 1)
        e("s_mov_b32 %s, 0", s(S_SPIN))
        e("s_waitcnt vmcnt(0)")
        for k in range(P):
            e("buffer_load_dword %s, %s, %s, 0 offen sc1", v(V_T + 8 + k), v(vaddr), s(S_WS, 4))
            if k < P - 1: e("s_sleep %d", int(e.o.get("pgap", 2)))
        e.label(label)
        for k in range(P):
            e("s_waitcnt vmcnt(%d)", P - 1)
            e("v_cmp_ne_u32 vcc, %s, %s", s(nonce), v(V_T + 8 + k))
            e("s_add_u32 %s, %s, 1", s(S_SPIN), s(S_SPIN))
            e("s_cmp_ge_u32 %s, 0x%x", s(S_SPIN), 1 << 18)
            e("s_cbranch_scc1 %s_done", label)
            e("s_cbranch_vccz %s_done", label)
            e("buffer_load_dword %s, %s, %s, 0 offen sc1", v(V_T + 8 + k), v(vaddr), s(S_WS, 4))
        e("s_branch %s", label)
        e.label(label + "_done")
        e("s_mov_b64 exec, -1")
        e.vm.ops = ["poll"] * P
        return
    e("s_mov_b64 exec, 0x%x", (1 << nlanes) - 1)
    e("s_mov_b32 %s, 0", s(S_SPIN))
    e.label(label)
    e("buffer_load_dword %s, %s, %s, 0 offen sc1", v(V_T + 8), v(vaddr), s(S_WS, 4))
    e("s_waitcnt vmcnt(0)")
    e("v_cmp_ne_u32 vcc, %s, %s", s(nonce), v(V_T + 8))
    e("s_add_u32 %s, %s, 1", s(S_SPIN), s(S_SPIN))
    e("s_cmp_ge_u32 %s, 0x%x", s(S_SPIN), 1 << 20)
    e("s_cbranch_scc1 %s_done", label)
    if e.o.get("psleep"):
        e("s_cbranch_vccz %s_done", label)
        e("s_sleep %d", int(e.o["psleep"]))
        e("s_branch %s", label)
    else:
        e("s_cbranch_vccnz %s", label)
    e.label(label + "_done")
    e("s_mov_b64 exec, -1")
    e.vm.issue("poll"); e.vm.ops = ["poll"]

def phase2(e):
    T = V_T; L = v(V_LANE)
    e.waitv("wo1")
    e.bar()
    for r in p2_reads(0): e(r)
    e("s_lshr_b32 %s, %s, 15", s(S_T2), s(S_OB))
    e("s_lshl_b32 %s, %s, 9", s(S_T2), s(S_T2))
    e("s_add_u32 %s, %s, 0x%x", s(S_T2), s(S_T2), WS_F1)
    e("v_and_b32 %s, 3, %s", v(T), L)
    e("v_lshlrev_b32 %s, 7, %s", v(T), v(T))
    e("v_add_u32 %s, %s, %s", v(V_TM + 6), s(S_T2), v(T))
    e("s_lshl_b32 %s, %s, 7", s(S_T1), s(S_CS))
    e("s_add_u32 %s, %s, %s", s(S_T2), s(S_T2), s(S_T1))
    e("v_mov_b32 %s, %s", v(V_TM + 7), s(S_T2))
    e("v_mov_b32 %s, %s", v(V_TM + 8), s(S_N1))
    early = e.o.get("woearly") or e.o.get("schedA") or e.o.get("schedB")
    schedA = e.o.get("schedA") or e.o.get("schedB")
    flag_at = int(e.o.get("flag_at", 8))
    pending = [] if schedA else grp_wo(e, 2) + grp_wo(e, 3) + ([] if early else grp_wo(e, 4))
    if e.o.get("schedB") or e.o.get("schedC"): pending = grp_wo(e, 4) + grp_wo(e, 5)
    if e.o.get("schedD"): pending = grp_wo(e, 2) + grp_wo(e, 3) + grp_wo(e, 4) + grp_wo(e, 5)
    if e.o.get("woshift"): pending = grp_wo(e, 5)
    held = []
    if e.o.get("woafter"): held, pending = pending, []
    def kstep(ks, bsrc, nxt, first):
        b = ks & 1
        for nt in range(5):
            issued_new = min(len(nxt), [0, 3, 6, 8, 10][nt])
            if e.o.get("w2"):
                if nt in (0, 2, 4): e("s_waitcnt lgkmcnt(%d)", min(15, 2 * (4 - min(4, nt + 1)) + issued_new))
            else: e("s_waitcnt lgkmcnt(%d)", min(15, 2 * (4 - nt) + issued_new))
            c = "0" if first else v(V2_ACC + 16 * nt, 16)
            e("v_mfma_f32_32x32x16_bf16 %s, %s, %s, %s", v(V2_ACC + 16 * nt, 16), v(V2_A + 20 * b + 4 * nt, 4), bsrc, c)
            lo, hi = [(0, 3), (3, 6), (6, 8), (8, 10), (10, 10)][nt]
            for r in nxt[lo:hi]: e(r)
            if nt >= 2: pop(pending, 1)
    def publish():
        e.jitter(3)
        e.waitv("ost")
        e("s_mov_b64 exec, 1")
        e("buffer_store_dword %s, %s, %s, 0 offen %s", v(V_TM + 8), v(V_TM + 7), s(S_WS, 4), "" if e.o.get("fastO") else "sc1"); e.vm.issue("f1")
        e("s_mov_b64 exec, -1")
    if schedA and e.o.get("wo67first"): pending += grp_wo(e, 6) + grp_wo(e, 7)
    for ks in range(8):
        if ks == flag_at:
            publish()
            pending += held
            if schedA and not e.o.get("wo67first") and not e.o.get("late67") and not e.o.get("r2split"): pending += grp_wo(e, 6) + grp_wo(e, 7)
        kstep(ks, v(V_Q + 4 * ks, 4), p2_reads(ks + 1) if ks < 7 else [], ks == 0)
    e.stamp()
    if flag_at >= 8:
        publish()
        if schedA and not e.o.get("wo67first") and not e.o.get("late67"): pending += grp_wo(e, 6) + grp_wo(e, 7)
    pop(pending, len(pending))
    tile = e.o.get("tile") or e.o.get("tile2")
    if tile: tail_addresses(e)
    if early and not schedA:
        for st_ in range(4, 8): pop(grp_wo(e, st_), 5)
    if e.o.get("barpre"):
        e("s_waitcnt vmcnt(0)")
        e.bar()
    e.stamp("p2")
    poll(e, "L_poll1", V_TM + 6, S_N1, 4)
    e.stamp()
    e("s_or_b32 %s, %s, %s", s(S_T0), s(S_CS), s(S_W))
    e("s_cmp_lg_u32 %s, 0", s(S_T0))
    e("s_cbranch_scc1 L_noe1")
    e("s_lshr_b32 %s, %s, 17", s(S_T0), s(S_OB))
    e("s_lshl_b32 %s, %s, 7", s(S_T0), s(S_T0))
    e("s_add_u32 %s, %s, 0x%x", s(S_T0), s(S_T0), WS_E1)
    e("v_mov_b32 v8, %s", s(S_T0))
    e("s_mov_b64 exec, 1")
    e("buffer_store_dword %s, v8, %s, 0 offen sc1", v(V_TM + 8), s(S_WS, 4))
    e("s_mov_b64 exec, -1")
    e.label("L_noe1")
    for j in range(1, 4):
        e("s_add_u32 %s, %s, %d", s(S_T0), s(S_CS), j)
        e("s_and_b32 %s, %s, 3", s(S_T0), s(S_T0))
        e("s_lshl_b32 %s, %s, 13", s(S_T0), s(S_T0))
        e("s_add_u32 %s, %s, %s", s(S_OBR + 2 * (j - 1)), s(S_T0), s(S_OB))
        e("s_add_u32 %s, %s, 4096", s(S_OBR + 2 * (j - 1) + 1), s(S_OBR + 2 * (j - 1)))
    def oload(j):
        def g(f):
            def h():
                n = 8 * (j - 1) + f
                e("buffer_load_dwordx4 %s, %s, %s, %s offen offset:%d %s", v(V_RO[n], 4), v(V_LIN), s(S_WS, 4), s(S_OBR + 2 * (j - 1) + (f >> 2)), (f % 4) * 1024, "" if e.o.get("plainOL") else "sc1")
                e.vm.issue("o%d" % n)
            return h
        return [g(f) for f in range(8)]
    e.jitter(4)
    pop(oload(1), 8)
    e.stamp("p2")
    if not e.o.get("barpre"): e.bar()
    e.stamp("p2")
    if e.o.get("r2split"): pending += oload(2)
    elif e.o.get("late67"): pending += oload(2) + grp_wo(e, 6) + oload(3) + grp_wo(e, 7)
    else: pending += (oload(2) + oload(3)) if early else (grp_wo(e, 5) + oload(2) + grp_wo(e, 6) + oload(3) + grp_wo(e, 7))
    for r in p2_reads(8): e(r)
    if tile and e.o.get("r2split"):
        for ks in range(8, 24):
            if ks == 16: pending += grp_wo(e, 6) + oload(3) + grp_wo(e, 7) if e.o.get("r2order") == "a" else oload(3) + grp_wo(e, 6) + grp_wo(e, 7)
            e.waitv("o%d" % (ks - 8))
            if ks == 23:
                pop(pending, len(pending))
                e.waitv("wo7"); e.bar()
            nxt = p2_reads(ks + 1) if ks < 23 else [r for q in range(5) for r in a_read(0, 24 + q, V2_A + 4 * q)]
            kstep(ks, v(V_RO[ks - 8], 4), nxt, False)
        assert not pending
        e.stamp("fine")
        remote_tiles(e, kstep, 24)
        return
    if tile:
        assert early
        for ks in range(8, 16):
            e.waitv("o%d" % (ks - 8))
            if ks in (8, 12): e.stamp("p2")
            nxt = p2_reads(ks + 1) if ks < 15 else [r for q in range(5) for r in a_read(0, 16 + q, V2_A + 4 * q)]
            kstep(ks, v(V_RO[ks - 8], 4), nxt, False)
        if e.o.get("late67"):
            pop(pending, len(pending))
            e.waitv("wo7"); e.bar()
        assert not pending
        e.stamp("fine")
        remote_tiles(e, kstep)
        return
    for ks in range(8, 32):
        n = ks - 8
        if ks in (19, 23, 27) and not early:
            e.waitv(["wo%d" % (5 + (ks - 19) // 4), "o%d" % n])
            e.bar()
        else:
            e.waitv("o%d" % n)
        kstep(ks, v(V_RO[n], 4), p2_reads(ks + 1) if ks < 31 else [], False)
    assert not pending
    e.stamp()

def tail_addresses(e):
    L = v(V_LANE); A, B, C = 8, 9, 11
    e("v_bfe_u32 %s, %s, 4, 1", v(A), L)
    e("v_mul_u32_u24 %s, %d, %s", v(A), 8 * 10 * 512, v(A))
    e("v_and_b32 %s, 15, %s", v(B), L)
    e("v_lshrrev_b32 %s, 5, %s", v(C), L)
    e("v_lshl_add_u32 %s, %s, 4, %s", v(V_PA), v(C), v(B))
    e("v_lshl_add_u32 %s, %s, 4, %s", v(V_PA), v(V_PA), v(A))
    e("s_lshl_b32 %s, %s, 2", s(S_T0), s(S_RP))
    e("s_add_u32 %s, %s, %s", s(S_T0), s(S_T0), s(S_CS))
    e("s_lshl_b32 %s, %s, 3", s(S_PB), s(S_T0))
    e("s_lshl_b32 %s, %s, 1", s(S_T1), s(S_W))
    e("s_add_u32 %s, %s, %s", s(S_T1), s(S_PB), s(S_T1))
    e("s_lshl_b32 %s, %s, 3", s(S_T1), s(S_T1))
    e("s_add_u32 %s, %s, %s", s(S_T1), s(S_T1), s(S_HG))
    e("s_mul_i32 %s, %s, %d", s(S_T1), s(S_T1), 10 * 512)
    e("s_add_u32 %s, %s, 0x%x", s(S_PS0), s(S_T1), WS_PART)
    e("s_add_u32 %s, %s, 4096", s(S_PS1), s(S_PS0))
    e("s_lshl_b32 %s, %s, 2", s(S_T0), s(S_T0))
    e("s_add_u32 %s, %s, %s", s(S_T3), s(S_T0), s(S_W))
    e("s_lshl_b32 %s, %s, 3", s(S_T3), s(S_T3))
    e("s_add_u32 %s, %s, %s", s(S_T3), s(S_T3), s(S_HG))
    e("s_lshl_b32 %s, %s, 7", s(S_T3), s(S_T3))
    e("s_add_u32 %s, %s, 0x%x", s(S_T3), s(S_T3), WS_F2)
    e("v_mov_b32 %s, %s", v(V_F2O), s(S_T3))
    e("s_lshr_b32 %s, %s, 1", s(S_T3), s(S_HG))
    e("s_add_u32 %s, %s, %s", s(S_T3), s(S_T0), s(S_T3))
    e("s_lshl_b32 %s, %s, 10", s(S_T3), s(S_T3))
    e("s_add_u32 %s, %s, 0x%x", s(S_T3), s(S_T3), WS_F2)
    if e.o.get("tile2"):
        e("s_lshr_b32 %s, %s, 1", s(S_T2), s(S_W))
        e("s_lshl_b32 %s, %s, 17", s(S_T2), s(S_T2))
        e("s_add_u32 %s, %s, %s", s(S_T3), s(S_T3), s(S_T2))
    e("v_and_b32 %s, 7, %s", v(A), L)
    e("v_lshlrev_b32 %s, 7, %s", v(A), v(A))
    e("v_add_u32 %s, %s, %s", v(V_F2P), s(S_T3), v(A))
    e("v_mov_b32 %s, %s", v(V_N2V), s(S_N2))
    e("v_mul_u32_u24 %s, 5120, %s", v(A), v(C))
    e("v_and_b32 %s, 31, %s", v(B), L)
    e("v_lshl_add_u32 %s, %s, 4, %s", v(V_P3L), v(B), v(A))
    e("s_add_u32 %s, %s, %s", s(S_T0), s(S_PB), s(S_HG))
    e("s_mul_i32 %s, %s, %d", s(S_T0), s(S_T0), 8 * 5120)
    e("s_add_u32 %s, %s, 0x%x", s(S_T0), s(S_T0), WS_PART)
    e("s_mul_i32 %s, %s, 3", s(S_T1), s(S_W))
    e("s_cmp_eq_u32 %s, 3", s(S_W))
    e("s_cselect_b32 %s, 8, %s", s(S_T1), s(S_T1))
    e("s_lshl_b32 %s, %s, 9", s(S_T2), s(S_T1))
    e("s_add_u32 %s, %s, %s", s(S_P3B), s(S_T0), s(S_T2))
    e("v_and_b32 %s, 15, %s", v(A), L)
    e("v_mul_u32_u24 %s, 1280, %s", v(A), v(A))
    e("v_bfe_u32 %s, %s, 4, 1", v(B), L)
    e("v_lshl_add_u32 %s, %s, 3, %s", v(A), v(B), v(A))
    e("v_lshl_add_u32 %s, %s, 4, %s", v(V_OUT), v(C), v(A))
    e("s_lshl_b32 %s, %s, 3", s(S_T2), s(S_RP))
    e("s_add_u32 %s, %s, %s", s(S_T2), s(S_T2), s(S_HG))
    e("s_mul_i32 %s, %s, %d", s(S_T2), s(S_T2), 16 * 1280)
    e("s_mul_i32 %s, %s, 320", s(S_T3), s(S_CS))
    e("s_add_u32 %s, %s, %s", s(S_T2), s(S_T2), s(S_T3))
    e("s_lshl_b32 %s, %s, 5", s(S_T1), s(S_T1))
    e("s_add_u32 %s, %s, %s", s(S_OUTB), s(S_T2), s(S_T1))

def pack_store(e, nt, m, tag):
    ch = 2 * nt + m
    pk = 168 + 8 * (nt % 4) + 4 * m
    for d in range(4):
        r0 = V2_ACC + 16 * nt + 8 * m + 2 * d
        e("v_cvt_pk_bf16_f32 %s, %s, %s", v(pk + d), v(r0), v(r0 + 1))
    e("buffer_store_dwordx4 %s, %s, %s, %s offen offset:%d sc1", v(pk, 4), v(V_PA), s(S_WS, 4), s(S_PS0 if ch < 8 else S_PS1), (ch % 8) * 512)
    e.vm.issue(tag)

def a_read(nt, lg_, reg):
    pg = (13 + lg_) % 32
    base, rel = (0, pg) if pg < 13 else ((1, pg - 13) if pg < 25 else (2, pg - 25))
    return ["ds_read_b64_tr_b16 %s, %s offset:%d" % (v(reg + 2 * j, 2), v(V_RWO + base), rel * 5120 + 8 * j * 320 + 64 * nt) for j in range(2)]

def p3_loads(e, nch):
    for c in range(nch):
        for i in range(4):
            e("s_add_u32 %s, %s, %d", s(S_OFF), s(S_P3B), 2 * i * 5120 + c * 512)
            e("buffer_load_dwordx4 %s, %s, %s, %s offen sc1", v(64 + 16 * c + 4 * i, 4), v(V_P3L), s(S_WS, 4), s(S_OFF))

def p3_reduce(e, c):
    r = 64 + 16 * c; acc = 128 + 8 * c
    for d in range(4):
        e("v_dot2_f32_bf16 %s, %s, %s, 0", v(acc + 2 * d), v(r + d), s(S_T0))
        e("v_dot2_f32_bf16 %s, %s, %s, 0", v(acc + 2 * d + 1), v(r + d), s(S_T1))
    for i in range(1, 4):
        for d in range(4):
            e("v_dot2_f32_bf16 %s, %s, %s, %s", v(acc + 2 * d), v(r + 4 * i + d), s(S_T0), v(acc + 2 * d))
            e("v_dot2_f32_bf16 %s, %s, %s, %s", v(acc + 2 * d + 1), v(r + 4 * i + d), s(S_T1), v(acc + 2 * d + 1))
    e("s_nop 3")
    for d in range(4): e("v_permlane32_swap_b32 %s, %s", v(acc + d), v(acc + 4 + d))
    e("s_nop 1")
    for d in range(4): e("v_add_f32 %s, %s, %s", v(acc + d), v(acc + d), v(acc + 4 + d))
    e("v_cvt_pk_bf16_f32 %s, %s, %s", v(acc), v(acc), v(acc + 1))
    e("v_cvt_pk_bf16_f32 %s, %s, %s", v(acc + 1), v(acc + 2), v(acc + 3))
    e("buffer_store_dwordx2 %s, %s, %s, %s offen offset:%d %s", v(acc, 2), v(V_OUT), s(S_OUT, 4), s(S_OUTB), 32 * c, {None: ""}.get(e.o.get("outaux"), str(e.o.get("outaux")).replace("_", " ")))

def flag_store(e, vaddr, off):
    e("s_mov_b64 exec, 1")
    e("buffer_store_dword %s, %s, %s, 0 offen offset:0 sc1" if not off else "buffer_store_dword %s, %s, %s, %s offen sc1",
      *((v(V_N2V), v(vaddr), s(S_WS, 4)) if not off else (v(V_N2V), v(vaddr), s(S_WS, 4), s(off))))
    e("s_mov_b64 exec, -1")

def remote_tiles(e, kstep, k0=16):
    D = 5
    lg = Cnt()
    nk = 32 - k0
    seq = [(nt, k0 + j) for nt in range(5) for j in range(nk)]
    def reg(q): return V2_A + 4 * (q % 10)
    for q in range(D):
        lg.issue("a%d" % q); lg.issue("a%d" % q)
    for q, (nt, ks) in enumerate(seq):
        j = ks - k0
        if j == 0 and nt == 1: e.stamp("fine")
        if nt == 0: e.waitv("o%d" % (ks - 8))
        if e.o.get("w2"):
            if q % 2 == 0: e("s_waitcnt lgkmcnt(%d)", min(15, lg.after("a%d" % min(q + 1, len(seq) - 1))))
        else: e("s_waitcnt lgkmcnt(%d)", min(15, lg.after("a%d" % q)))
        e("v_mfma_f32_32x32x16_bf16 %s, %s, %s, %s", v(V2_ACC + 16 * nt, 16), v(reg(q), 4), v(V_RO[ks - 8], 4), v(V2_ACC + 16 * nt, 16))
        if q + D < len(seq):
            n2, k2 = seq[q + D]
            for r in a_read(n2, k2, reg(q + D)): e(r); lg.issue("a%d" % (q + D))
        if nt >= 1 and j == (4 if nk == 16 else 3): pack_store(e, nt - 1, 0, "pst%d" % (nt - 1))
        if nt >= 1 and j == (8 if nk == 16 else 5): pack_store(e, nt - 1, 1, "pst%d" % (nt - 1))
    e.stamp()

def consts_p3(e):
    e("s_mov_b32 %s, 0x00003f80", s(S_T0))
    e("s_mov_b32 %s, 0x3f800000", s(S_T1))

def epoch2(e):
    e("s_or_b32 %s, %s, %s", s(S_T2), s(S_HG), s(S_W))
    e("s_cmp_lg_u32 %s, 0", s(S_T2))
    e("s_cbranch_scc1 L_noe2")
    e("s_lshl_b32 %s, %s, 4", s(S_T2), s(S_PB))
    e("s_add_u32 %s, %s, 0x%x", s(S_T2), s(S_T2), WS_E2)
    e("v_mov_b32 v8, %s", s(S_T2))
    e("s_mov_b64 exec, 1")
    e("buffer_store_dword %s, v8, %s, 0 offen sc1", v(V_N2V), s(S_WS, 4))
    e("s_mov_b64 exec, -1")
    e.label("L_noe2")

def tail1(e):
    e("s_nop 7\ns_nop 3")
    pack_store(e, 4, 0, "pst4"); pack_store(e, 4, 1, "pst4")
    e.waitv("pst4")
    e.stamp()
    flag_store(e, V_F2O, 0)
    poll(e, "L_poll2", V_F2P, S_N2, 8)
    e.stamp()
    e("s_cmp_ge_u32 %s, 2", s(S_W))
    e("s_cbranch_scc1 L_p3_two")
    p3_loads(e, 3); consts_p3(e)
    e("s_waitcnt vmcnt(0)")
    e.stamp("fine");
    for c in range(3): p3_reduce(e, c)
    e("s_branch L_p3_done")
    e.label("L_p3_two")
    p3_loads(e, 2); consts_p3(e)
    e("s_waitcnt vmcnt(0)")
    if e.o.get("fine") and e.o.get("stamps"): e.nst -= 1
    e.stamp("fine")
    for c in range(2): p3_reduce(e, c)
    e.label("L_p3_done")
    epoch2(e)
    e.stamp()
    if e.o.get("fine"):
        e("s_waitcnt vmcnt(0)")
        e.stamp()

def tail2(e):
    e.jitter(5)
    if e.o.get("r2split"):
        e("s_mov_b32 %s, 0x%x", s(S_T3), 1 << 17)
        e("s_nop 7\ns_nop 3")
        pack_store(e, 4, 0, "pst4"); pack_store(e, 4, 1, "pst4")
        e.waitv("pst2")
        flag_store(e, V_F2O, 0)
        e.vm.issue("fA")
    else:
        e.waitv("pst2")
        flag_store(e, V_F2O, 0)
        e("s_mov_b32 %s, 0x%x", s(S_T3), 1 << 17)
        e("s_nop 7")
        pack_store(e, 4, 0, "pst4"); pack_store(e, 4, 1, "pst4")
    e.jitter(6)
    e.waitv("pst4")
    flag_store(e, V_F2O, S_T3)
    e.stamp()
    poll(e, "L_poll2", V_F2P, S_N2, 8)
    e.stamp()
    e("s_cmp_ge_u32 %s, 2", s(S_W))
    e("s_cbranch_scc1 L_p3_two")
    p3_loads(e, 3); consts_p3(e)
    for c, n in enumerate((8, 5, 2)):
        e("s_waitcnt vmcnt(%d)", n); p3_reduce(e, c)
    e("s_branch L_p3_done")
    e.label("L_p3_two")
    p3_loads(e, 2); consts_p3(e)
    for c, n in enumerate((4, 1)):
        e("s_waitcnt vmcnt(%d)", n); p3_reduce(e, c)
    e.label("L_p3_done")
    epoch2(e)
    e.stamp()

def partials(e):
    T = V_T; L = v(V_LANE)
    e("v_bfe_u32 %s, %s, 4, 1", v(T), L)
    e("v_mul_u32_u24 %s, %d, %s", v(T), 8 * 10 * 512, v(T))
    e("v_and_b32 %s, 15, %s", v(T + 1), L)
    e("v_lshrrev_b32 %s, 5, %s", v(T + 2), L)
    e("v_lshl_add_u32 %s, %s, 4, %s", v(T + 1), v(T + 2), v(T + 1))
    e("v_lshl_add_u32 %s, %s, 4, %s", v(T), v(T + 1), v(T))
    e("s_lshl_b32 %s, %s, 2", s(S_T0), s(S_RP))
    e("s_add_u32 %s, %s, %s", s(S_T0), s(S_T0), s(S_CS))
    e("s_lshl_b32 %s, %s, 3", s(S_PB), s(S_T0))
    e("s_lshl_b32 %s, %s, 1", s(S_T1), s(S_W))
    e("s_add_u32 %s, %s, %s", s(S_T1), s(S_PB), s(S_T1))
    e("s_lshl_b32 %s, %s, 3", s(S_T1), s(S_T1))
    e("s_add_u32 %s, %s, %s", s(S_T1), s(S_T1), s(S_HG))
    e("s_mul_i32 %s, %s, %d", s(S_T1), s(S_T1), 10 * 512)
    e("s_add_u32 %s, %s, 0x%x", s(S_T1), s(S_T1), WS_PART)
    e("s_add_u32 %s, %s, 4096", s(S_T2), s(S_T1))
    e("s_lshl_b32 %s, %s, 2", s(S_T0), s(S_T0))
    e("s_add_u32 %s, %s, %s", s(S_T3), s(S_T0), s(S_W))
    e("s_lshl_b32 %s, %s, 3", s(S_T3), s(S_T3))
    e("s_add_u32 %s, %s, %s", s(S_T3), s(S_T3), s(S_HG))
    e("s_lshl_b32 %s, %s, 7", s(S_T3), s(S_T3))
    e("s_add_u32 %s, %s, 0x%x", s(S_T3), s(S_T3), WS_F2)
    e("v_mov_b32 %s, %s", v(V_TM + 7), s(S_T3))
    e("s_lshr_b32 %s, %s, 1", s(S_T3), s(S_HG))
    e("s_add_u32 %s, %s, %s", s(S_T3), s(S_T0), s(S_T3))
    e("s_lshl_b32 %s, %s, 10", s(S_T3), s(S_T3))
    e("s_add_u32 %s, %s, 0x%x", s(S_T3), s(S_T3), WS_F2)
    e("v_and_b32 %s, 7, %s", v(T + 3), L)
    e("v_lshlrev_b32 %s, 7, %s", v(T + 3), v(T + 3))
    e("v_add_u32 %s, %s, %s", v(V_TM + 6), s(S_T3), v(T + 3))
    e("v_mov_b32 %s, %s", v(V_TM + 8), s(S_N2))
    for nt in range(5):
        for m in range(2):
            ch = 2 * nt + m
            for d in range(4):
                r0 = V2_ACC + 16 * nt + 8 * m + 2 * d
                e("v_cvt_pk_bf16_f32 %s, %s, %s", v(V_PK + 4 * ch + d), v(r0), v(r0 + 1))
            e("buffer_store_dwordx4 %s, %s, %s, %s offen offset:%d sc1", v(V_PK + 4 * ch, 4), v(T), s(S_WS, 4), s(S_T1 if ch < 8 else S_T2), (ch % 8) * 512)
            e.vm.issue("pst")
    e.waitv("pst")
    e.stamp()
    e("s_mov_b64 exec, 1")
    e("buffer_store_dword %s, %s, %s, 0 offen sc1", v(V_TM + 8), v(V_TM + 7), s(S_WS, 4)); e.vm.issue("f2")
    poll(e, "L_poll2", V_TM + 6, S_N2, 8)
    e.stamp()

def phase3(e):
    T = V_T; L = v(V_LANE)
    e("v_lshrrev_b32 %s, 5, %s", v(T), L)
    e("v_mul_u32_u24 %s, 5120, %s", v(T + 1), v(T))
    e("v_and_b32 %s, 31, %s", v(T + 2), L)
    e("v_lshl_add_u32 %s, %s, 4, %s", v(T + 1), v(T + 2), v(T + 1))
    e("s_add_u32 %s, %s, %s", s(S_T0), s(S_PB), s(S_HG))
    e("s_mul_i32 %s, %s, %d", s(S_T0), s(S_T0), 8 * 5120)
    e("s_add_u32 %s, %s, 0x%x", s(S_T0), s(S_T0), WS_PART)
    e("s_mul_i32 %s, %s, 3", s(S_T1), s(S_W))
    e("s_cmp_eq_u32 %s, 3", s(S_W))
    e("s_cselect_b32 %s, 8, %s", s(S_T1), s(S_T1))
    e("s_lshl_b32 %s, %s, 9", s(S_T2), s(S_T1))
    e("s_add_u32 %s, %s, %s", s(S_T0), s(S_T0), s(S_T2))
    R = 64
    for c in range(3):
        if c == 2:
            e("s_cmp_ge_u32 %s, 2", s(S_W))
            e("s_cbranch_scc1 L_p3_two")
        for i in range(4):
            e("s_add_u32 %s, %s, %d", s(S_OFF), s(S_T0), 2 * i * 5120 + c * 512)
            e("buffer_load_dwordx4 %s, %s, %s, %s offen sc1", v(R + 16 * c + 4 * i, 4), v(T + 1), s(S_WS, 4), s(S_OFF))
    e.label("L_p3_two")
    e("v_and_b32 %s, 15, %s", v(T + 3), L)
    e("v_mul_u32_u24 %s, 1280, %s", v(T + 3), v(T + 3))
    e("v_bfe_u32 %s, %s, 4, 1", v(T + 4), L)
    e("v_lshl_add_u32 %s, %s, 3, %s", v(T + 3), v(T + 4), v(T + 3))
    e("v_lshl_add_u32 %s, %s, 4, %s", v(T + 3), v(T), v(T + 3))
    e("s_lshl_b32 %s, %s, 3", s(S_T2), s(S_RP))
    e("s_add_u32 %s, %s, %s", s(S_T2), s(S_T2), s(S_HG))
    e("s_mul_i32 %s, %s, %d", s(S_T2), s(S_T2), 16 * 1280)
    e("s_mul_i32 %s, %s, 320", s(S_T3), s(S_CS))
    e("s_add_u32 %s, %s, %s", s(S_T2), s(S_T2), s(S_T3))
    e("s_lshl_b32 %s, %s, 5", s(S_T1), s(S_T1))
    e("s_add_u32 %s, %s, %s", s(S_T2), s(S_T2), s(S_T1))
    e("s_mov_b32 %s, 0x00003f80", s(S_T0))
    e("s_mov_b32 %s, 0x3f800000", s(S_T1))
    def reduce(c):
        r = R + 16 * c; acc = 128 + 8 * c
        for d in range(4):
            e("v_dot2_f32_bf16 %s, %s, %s, 0", v(acc + 2 * d), v(r + d), s(S_T0))
            e("v_dot2_f32_bf16 %s, %s, %s, 0", v(acc + 2 * d + 1), v(r + d), s(S_T1))
        for i in range(1, 4):
            for d in range(4):
                e("v_dot2_f32_bf16 %s, %s, %s, %s", v(acc + 2 * d), v(r + 4 * i + d), s(S_T0), v(acc + 2 * d))
                e("v_dot2_f32_bf16 %s, %s, %s, %s", v(acc + 2 * d + 1), v(r + 4 * i + d), s(S_T1), v(acc + 2 * d + 1))
        e("s_nop 3")
        for d in range(4): e("v_permlane32_swap_b32 %s, %s", v(acc + d), v(acc + 4 + d))
        e("s_nop 1")
        for d in range(4): e("v_add_f32 %s, %s, %s", v(acc + d), v(acc + d), v(acc + 4 + d))
        e("v_cvt_pk_bf16_f32 %s, %s, %s", v(acc), v(acc), v(acc + 1))
        e("v_cvt_pk_bf16_f32 %s, %s, %s", v(acc + 1), v(acc + 2), v(acc + 3))
        e("buffer_store_dwordx2 %s, %s, %s, %s offen offset:%d", v(acc, 2), v(T + 3), s(S_OUT, 4), s(S_T2), 32 * c)
    e("s_waitcnt vmcnt(0)")
    reduce(0); reduce(1)
    e("s_cmp_ge_u32 %s, 2", s(S_W))
    e("s_cbranch_scc1 L_p3_skip")
    reduce(2)
    e.label("L_p3_skip")
    e("s_or_b32 %s, %s, %s", s(S_T0), s(S_HG), s(S_W))
    e("s_cmp_lg_u32 %s, 0", s(S_T0))
    e("s_cbranch_scc1 L_noe2")
    e("s_lshl_b32 %s, %s, 4", s(S_T0), s(S_PB))
    e("s_add_u32 %s, %s, 0x%x", s(S_T0), s(S_T0), WS_E2)
    e("v_mov_b32 %s, %s", v(T), s(S_T0))
    e("s_mov_b64 exec, 1")
    e("buffer_store_dword %s, %s, %s, 0 offen sc1", v(V_TM + 8), v(T), s(S_WS, 4))
    e("s_mov_b64 exec, -1")
    e.label("L_noe2")
    e.stamp()

def dump_stamps(e):
    if not e.o.get("stamps"): return
    n = e.nst
    e("s_waitcnt lgkmcnt(0) vmcnt(0)")
    e("s_lshl_b32 %s, s2, 2", s(S_T0))
    e("s_add_u32 %s, %s, %s", s(S_T0), s(S_T0), s(S_W))
    e("s_lshl_b32 %s, %s, 7", s(S_T0), s(S_T0))
    e("s_add_u32 %s, %s, 0x%x", s(S_T0), s(S_T0), WS_STAMP)
    e("s_mov_b64 exec, 1")
    for i in range(n):
        e("v_mov_b32 v2, %s", s(S_STAMP + 2 * i))
        e("v_mov_b32 v3, %s", s(S_STAMP + 2 * i + 1))
        e("v_mov_b32 v4, %d", 8 * i)
        e("buffer_store_dwordx2 v[2:3], v4, %s, %s offen", s(S_WS, 4), s(S_T0))
        e("s_nop 1")

HEADER = """
; Fused GQA block in one launch: q = x Wq, S = K q^T, softmax, O = P V, out = O Wo   (bf16 in / out, f32 accumulate)
; Kernarg (64 bytes, pointers): x, k_cache, v_cache, wq, wo, out, debug, ws
;
; 256 workgroups of 4 waves, one per CU (160 KiB of LDS each).  wg = xcd + 8 * (4 * rp + cs):
; Phase 1  q^T (128 d x 128 q, K = 640): wq / x tiles stream through an LDS ring (LDS-DMA, 10 stages of 64 k,
;          stage order rotated per workgroup), wq is read with the transposing LDS read; then S^T = K q^T,
;          softmax over the keys (true row maximum), O^T = V^T P^T - all operands stay in MFMA register layouts.
; Phase 2  the 4 heads of (rp, hg) exchange O (bf16 MFMA fragments in ws); workgroup cs multiplies the 128 x 512
;          block with wo[512 hg .. +512][160 cs .. +160] (own head first, then the partners').
; Phase 3  the 8 head groups exchange bf16 partial sums; workgroup hg adds them for rows 16 hg .. +16 in f32.
; Hand-offs: write-through (sc1) stores, drained, then a flag word; consumers poll the flag and read with sc1.
;   A flag is valid when it equals (epoch word found in ws at entry) + 1; the epoch word is advanced by one
;   member of the group once every member has read it, so stale or arbitrary ws contents never look valid.
; Generated by the author's own script (register maps, schedules and wait counts are derived there).
"""
def build(opts):
    e = K(opts)
    for l in HEADER.strip("\n").split("\n"): e.raw(l)
    e.raw("; @launch grid=(256,1,1) block=(%d,1,1) lds=%d" % (512 if opts.get("ldr") else 256, LDS_BYTES))
    e.raw('.amdgcn_target "amdgcn-amd-amdhsa--gfx950"')
    e.raw(".text")
    e.raw(".globl %s" % NAME)
    e.raw(".p2align 8")
    e.raw(".type %s,@function" % NAME)
    e.label(NAME)
    prologue(e)
    addr_gemm1_dma(e)
    if opts.get("ldr"):
        e("s_cmp_eq_u32 %s, %d", s(S_ROLE), 0 if opts.get("ldr_first") else 1)
        e("s_cbranch_scc1 L_loader")
        e.skip_dma = True
    gemm1(e)
    attention(e)
    phase2(e)
    if opts.get("tile2"): tail2(e)
    elif opts.get("tile"): tail1(e)
    else:
        partials(e)
        phase3(e)
    dump_stamps(e)
    e.label("L_end")
    e("s_endpgm")
    if opts.get("ldr"): loader(e)
    e.raw("; NSTAMPS %d" % e.nst)
    return e.text() + KD.format(name=NAME, vgpr=256, sgpr=100, acc=256), e.nst

if __name__ == "__main__":
    out = sys.argv[1]
    opts = {}
    for k in sys.argv[2:]:
        if "=" in k: kk, vv = k.split("="); opts[kk] = vv
        else: opts[k] = True
    t, n = build(opts)
    open(out, "w").write(t)
    print("wrote", out, "stamps:", n, "lines:", t.count("\n"))
```
